```python
import torch

def _softmax(x, axis=-1):
    return torch.softmax(x, dim=axis)
def _gelu(x):
    return torch.nn.functional.gelu(x, approximate="tanh")
def _silu(x):
    return torch.nn.functional.silu(x)
def _sigmoid(x):
    return torch.sigmoid(x)
def _layernorm(x, axis=-1, eps=1e-5):
    m = x.mean(dim=axis, keepdim=True)
    v = x.var(dim=axis, keepdim=True, unbiased=False)
    return (x - m) / torch.sqrt(v + eps)
def _scatter_add(tgt, idx, src, axis=0):
    return tgt.clone().index_add_(axis, idx, src)
def _segment_sum(src, seg, n):
    out = torch.zeros((n,) + src.shape[1:], dtype=src.dtype)
    return out.index_add_(0, seg, src)
def _pad(x, pw):
    flat = tuple(v for pair in reversed(pw) for v in pair)
    return torch.nn.functional.pad(x, flat)

kernel_name = 'interleave_layers__linear_attn_block__softmax_full_mha__prompt'

def setup_inputs():

    _w = (lambda a: (lambda t: t.to(torch.bfloat16) if t.is_floating_point() else t)(torch.as_tensor(a)))
    def _A_setup():
        B, S, D = 1, 2048, 640
        return {
            "x": _w((lambda *s: torch.randn(*s, dtype=torch.bfloat16) * 0.05)(B, S, D)),
            "wqkv": _w((lambda *s: torch.randn(*s, dtype=torch.bfloat16) * 0.05)(D, 3 * D)),
            "wo": _w((lambda *s: torch.randn(*s, dtype=torch.bfloat16) * 0.05)(D, D)),
        }
    _A_in = _A_setup()

    def _B_setup():
        B, S, D = 1, 2048, 640
        return {
            "x": _w((lambda *s: torch.randn(*s, dtype=torch.bfloat16) * 0.05)(B, S, D)),
            "wqkv": _w((lambda *s: torch.randn(*s, dtype=torch.bfloat16) * 0.1)(D, 3 * D)),
            "wo": _w((lambda *s: torch.randn(*s, dtype=torch.bfloat16) * 0.05)(D, D)),
        }
    _B_in = _B_setup()

    return {
        "A_x": _A_in["x"],
        "A_wqkv": _A_in["wqkv"],
        "A_wo": _A_in["wo"],
        "B_x": _B_in["x"],
        "B_wqkv": _B_in["wqkv"],
        "B_wo": _B_in["wo"],
    }

def reference(A_x, A_wqkv, A_wo, B_x, B_wqkv, B_wo):
    def _A_ref(x, wqkv, wo):
        B, S, D = x.shape
        H = 32; Dh = D // H
        qkv = (lambda x, *d: x.permute(*d))((x @ wqkv).reshape(B, S, 3, H, Dh), 2, 0, 3, 1, 4)
        q, k, v = qkv[0], qkv[1], qkv[2]
        phi = lambda t: torch.where(t > 0, t + 1, torch.exp(t)) + 1e-6
        pq, pk = phi(q), phi(k)
        kv = torch.einsum("bhsd,bhse->bhde", pk, v)
        z = torch.einsum("bhsd->bhd", pk)
        num = torch.einsum("bhqd,bhde->bhqe", pq, kv)
        den = torch.einsum("bhqd,bhd->bhq", pq, z)[..., None] + 1e-6
        o = num / den
        return (lambda x, *d: x.permute(*d))(o, 0, 2, 1, 3).reshape(B, S, D) @ wo

    def _B_ref(x, wqkv, wo):
        B, S, D = x.shape
        H = 32; Dh = D // H
        qkv = (lambda x, *d: x.permute(*d))((x @ wqkv).reshape(B, S, 3, H, Dh), 2, 0, 3, 1, 4)
        q, k, v = qkv[0], qkv[1], qkv[2]
        scale = Dh ** -0.5
        scores = torch.einsum("bhqd,bhkd->bhqk", q, k) * scale
        p = _softmax(scores, axis=-1)
        o = torch.einsum("bhqk,bhkd->bhqd", p, v)
        return (lambda x, *d: x.permute(*d))(o, 0, 2, 1, 3).reshape(B, S, D) @ wo

    x = A_x
    x = x + _A_ref(_layernorm(x, axis=-1), A_wqkv, A_wo)
    x = x + _B_ref(_layernorm(x, axis=-1), B_wqkv, B_wo)
    x = x + _A_ref(_layernorm(x, axis=-1), A_wqkv, A_wo)
    x = x + _B_ref(_layernorm(x, axis=-1), B_wqkv, B_wo)
    return x
```

```python
import re

def vr(a, n=1):
    return f"v{a}" if n == 1 else f"v[{a}:{a+n-1}]"
def sr(a, n=1):
    return f"s{a}" if n == 1 else f"s[{a}:{a+n-1}]"

_reg = re.compile(r"^(-|\|)?([vsa])(?:(\d+)|\[(\d+):(\d+)\])\|?$")
def regs_of(op):
    op = op.strip()
    if op in ("vcc",): return {("s", 106), ("s", 107)}
    if op == "vcc_lo": return {("s", 106)}
    if op == "vcc_hi": return {("s", 107)}
    if op == "exec": return {("s", 126), ("s", 127)}
    if op == "exec_lo": return {("s", 126)}
    if op == "exec_hi": return {("s", 127)}
    if op == "m0": return {("s", 124)}
    m = _reg.match(op)
    if not m: return set()
    k = m.group(2)
    if m.group(3) is not None: return {(k, int(m.group(3)))}
    return {(k, i) for i in range(int(m.group(4)), int(m.group(5)) + 1)}

TRANS = ("v_exp_f32", "v_log_f32", "v_rcp_f32", "v_rsq_f32", "v_sqrt_f32")
PASSES = {"v_mfma_f32_32x32x16_bf16": 8, "v_mfma_f32_16x16x32_bf16": 4,
          "v_mfma_f32_32x32x4_2b_bf16": 16, "v_mfma_f32_32x32x8_bf16": 8,
          "v_mfma_f32_32x32x4_2b_bf16_1k": 16, "v_mfma_f32_32x32x8_bf16_1k": 8}

class Ins:
    def __init__(self, text):
        self.text = text
        t = text.split(";")[0].strip()
        self.label = t[:-1] if t.endswith(":") else None
        self.op = None; self.dst = set(); self.src = set(); self.states = 0
        self.kind = None; self.target = None
        if self.label or not t or t.startswith("."): return
        parts = t.split(None, 1)
        op = parts[0]; self.op = op
        rest = parts[1] if len(parts) > 1 else ""
        ops = [x.strip() for x in re.split(r",(?![^\[]*\])", rest)] if rest else []
        mods = ""
        if ops:
            sp = ops[-1].split(None, 1)
            ops[-1] = sp[0]
            if len(sp) > 1: mods = sp[1]
        self.ops = ops; self.mods = mods
        self.states = 1
        base = op.replace("_e32", "").replace("_e64", "")
        self.base = base
        R = [regs_of(o) for o in ops]
        allr = lambda xs: set().union(*xs) if xs else set()
        if op == "s_nop":
            self.kind = "nop"; self.states = int(ops[0]) + 1
        elif op.startswith("s_cbranch") or op == "s_branch":
            self.kind = "branch"; self.target = ops[0]
        elif op == "s_endpgm":
            self.kind = "end"
        elif op.startswith("v_mfma"):
            self.kind = "mfma"; self.dst = R[0]; self.ab = R[1] | R[2]; self.c = R[3]
            self.src = self.ab | self.c; self.passes = PASSES[op]
        elif op.startswith("v_"):
            self.kind = "valu"
            if base.startswith("v_permlane") and "swap" in base:
                self.dst = R[0] | R[1]; self.src = R[0] | R[1]
            elif base.startswith("v_cmp"):
                self.dst = R[0]; self.src = allr(R[1:])
            elif base in ("v_add_co_u32", "v_sub_co_u32"):
                self.dst = R[0] | R[1]; self.src = allr(R[2:])
            elif base in ("v_addc_co_u32",):
                self.dst = R[0] | R[1]; self.src = allr(R[2:])
            else:
                self.dst = R[0]; self.src = allr(R[1:])
                if base in ("v_fmac_f32", "v_dot2c_f32_bf16", "v_writelane_b32"): self.src |= R[0]
                if base == "v_cndmask_b32" and len(ops) == 3: self.src |= regs_of("vcc")
        elif op.startswith("buffer_") or op.startswith("global_"):
            self.kind = "vmem"
            self.lds = " lds" in (" " + mods)
            if "load" in op and not self.lds:
                self.dst = R[0]; self.src = allr(R[1:])
            else:
                self.src = allr(R)
            self.wide_store = ("store" in op) and (op.endswith("x4") or op.endswith("x3"))
            self.data = R[0] if "store" in op else set()
        elif op.startswith("ds_"):
            self.kind = "ds"
            if "read" in op or "permute" in op or "swizzle" in op or "rtn" in op:
                self.dst = R[0]; self.src = allr(R[1:])
            else:
                self.src = allr(R)
        elif op.startswith("s_"):
            self.kind = "salu"
            if op.startswith("s_cmp") or op in ("s_waitcnt", "s_barrier", "s_setprio", "s_sleep", "s_bitcmp1_b32", "s_bitcmp0_b32"):
                self.src = allr(R)
            else:
                self.dst = R[0] if R else set(); self.src = allr(R[1:])
                if "saveexec" in op: self.dst = self.dst | regs_of("exec")
        else:
            raise ValueError("unknown instruction: " + text)

def V(s): return {r for r in s if r[0] in "va"}
def S(s): return {r for r in s if r[0] == "s"}

def need(p, c):
    n = 0
    if p.kind == "valu":
        pd = V(p.dst); ps = S(p.dst)
        if c.kind == "mfma" and pd & c.src: n = max(n, 2)
        if c.kind == "valu":
            if p.base in TRANS and c.base not in TRANS and pd & c.src: n = max(n, 1)
            if ps & c.src: n = max(n, 4 if c.base in ("v_readlane_b32", "v_writelane_b32") else 2)
            if c.base in ("v_readfirstlane_b32", "v_readlane_b32") and pd & c.src: n = max(n, 1)
            if (c.base.startswith("v_permlane") or "dpp" in c.op or "row_" in c.mods or "quad_perm" in c.mods) and pd & c.src: n = max(n, 2)
            if ("sdwa" in p.op or ("op_sel" in p.mods and not p.base.startswith("v_pk_"))) and pd & (c.src | c.dst): n = max(n, 1)
        if p.base.startswith("v_dot"):
            if c.kind in ("valu", "vmem", "ds", "mfma") and pd & (c.src | c.dst):
                same = c.kind == "valu" and c.base == p.base and not (pd & (regs_of(c.ops[1]) | regs_of(c.ops[2])))
                if not same: n = max(n, 3)
        if c.kind == "vmem" and ps & c.src: n = max(n, 5)
    if p.kind == "mfma":
        if c.kind == "mfma":
            if p.dst & c.ab: n = max(n, p.passes + 4)
            if p.dst & c.c:
                if not (p.dst == c.c and p.op == c.op): n = max(n, p.passes + 2)
            elif p.dst & c.dst: n = max(n, p.passes + 2)
        elif c.kind in ("valu", "vmem", "ds"):
            if p.dst & (c.src | c.dst): n = max(n, p.passes + 4)
            if c.kind == "valu" and V(p.c) & c.dst: n = max(n, p.passes - 1)
    if p.kind == "salu" and ("s", 124) in p.dst and c.kind == "vmem" and c.lds: n = max(n, 1)
    if p.kind == "vmem" and p.wide_store and p.data & c.dst:
        n = max(n, 2 if c.kind == "valu" else 1)
    return n

def pad(lines, verbose=False):
    ins = [Ins(l) for l in lines]
    total = 0; start = 0
    while True:
        labels = {x.label: i for i, x in enumerate(ins) if x.label}
        br = {}
        for i, x in enumerate(ins):
            if x.kind == "branch": br.setdefault(x.target, []).append(i)
        fix = None
        for i in range(start, len(ins)):
            c = ins[i]
            if c.kind in (None, "nop", "branch", "end"): continue
            worst = 0
            stack = [(i - 1, 0)]; seen = set()
            while stack:
                j, d = stack.pop()
                while j >= 0 and d < 21:
                    if (j, d) in seen: break
                    seen.add((j, d))
                    p = ins[j]
                    if p.label:
                        for b in br.get(p.label, []): stack.append((b, d))
                        if j > 0 and (ins[j-1].kind == "end" or ins[j-1].op == "s_branch"): break
                    elif p.kind == "end": break
                    elif p.kind is not None:
                        k = need(p, c)
                        if k - d > worst: worst = k - d; why = p.text
                        d += p.states
                    j -= 1
            if worst > 0:
                fix = (i, worst, why); break
        if not fix: break
        i, w, why = fix
        if verbose: print(f"pad {w} before [{ins[i].text.strip()}] after [{why.strip()}]")
        total += w
        new = []
        while w > 0:
            k = min(w, 16); new.append(Ins(f"    s_nop {k-1}")); w -= k
        ins[i:i] = new; start = i
    return [x.text for x in ins], total

class K:
    def __init__(self, name, grid, block, lds, vgpr, sgpr=96, agpr=0):
        self.name = name; self.grid = grid; self.block = block; self.lds = lds
        self.vgpr = vgpr; self.sgpr = sgpr; self.agpr = agpr
        self.L = []
    def __call__(self, s):
        for l in s.strip("\n").split("\n"):
            l = l.strip()
            if not l: continue
            self.L.append(l if l.endswith(":") else "    " + l)
    def lab(self, n): return f"L_{self.name}_{n}"
    def text(self, verbose=False):
        body, n = pad(self.L, verbose)
        hi = 0
        for l in body:
            x = Ins(l)
            for r in (x.dst | x.src):
                if r[0] == "v": hi = max(hi, r[1])
        assert hi < self.vgpr, (self.name, hi, self.vgpr)
        return (f".globl {self.name}\n.p2align 8\n.type {self.name},@function\n{self.name}:\n"
                + "\n".join(body) + "\n")
    def desc(self):
        acc = (self.vgpr + 3) // 4 * 4
        return f""".amdhsa_kernel {self.name}
  .amdhsa_next_free_vgpr {acc + self.agpr}
  .amdhsa_next_free_sgpr {self.sgpr}
  .amdhsa_accum_offset {acc}
  .amdhsa_group_segment_fixed_size 0
  .amdhsa_kernarg_size 72
  .amdhsa_user_sgpr_count 2
  .amdhsa_user_sgpr_kernarg_segment_ptr 1
  .amdhsa_system_sgpr_workgroup_id_x 1
.end_amdhsa_kernel
"""
```

```python
from common import *
OOB = 0x40000000

def gen_att(name):
    k = K(name, 256, 256, 61440, vgpr=216)
    L = k.lab
    SA, SB, PA, PB, OA, OBR, MA, MB = 0, 32, 64, 80, 96, 112, 128, 144
    K0, K1, K4, VV, QA, QA4, QBR, QB4 = 160, 164, 168, 170, 186, 190, 192, 196
    LN, L16, L16B, L8, LV, AK, AK4, AV, AOT, _, t = range(198, 209)
    GS = 20480
    k(f"""
    s_cmp_ge_u32 s2, 256
    s_cbranch_scc1 {L('end')}
    s_load_dwordx2 s[4:5], s[0:1], 64
    v_lshrrev_b32 v1, 6, v0
    v_and_b32 v{LN}, 63, v0
    v_readfirstlane_b32 s3, v1
    s_and_b32 s6, s2, 3
    s_lshl_b32 s6, s6, 3
    s_and_b32 s7, s2, 4
    s_add_u32 s6, s6, s7
    s_bfe_u32 s7, s2, 0x20003
    s_add_u32 s6, s6, s7
    s_lshr_b32 s7, s2, 5
    s_lshl_b32 s16, s7, 2
    s_add_u32 s16, s16, s3
    s_lshl_b32 s16, s16, 1
    s_mul_i32 s17, s6, 163840
    s_add_u32 s17, s17, {hx(KVB)}
    s_mul_i32 s18, s6, 81920
    s_mul_i32 s19, s16, 1280
    s_add_u32 s18, s18, s19
    s_add_u32 s18, s18, {hx(QB)}
    s_mul_i32 s19, s3, 5120
    v_lshlrev_b32 v{L16}, 4, v{LN}
    v_add_u32 v{L16B}, 4096, v{L16}
    v_and_b32 v{t}, 31, v{LN}
    v_lshlrev_b32 v{t+1}, 3, v{t}
    s_mov_b32 s20, s19
    s_mov_b32 m0, s19
    s_waitcnt lgkmcnt(0)
    """)
    srd(k, 8, 4, "s17", 163840)
    srd(k, 12, 4, "s18", 2560)
    def dma(i):
        if i < 4: return f"buffer_load_dwordx4 v{L16}, s[8:11], s20 offen offset:{i*1024} lds"
        return f"buffer_load_dwordx4 v{L16B}, s[8:11], s20 offen lds"
    for i in range(3): k(dma(i))
    k(f"""
    buffer_load_dwordx4 v[{QA}:{QA+3}], v{L16}, s[12:15], 0 offen
    buffer_load_dwordx2 v[{QA4}:{QA4+1}], v{t+1}, s[12:15], 0 offen offset:1024
    buffer_load_dwordx4 v[{QBR}:{QBR+3}], v{L16}, s[12:15], 0 offen offset:1280
    buffer_load_dwordx2 v[{QB4}:{QB4+1}], v{t+1}, s[12:15], 0 offen offset:2304
    """)
    k(dma(3)); k("s_add_u32 m0, m0, 4096"); k(dma(4))
    k(f"s_add_u32 s20, s20, {GS}\ns_mov_b32 m0, s20")
    for i in range(4): k(dma(i))
    k("s_add_u32 m0, m0, 4096"); k(dma(4))
    k(f"""
    s_add_u32 s20, s20, {GS}
    s_add_u32 s23, s19, {10*GS}
    s_mov_b32 s21, {GS}
    s_mov_b32 s44, 0xfffff
    s_mov_b32 s45, 0xfffff
    v_lshlrev_b32 v{L8}, 3, v{LN}
    v_lshrrev_b32 v{t+2}, 5, v{LN}
    v_mad_u32_u24 v{LV}, v{t+2}, 20, v{t}
    v_lshlrev_b32 v{LV}, 4, v{LV}
    v_mov_b32 v{AK}, v{L16}
    v_mov_b32 v{AK4}, v{L8}
    v_mov_b32 v{AV}, v{LV}
    s_mul_i32 s28, s16, 40960
    s_add_u32 s28, s28, {hx(OB)}
    """)
    srd(k, 24, 4, "s28", 2*40960)
    k(f"""
    s_lshl_b32 s29, s6, 10
    s_lshr_b32 s30, s6, 2
    s_add_u32 s30, s30, 32
    s_lshl_b32 s30, s30, 10
    s_bfe_u32 s31, s6, 0x10001
    s_lshl_b32 s31, s31, 9
    s_add_u32 s30, s30, s31
    s_and_b32 s31, s6, 1
    s_lshl_b32 s31, s31, 3
    s_add_u32 s30, s30, s31
    s_add_u32 s32, s29, 40960
    s_add_u32 s33, s30, 40960
    v_lshl_add_u32 v{AOT}, v{t+2}, 30, v{L16}
    """)
    for r in range(16): k(f"v_mov_b32 v{VV+r}, 0x3f803f80")
    for r in range(PB, PB+48, 2): k(f"v_mov_b64 v[{r}:{r+1}], 0")
    def qk(S, Q, Q4, C):
        c = (lambda: 0) if C is None else (lambda: f"v[{C}:{C+15}]")
        return [f"v_mfma_f32_32x32x16_bf16 v[{S}:{S+15}], v[{K0}:{K0+3}], v[{Q}:{Q+3}], {c()}",
                f"v_mfma_f32_32x32x16_bf16 v[{S+16}:{S+31}], v[{K1}:{K1+3}], v[{Q}:{Q+3}], {c()}",
                f"v_mfma_f32_32x32x4_2b_bf16 v[{S}:{S+31}], v[{K4}:{K4+1}], v[{Q4}:{Q4+1}], v[{S}:{S+31}]"]
    def pv(O, P, m):
        return f"v_mfma_f32_32x32x16_bf16 v[{O}:{O+15}], v[{VV+4*m}:{VV+4*m+3}], v[{P+4*m}:{P+4*m+3}], v[{O}:{O+15}]"
    def kread(o):
        return [f"ds_read_b128 v[{K0}:{K0+3}], v{AK} offset:{o}",
                f"ds_read_b128 v[{K1}:{K1+3}], v{AK} offset:{o+1024}",
                f"ds_read_b64 v[{K4}:{K4+1}], v{AK4} offset:{o+2048}"]
    def vread(o):
        return (["s_mov_b64 exec, s[44:45]"]
                + [f"ds_read_b128 v[{VV+4*m}:{VV+4*m+3}], v{AV} offset:{o+2560+640*m}" for m in range(4)]
                + ["s_mov_b64 exec, -1"])
    def maxchain(S, d, init):
        for j in range(16):
            if j == 0 and init: k(f"v_max_f32 v{d}, v{S}, v{S+1}")
            else: k(f"v_max3_f32 v{d}, v{S+2*j}, v{S+2*j+1}, v{d}")
    def setm(d, M, bias):
        k(f"""
        v_mov_b32 v{d+1}, v{d}
        v_permlane32_swap_b32 v{d+1}, v{d}
        v_max_f32 v{d}, v{d}, v{d+1}
        v_sub_f32 v{M}, {bias}, v{d}
        v_sub_f32 v{M+1}, {bias}, v{d}
        """)
        for r in range(M+2, M+16, 2): k(f"v_mov_b64 v[{r}:{r+1}], v[{M}:{M+1}]")
    def valu_seq(S, P):
        e = lambda i: f"v_exp_f32 v{S+i}, v{S+i}"
        c = lambda j: f"v_cvt_pk_bf16_f32 v{P+j}, v{S+2*j}, v{S+2*j+1}"
        seq = [e(0), e(1)]
        for j in range(14): seq += [e(2*j+2), c(j), e(2*j+3)]
        return seq + [e(30), e(31), c(14), c(15)]
    POS = [0, 4, 14, 23, 29, 35, 41]
    def phase(S, P, mfs, after, before={}):
        seq = valu_seq(S, P)
        for i, x in enumerate(seq):
            if i in POS:
                j = POS.index(i)
                for y in before.get(j, []): k(y)
                k(mfs[j])
                for y in after.get(j, []): k(y)
            k(x)
    k("s_waitcnt vmcnt(7)\ns_barrier")
    for x in kread(0): k(x)
    k("s_waitcnt lgkmcnt(0)")
    qa, qb = qk(SA, QA, QA4, None), qk(SB, QBR, QB4, None)
    for x in (qa[0], qa[1], qb[0], qb[1], qa[2], qb[2]): k(x)
    maxchain(SA, t, True); setm(t, MA, hx(f2u(-32.0)))
    qa = qk(SA, QA, QA4, MA)
    k(qa[0]); k(qa[1])
    maxchain(SB, t+2, True)
    k(qa[2])
    setm(t+2, MB, hx(f2u(-32.0)))
    k("s_waitcnt vmcnt(5)\ns_barrier\ns_nop 1")
    k(f"{L('loop')}:")
    for j in range(4):
        kr = kread((j+1) % 4 * 5120)
        aft = {0: [kr[0]], 1: [kr[1]], 2: [kr[2]], 5: ["s_waitcnt lgkmcnt(0)"], 6: vread(j*5120)}
        if j == 0:
            aft[3] = [f"s_add_u32 s22, s21, {GS}"]; aft[4] = [f"s_cmp_eq_u32 s22, {3*GS}"]
        if j == 3:
            aft[0] = ["s_add_u32 m0, s22, s19", kr[0]]
            aft[3] = [dma(0)]; aft[4] = [dma(1)]
        phase(SA, PA, qk(SB, QBR, QB4, MB) + [pv(OBR, PB, m) for m in range(4)], aft)
        aft = {}; bef = {3: ["s_waitcnt lgkmcnt(0)"]}
        if j == 0: aft[0] = ["s_cselect_b32 s22, 0, s22"]
        if j == 2:
            aft[3] = [f"v_add_u32 v{AK}, s21, v{L16}"]; aft[4] = [f"v_add_u32 v{AK4}, s21, v{L8}"]
            aft[5] = ["s_waitcnt vmcnt(0)"]; aft[6] = ["s_barrier"]
        if j == 3:
            aft[0] = [dma(2)]; aft[1] = [dma(3)]
            aft[2] = [f"v_add_u32 v{AV}, s21, v{LV}"]
            aft[3] = ["s_add_u32 m0, m0, 4096"]; aft[4] = ["s_mov_b32 s21, s22", dma(4)]
            aft[5] = [f"s_add_u32 s20, s20, {GS}"]; aft[6] = ["s_cmp_lg_u32 s20, s23"]
        phase(SB, PB, qk(SA, QA, QA4, MA) + [pv(OA, PA, m) for m in range(4)], aft, bef)
    k(f"s_cbranch_scc1 {L('loop')}")
    for m in range(4): k(pv(OBR, PB, m))
    k("s_waitcnt vmcnt(0)")
    BIG = hx(f2u(2.0**64))
    k(f"""
    v_cmp_ngt_f32 vcc, {BIG}, v{OA+12}
    s_cbranch_vccnz {L('slow')}
    v_cmp_ngt_f32 vcc, {BIG}, v{OBR+12}
    s_cbranch_vccnz {L('slow')}
    {L('fin')}:
    """)
    for O, P, s0, s1 in ((OA, PA, 29, 30), (OBR, PB, 32, 33)):
        k(f"v_rcp_f32 v{t}, v{O+12}")
        for j in range(6): k(f"v_pk_mul_f32 v[{O+2*j}:{O+2*j+1}], v[{O+2*j}:{O+2*j+1}], v[{t}:{t+1}] op_sel_hi:[1,0]")
        for j in range(6): k(f"v_cvt_pk_bf16_f32 v{P+j}, v{O+2*j}, v{O+2*j+1}")
        k(f"buffer_store_dwordx4 v[{P}:{P+3}], v{L16}, s[24:27], s{s0} offen")
        k(f"buffer_store_dwordx2 v[{P+4}:{P+5}], v{AOT}, s[24:27], s{s1} offen")
    k(f"{L('end')}:\ns_endpgm")
    def gk():
        k(f"""
        buffer_load_dwordx4 v[{K0}:{K0+3}], v{L16}, s[8:11], s20 offen
        buffer_load_dwordx4 v[{K1}:{K1+3}], v{L16}, s[8:11], s20 offen offset:1024
        buffer_load_dwordx2 v[{K4}:{K4+1}], v{L8}, s[8:11], s20 offen offset:2048
        """)
    k(f"""
    {L('slow')}:
    s_waitcnt vmcnt(0) lgkmcnt(0)
    s_mov_b32 s20, 0
    v_mov_b32 v{t}, 0xff800000
    v_mov_b32 v{t+2}, 0xff800000
    {L('slow1')}:
    """)
    gk()
    k("s_waitcnt vmcnt(0)")
    for x in qk(SA, QA, QA4, None) + qk(SB, QBR, QB4, None): k(x)
    maxchain(SA, t, False); maxchain(SB, t+2, False)
    k(f"""
    s_add_u32 s20, s20, 5120
    s_cmp_lg_u32 s20, 163840
    s_cbranch_scc1 {L('slow1')}
    s_mov_b32 s20, 0
    v_add_u32 v{AV}, 2560, v{LV}
    """)
    setm(t, MA, 0); setm(t+2, MB, 0)
    for r in range(OA, OA+32, 2): k(f"v_mov_b64 v[{r}:{r+1}], 0")
    k(f"{L('slow2')}:")
    gk()
    k("s_mov_b64 exec, s[44:45]")
    for m in range(4): k(f"buffer_load_dwordx4 v[{VV+4*m}:{VV+4*m+3}], v{AV}, s[8:11], s20 offen offset:{640*m}")
    k("s_mov_b64 exec, -1\ns_waitcnt vmcnt(0)")
    for x in qk(SA, QA, QA4, MA) + qk(SB, QBR, QB4, MB): k(x)
    for x in valu_seq(SA, PA) + valu_seq(SB, PB): k(x)
    for m in range(4): k(pv(OA, PA, m)); k(pv(OBR, PB, m))
    k(f"""
    s_add_u32 s20, s20, 5120
    s_cmp_lg_u32 s20, 163840
    s_cbranch_scc1 {L('slow2')}
    s_nop 15
    s_branch {L('fin')}
    """)
    return k
```

```python
from asmlib import *
import struct
def f2u(x): return struct.unpack("<I", struct.pack("<f", x))[0]
def hx(x): return f"0x{x & 0xffffffff:x}"

WSZ  = 16*40*4096
WOSZ = 8*20*5120
XSZ  = 64*40*1024
QSZ  = 32*64*1280
KVSZ = 32*32*5120
KVPSZ = 256*2048
WA = 0
WB = WA + WSZ
WOA = WB + WSZ
WOB = WOA + WOSZ
X0 = WOB + WOSZ
X1 = X0 + XSZ
X2 = X1 + XSZ
X3 = X2 + XSZ
OB = X3 + XSZ
QB = OB + XSZ
KVB = QB + QSZ
KVP0 = KVB + KVSZ
KVP1 = KVP0 + KVPSZ
WSEND = KVP1 + KVPSZ
KA_X, KA_WA, KA_WOA, KA_WB, KA_WOB, KA_OUT, KA_DBG, KA_WS = 0, 8, 16, 32, 40, 48, 56, 64

def srd(k, d, base, off, size):
    if off == 0:
        k(f"s_mov_b32 s{d}, s{base}\ns_mov_b32 s{d+1}, s{base+1}")
    else:
        o = hx(off) if isinstance(off, int) else off
        k(f"s_add_u32 s{d}, s{base}, {o}\ns_addc_u32 s{d+1}, s{base+1}, 0")
    k(f"s_mov_b32 s{d+2}, {hx(size)}\ns_mov_b32 s{d+3}, 0x20000")

def magic(d, n):
    for sh in range(8, 24):
        m = (1 << sh) // d + 1
        if all((x*m) >> sh == x // d for x in range(n)) and m * n < 2**32: return m, sh
    raise ValueError
def vdiv(k, dst, src, d, n):
    m, sh = magic(d, n)
    k(f"v_mul_u32_u24 v{dst}, {hx(m)}, v{src}\nv_lshrrev_b32 v{dst}, {sh}, v{dst}")
def sdiv(k, dst, src, d, n):
    m, sh = magic(d, n)
    k(f"s_mul_i32 s{dst}, s{src}, {m}\ns_lshr_b32 s{dst}, s{dst}, {sh}")
```

```python
from common import *
OOB = 0x40000000

def gen_op(name, WO, XRES, XOUT):
    k = K(name, 256, 256, 102400, vgpr=192)
    L = k.lab
    X, Y, HA, HB, OF, WF, RF = 0, 16, 32, 48, 64, 144, 164
    LN, L16, AX, AY, AH, AS, AR, AO, AOH, t = range(176, 186)
    k(f"""
    s_cmp_ge_u32 s2, 256
    s_cbranch_scc1 {L('end')}
    s_load_dwordx2 s[4:5], s[0:1], 64
    """)
    if XOUT is None: k("s_load_dwordx2 s[28:29], s[0:1], 48")
    k(f"""
    v_lshrrev_b32 v1, 6, v0
    v_and_b32 v{LN}, 63, v0
    v_readfirstlane_b32 s3, v1
    s_and_b32 s6, s2, 1
    s_lshl_b32 s6, s6, 2
    s_bfe_u32 s7, s2, 0x20003
    s_add_u32 s6, s6, s7
    s_bfe_u32 s7, s2, 0x20001
    s_lshl_b32 s7, s7, 3
    s_lshr_b32 s16, s2, 5
    s_add_u32 s7, s7, s16
    s_and_b32 s34, s3, 1
    s_lshr_b32 s35, s3, 1
    s_lshl_b32 s16, s7, 1
    s_add_u32 s16, s16, s34
    s_mul_i32 s17, s6, 102400
    s_add_u32 s17, s17, {hx(WO)}
    s_mul_i32 s36, s16, 40960
    s_add_u32 s18, s36, {hx(OB)}
    s_mul_i32 s19, s35, 10
    s_add_u32 s19, s19, s34
    s_mul_i32 s19, s19, 5120
    s_mul_i32 s21, s35, 20480
    v_lshlrev_b32 v{L16}, 4, v{LN}
    s_waitcnt lgkmcnt(0)
    """)
    srd(k, 8, 4, "s17", 102400)
    srd(k, 12, 4, "s18", 40960)
    for c in range(5):
        k(f"s_mov_b32 m0, s19")
        for i in range(4):
            k(f"buffer_load_dwordx4 v[{OF+16*c+4*i}:{OF+16*c+4*i+3}], v{L16}, s[12:15], s21 offen offset:{i*1024}")
            k(f"buffer_load_dwordx4 v{L16}, s[8:11], s19 offen offset:{i*1024} lds")
        k(f"s_add_u32 s19, s19, 4096\ns_mov_b32 m0, s19\ns_add_u32 s21, s21, 4096")
        k(f"buffer_load_dwordx4 v{L16}, s[8:11], s19 offen lds")
        k(f"s_add_u32 s19, s19, {10240-4096}")
        if c == 0:
            k(f"""
            s_mul_i32 s37, s6, 5
            s_lshl_b32 s38, s35, 1
            s_add_u32 s38, s38, s37
            s_add_u32 s37, s37, 4
            s_add_u32 s20, s36, {hx(XRES)}
            """)
            srd(k, 24, 4, "s20", 40960)
    k(f"""
    s_lshl_b32 s39, s38, 10
    s_lshl_b32 s40, s37, 10
    buffer_load_dwordx4 v[{RF}:{RF+3}], v{L16}, s[24:27], s39 offen
    buffer_load_dwordx4 v[{RF+4}:{RF+7}], v{L16}, s[24:27], s39 offen offset:1024
    buffer_load_dwordx4 v[{RF+8}:{RF+11}], v{L16}, s[24:27], s40 offen
    s_mul_i32 s19, s35, 51200
    v_add_u32 v{AH}, s19, v{L16}
    s_lshl_b32 s21, s35, 10
    v_add_u32 v{AY}, s21, v{AH}
    s_xor_b32 s21, s21, 1024
    v_add_u32 v{AX}, s21, v{AH}
    s_mul_i32 s19, s3, 6144
    v_add_u32 v{AS}, s19, v{L16}
    s_xor_b32 s19, s3, 2
    s_mul_i32 s19, s19, 6144
    v_add_u32 v{AR}, s19, v{L16}
    s_mov_b32 s42, 0x3f80
    s_mov_b32 s43, 0x3f800000
    s_lshl_b32 s41, s35, 30
    """)
    if XOUT is None:
        k(f"""
        s_mov_b32 s30, {2048*1280}
        s_mov_b32 s31, 0x20000
        v_and_b32 v{t}, 31, v{LN}
        v_mul_u32_u24 v{AO}, 1280, v{t}
        v_lshrrev_b32 v{t}, 5, v{LN}
        v_lshl_add_u32 v{AO}, v{t}, 4, v{AO}
        s_lshl_b32 s39, s38, 5
        s_add_u32 s39, s39, s36
        s_lshl_b32 s40, s37, 5
        s_add_u32 s40, s40, s36
        """)
        step = 32
    else:
        k(f"s_add_u32 s20, s36, {hx(XOUT)}")
        srd(k, 28, 4, "s20", 40960)
        k(f"v_mov_b32 v{AO}, v{L16}")
        step = 1024
    k(f"v_add_u32 v{AOH}, s41, v{AO}")
    def rd(p, j):
        a, o = [(AH, 4096), (AX, 0), (AY, 0), (AX, 2048), (AY, 2048)][j]
        return f"ds_read_b128 v[{WF+4*j}:{WF+4*j+3}], v{a} offset:{p*5120 + o}"
    def mf(d, j, ks, first):
        a = f"v[{d}:{d+15}]"
        return f"v_mfma_f32_32x32x16_bf16 {a}, v[{WF+4*j}:{WF+4*j+3}], v[{OF+4*ks}:{OF+4*ks+3}], {0 if first else a}"
    k("s_waitcnt vmcnt(39)\ns_barrier")
    for j in range(5): k(rd(0, j))
    for p in range(10):
        last = p == 9
        if p % 2 == 1 and not last:
            k(f"s_waitcnt vmcnt({48 - 9*((p+1)//2 + 1)}) lgkmcnt(4)\ns_barrier")
        else:
            k("s_waitcnt lgkmcnt(4)")
        k(mf(HA, 0, 2*p, p == 0))
        k(mf(HB, 0, 2*p+1, p == 0))
        if not last: k(rd(p+1, 0))
        for j in range(1, 5):
            k(f"s_waitcnt lgkmcnt({4 - j if last else 4})")
            k(mf(X if j % 2 else Y, j, 2*p + (j-1)//2, p == 0 and j < 3))
            if not last: k(rd(p+1, j))
            if last and j == 3:
                for i in range(4): k(f"v_pk_add_f32 v[{HA+2*i}:{HA+2*i+1}], v[{HA+2*i}:{HA+2*i+1}], v[{HB+8+2*i}:{HB+9+2*i}]")
    for i in range(2): k(f"ds_write_b128 v{AS}, v[{HA+4*i}:{HA+4*i+3}] offset:{4096 + i*1024}")
    k("s_waitcnt vmcnt(0)")
    for i in range(8): k(f"v_dot2_f32_bf16 v{HB+i}, v{RF+8+i//2}, s{42+i%2}, v{HA+i}")
    for i in range(4): k(f"ds_write_b128 v{AS}, v[{X+4*i}:{X+4*i+3}] offset:{i*1024}")
    for i in range(16): k(f"v_dot2_f32_bf16 v{Y+i}, v{RF+i//2}, s{42+i%2}, v{Y+i}")
    k("s_waitcnt lgkmcnt(0)\ns_barrier")
    for i in range(6): k(f"ds_read_b128 v[{OF+4*i}:{OF+4*i+3}], v{AR} offset:{i*1024}")
    for f in range(3):
        own = Y + 8*f if f < 2 else HB
        k(f"s_waitcnt lgkmcnt({4-2*f})")
        for i in range(4): k(f"v_pk_add_f32 v[{own+2*i}:{own+2*i+1}], v[{own+2*i}:{own+2*i+1}], v[{OF+8*f+2*i}:{OF+8*f+2*i+1}]")
        for i in range(4): k(f"v_cvt_pk_bf16_f32 v{WF+4*f+i}, v{own+2*i}, v{own+2*i+1}")
        if f < 2: k(f"buffer_store_dwordx4 v[{WF+4*f}:{WF+4*f+3}], v{AO}, s[28:31], s39 offen offset:{f*step}")
        else: k(f"buffer_store_dwordx4 v[{WF+4*f}:{WF+4*f+3}], v{AOH}, s[28:31], s40 offen")
    k(f"{L('end')}:\ns_endpgm")
    return k
```

```python
from common import *
QSCALE = 20 ** -0.5 * 1.4426950408889634

def gen_prep():
    k = K("prep_kernel", 240, 512, 8*5120 + 1024, vgpr=64)
    L = k.lab
    RED = 8*5120
    k(f"""
    s_cmp_ge_u32 s2, 240
    s_cbranch_scc1 {L('end')}
    s_load_dwordx4 s[4:7], s[0:1], 0
    s_load_dwordx2 s[8:9], s[0:1], 16
    s_load_dwordx4 s[12:15], s[0:1], 32
    s_load_dwordx2 s[10:11], s[0:1], 64
    v_lshrrev_b32 v1, 6, v0
    v_and_b32 v0, 63, v0
    v_readfirstlane_b32 s3, v1
    s_mul_i32 s16, s3, 5120
    s_mul_i32 s17, s3, 5
    v_lshrrev_b32 v2, 5, v0
    s_waitcnt lgkmcnt(0)
    """)
    srd(k, 20, 10, 0, WSEND)
    k(f"""
    s_cmp_ge_u32 s2, 160
    s_cbranch_scc1 {L('xpart')}
    s_and_b32 s18, s2, 7
    s_lshr_b32 s19, s2, 4
    s_lshl_b32 s19, s19, 3
    s_add_u32 s18, s18, s19
    s_lshl_b32 s18, s18, 1
    s_bfe_u32 s19, s2, 0x10003
    s_add_u32 s18, s18, s19
    v_bfe_u32 v3, v0, 4, 1
    v_bfe_u32 v4, v0, 2, 2
    v_and_b32 v5, 3, v0
    v_lshlrev_b32 v6, 9, v2
    v_lshl_add_u32 v6, v4, 6, v6
    v_lshl_add_u32 v6, v3, 5, v6
    v_lshl_add_u32 v6, v5, 3, v6
    v_add_u32 v6, s16, v6
    s_cmp_ge_u32 s18, 120
    s_cbranch_scc1 {L('wo')}
    """)
    def fills():
        n = fills.n = getattr(fills, "n", 0) + 1
        k(f"""
        s_lshl_b32 s40, s2, 3
        s_add_u32 s40, s40, s3
        s_cmp_ge_u32 s40, 1344
        s_cbranch_scc1 {L(f'fdone{n}')}
        s_cmp_ge_u32 s40, 1024
        s_cbranch_scc1 {L(f'fpad{n}')}
        s_lshl_b32 s41, s40, 10
        s_add_u32 s41, s41, {hx(KVP0)}
        v_lshlrev_b32 v60, 4, v0
        v_mov_b32 v56, -1
        v_mov_b32 v57, -1
        v_mov_b32 v58, -1
        v_mov_b32 v59, -1
        buffer_store_dwordx4 v[56:59], v60, s[20:23], s41 offen sc1
        s_branch {L(f'fdone{n}')}
        {L(f'fpad{n}')}:
        s_sub_u32 s41, s40, 1024
        s_lshl_b32 s41, s41, 14
        v_lshrrev_b32 v60, 4, v0
        v_lshlrev_b32 v60, 12, v60
        v_bfe_u32 v61, v0, 3, 1
        v_lshl_add_u32 v60, v61, 9, v60
        v_and_b32 v61, 7, v0
        v_lshl_add_u32 v60, v61, 4, v60
        v_mov_b32 v56, 0x3f803f80
        v_mov_b32 v57, 0x3f803f80
        v_mov_b32 v58, 0x3f803f80
        v_mov_b32 v59, 0x3f803f80
        buffer_store_dwordx4 v[56:59], v60, s[20:23], s41 offen offset:{3*1024+24*16}
        {L(f'fdone{n}')}:
        """)
    def trreads():
        for i in range(5):
            k(f"ds_read_b64_tr_b16 v[{16+4*i}:{17+4*i}], v6 offset:{i*1024}")
            k(f"ds_read_b64_tr_b16 v[{18+4*i}:{19+4*i}], v6 offset:{i*1024+256}")
    k(f"""
    s_cmp_ge_u32 s18, 60
    s_cselect_b32 s24, s12, s6
    s_cselect_b32 s25, s13, s7
    s_cselect_b32 s30, {hx(WB)}, 0
    s_cselect_b32 s31, 60, 0
    s_cselect_b32 s33, {hx(f2u(QSCALE))}, 1.0
    s_mov_b32 s26, {640*3840}
    s_mov_b32 s27, 0x20000
    s_sub_u32 s31, s18, s31
    v_lshrrev_b32 v7, 2, v0
    v_mul_u32_u24 v7, 3840, v7
    v_lshl_add_u32 v7, v5, 4, v7
    s_lshl_b32 s32, s31, 6
    s_mul_i32 s34, s17, {16*3840}
    s_add_u32 s34, s34, s32
    """)
    for i in range(5):
        k(f"s_add_u32 m0, s16, {i*1024}")
        if i: k(f"s_add_u32 s34, s34, {16*3840}")
        k(f"buffer_load_dwordx4 v7, s[24:27], s34 offen lds")
    sdiv(k, 35, 31, 20, 60)
    k(f"""
    s_cmp_eq_u32 s35, 0
    s_cselect_b32 s33, s33, 1.0
    s_mul_i32 s36, s35, 20
    s_sub_u32 s36, s31, s36
    s_lshl_b32 s36, s36, 5
    s_mul_i32 s35, s35, 5
    v_and_b32 v8, 31, v0
    v_add_u32 v8, s36, v8
    """)
    vdiv(k, 9, 8, 20, 640)
    k(f"""
    v_mul_u32_u24 v10, 20, v9
    v_sub_u32 v10, v8, v10
    v_lshrrev_b32 v11, 2, v10
    v_add_u32 v11, s35, v11
    v_lshrrev_b32 v12, 1, v9
    v_mul_u32_u24 v12, {hx(163840)}, v12
    v_lshrrev_b32 v13, 2, v11
    v_lshl_add_u32 v12, v13, 10, v12
    v_and_b32 v13, 3, v11
    v_lshl_add_u32 v12, v13, 7, v12
    v_and_b32 v13, 1, v9
    v_lshl_add_u32 v12, v13, 6, v12
    v_and_b32 v13, 3, v10
    v_lshl_add_u32 v12, v13, 4, v12
    v_lshl_add_u32 v12, v2, 9, v12
    s_lshl_b32 s37, s17, 12
    s_add_u32 s37, s37, s30
    v_mov_b32 v14, 0
    v_mov_b32 v15, 0x3f803f80
    v_and_b32 v8, 31, v0
    v_lshlrev_b32 v9, 5, v8
    s_lshl_b32 s38, s3, 2
    v_add_u32 v10, s38, v9
    s_waitcnt vmcnt(0)
    """)
    trreads()
    k("s_waitcnt lgkmcnt(0)")
    for r in range(16, 36): k(f"v_dot2c_f32_bf16 v14, v{r}, v15")
    k(f"""
    v_mov_b32 v13, v14
    v_permlane32_swap_b32 v13, v14
    v_add_f32 v14, v13, v14
    ds_write_b32 v10, v14 offset:{RED}
    s_waitcnt lgkmcnt(0)
    s_barrier
    ds_read_b128 v[40:43], v9 offset:{RED}
    ds_read_b128 v[44:47], v9 offset:{RED+16}
    s_waitcnt lgkmcnt(0)
    v_add_f32 v40, v40, v41
    v_add_f32 v42, v42, v43
    v_add_f32 v44, v44, v45
    v_add_f32 v46, v46, v47
    v_add_f32 v40, v40, v42
    v_add_f32 v44, v44, v46
    v_add_f32 v40, v40, v44
    v_mul_f32 v40, {hx(f2u(-1.0/640))}, v40
    v_mul_f32 v40, s33, v40
    """)
    for i in range(5):
        for r in range(16+4*i, 20+4*i):
            k(f"""
            v_lshlrev_b32 v41, 16, v{r}
            v_and_b32 v42, 0xffff0000, v{r}
            v_fma_f32 v41, v41, s33, v40
            v_fma_f32 v42, v42, s33, v40
            v_cvt_pk_bf16_f32 v{r}, v41, v42
            """)
        if i: k(f"s_add_u32 s37, s37, 4096")
        k(f"buffer_store_dwordx4 v[{16+4*i}:{19+4*i}], v12, s[20:23], s37 offen")
    k(f"s_branch {L('fill')}")
    k(f"""
    {L('wo')}:
    s_cmp_ge_u32 s18, 140
    s_cselect_b32 s24, s14, s8
    s_cselect_b32 s25, s15, s9
    s_cselect_b32 s30, {hx(WOSZ)}, 0
    s_cselect_b32 s31, 20, 0
    s_add_u32 s30, s30, {hx(WOA)}
    s_mov_b32 s26, {640*1280}
    s_mov_b32 s27, 0x20000
    s_sub_u32 s31, s18, s31
    s_sub_u32 s31, s31, 120
    s_lshl_b32 s32, s31, 6
    v_lshlrev_b32 v7, 3, v3
    v_lshl_add_u32 v7, v2, 2, v7
    v_add_u32 v7, v7, v4
    v_mul_u32_u24 v7, 1280, v7
    v_lshl_add_u32 v7, v5, 4, v7
    v_mul_u32_u24 v8, 40, v2
    v_mad_u32_u24 v8, v3, 20, v8
    v_add3_u32 v8, v8, v4, 16
    v_mul_u32_u24 v8, 1280, v8
    v_lshl_add_u32 v8, v5, 4, v8
    """)
    for i in range(5):
        k(f"""
        s_add_u32 s34, s17, {i}
        s_mul_i32 s35, s34, {20*1280}
        s_sub_u32 s36, s34, 32
        s_mul_i32 s36, s36, {80*1280}
        s_cmp_lt_u32 s34, 32
        s_cselect_b32 s35, s35, s36
        s_cselect_b64 vcc, -1, 0
        s_add_u32 s35, s35, s32
        v_cndmask_b32 v9, v8, v7, vcc
        s_add_u32 m0, s16, {i*1024}
        s_nop 0
        buffer_load_dwordx4 v9, s[24:27], s35 offen lds
        """)
    k(f"""
    s_lshl_b32 s36, s31, 5
    v_and_b32 v8, 31, v0
    v_add_u32 v8, s36, v8
    """)
    vdiv(k, 9, 8, 80, 640)
    k(f"""
    v_mul_u32_u24 v10, 80, v9
    v_sub_u32 v10, v8, v10
    v_mul_u32_u24 v12, {hx(102400)}, v9
    v_lshl_add_u32 v12, v2, 9, v12
    v_and_b32 v13, 3, v10
    v_lshl_add_u32 v12, v13, 4, v12
    v_bfe_u32 v13, v10, 3, 1
    v_lshl_add_u32 v12, v13, 6, v12
    v_bfe_u32 v13, v10, 2, 1
    v_lshl_add_u32 v12, v13, 7, v12
    v_bfe_u32 v13, v10, 4, 1
    v_lshl_add_u32 v12, v13, 8, v12
    v_bfe_u32 v13, v10, 5, 1
    v_lshl_add_u32 v12, v13, 10, v12
    v_bfe_u32 v13, v10, 6, 1
    v_lshl_add_u32 v12, v13, 12, v12
    v_mul_u32_u24 v13, {2048-256}, v13
    v_sub_u32 v13, 2048, v13
    s_waitcnt vmcnt(0)
    """)
    trreads()
    for i in range(5):
        k(f"""
        s_add_u32 s34, s17, {i}
        s_lshr_b32 s35, s34, 1
        s_mul_i32 s35, s35, 5120
        s_add_u32 s35, s35, s30
        s_and_b32 s34, s34, 1
        v_mad_u32_u24 v14, v13, s34, v12
        s_waitcnt lgkmcnt({8-2*i})
        buffer_store_dwordx4 v[{16+4*i}:{19+4*i}], v14, s[20:23], s35 offen
        """)
    k(f"s_branch {L('fill')}")
    k(f"""
    {L('xpart')}:
    s_sub_u32 s18, s2, 160
    s_lshl_b32 s18, s18, 3
    s_add_u32 s18, s18, s3
    """)
    sdiv(k, 19, 18, 10, 640)
    srd(k, 24, 4, 0, 2048*1280)
    k(f"""
    s_mul_i32 s30, s19, 10
    s_sub_u32 s30, s18, s30
    s_mul_i32 s31, s19, {32*1280}
    s_lshl_b32 s32, s30, 7
    s_add_u32 s32, s32, s31
    v_lshrrev_b32 v3, 3, v0
    v_xor_b32 v4, v3, v0
    v_and_b32 v4, 7, v4
    v_mul_u32_u24 v7, 1280, v3
    v_lshl_add_u32 v7, v4, 4, v7
    """)
    for i in range(4):
        k(f"s_add_u32 m0, s16, {i*1024}")
        if i: k(f"s_add_u32 s32, s32, {8*1280}")
        k(f"buffer_load_dwordx4 v7, s[24:27], s32 offen lds")
    k(f"""
    v_and_b32 v8, 31, v0
    v_xor_b32 v9, v8, v2
    v_and_b32 v9, 7, v9
    v_lshlrev_b32 v9, 4, v9
    v_lshl_add_u32 v9, v8, 7, v9
    v_xor_b32 v10, 32, v9
    v_xor_b32 v11, 64, v9
    v_xor_b32 v12, 96, v9
    v_add_u32 v9, s16, v9
    v_add_u32 v10, s16, v10
    v_add_u32 v11, s16, v11
    v_add_u32 v12, s16, v12
    v_lshlrev_b32 v13, 4, v0
    s_lshl_b32 s33, s18, 12
    s_add_u32 s33, s33, {hx(X0)}
    s_waitcnt vmcnt(0)
    """)
    for i in range(4): k(f"ds_read_b128 v[{16+4*i}:{19+4*i}], v{9+i}")
    for i in range(4):
        k(f"s_waitcnt lgkmcnt({3-i})")
        k(f"buffer_store_dwordx4 v[{16+4*i}:{19+4*i}], v13, s[20:23], s33 offen offset:{i*1024}")
    k(f"{L('fill')}:")
    fills()
    k(f"{L('end')}:\ns_endpgm")
    return k
```

```python
from common import *
LOG2E = 1.4426950408889634
OOB = 0x40000000

def gen_qkv(name, layer, W, XIN, KVP=None):
    k = K(name, 256, 256, 65536, vgpr=200)
    L = k.lab
    ACC, WF, XR = 0, 64, 80
    LN, L16, LW, SS, T0 = 144, 145, 146, 147, 148
    TID, HH, TOK = 160, 161, 162
    E0 = 164
    k(f"""
    s_cmp_ge_u32 s2, 256
    s_cbranch_scc1 {L('end')}
    s_load_dwordx2 s[4:5], s[0:1], 64
    v_mov_b32 v{TID}, v0
    v_lshrrev_b32 v1, 6, v0
    v_and_b32 v{LN}, 63, v0
    v_readfirstlane_b32 s3, v1
    s_and_b32 s6, s2, 3
    s_lshl_b32 s6, s6, 2
    s_bfe_u32 s7, s2, 0x20003
    s_add_u32 s6, s6, s7
    s_bfe_u32 s7, s2, 0x10002
    s_lshl_b32 s7, s7, 3
    s_lshr_b32 s16, s2, 5
    s_add_u32 s7, s7, s16
    s_lshl_b32 s16, s7, 2
    s_add_u32 s16, s16, s3
    s_mul_i32 s17, s6, 163840
    s_add_u32 s17, s17, {hx(W)}
    s_mul_i32 s18, s16, 40960
    s_add_u32 s18, s18, {hx(XIN)}
    s_lshl_b32 s19, s3, 12
    v_lshlrev_b32 v{L16}, 4, v{LN}
    v_add_u32 v{LW}, s19, v{L16}
    s_mov_b32 s20, 0
    s_mov_b32 s21, 0
    s_waitcnt lgkmcnt(0)
    """)
    srd(k, 8, 4, "s17", 163840)
    srd(k, 12, 4, "s18", 40960)
    def xload(G, i):
        ks = 4*G + i
        return f"buffer_load_dwordx4 v[{XR+4*(ks%16)}:{XR+4*(ks%16)+3}], v{L16}, s[12:15], s21 offen offset:{i*1024}"
    def wload(G, i):
        return f"buffer_load_dwordx4 v{LW}, s[8:11], s20 offen offset:{i*1024} lds"
    def gsetup(G):
        r = [f"s_add_u32 m0, s19, {(G%4)*16384}"]
        if G: r += [f"s_mov_b32 s20, {G*16384}", f"s_mov_b32 s21, {G*4096}"]
        return r
    for G in range(3):
        for s in gsetup(G): k(s)
        for i in range(4):
            k(xload(G, i)); k(wload(G, i))
    srd(k, 24, 4, 0, WSEND)
    k(f"""
    v_mov_b32 v{SS}, 0
    v_lshrrev_b32 v{HH}, 5, v{LN}
    v_and_b32 v{TOK}, 31, v{LN}
    """)
    t = T0
    if layer == "B":
        AQ, AQT, AK, AKT, AVW, AVR, AVS = E0, E0+1, E0+2, E0+3, E0+4, E0+5, E0+8
        k(f"""
        v_mul_u32_u24 v{t}, {hx(81920)}, v{HH}
        v_lshl_add_u32 v{AQ}, v{TOK}, 4, v{t}
        v_lshl_add_u32 v{AQT}, v{TOK}, 3, v{t}
        v_lshlrev_b32 v{t}, 1, v{t}
        v_lshl_add_u32 v{AK}, v{TOK}, 4, v{t}
        v_lshl_add_u32 v{AKT}, v{TOK}, 3, v{t}
        s_mul_i32 s28, s6, {2*81920}
        s_mul_i32 s29, s16, 1280
        s_add_u32 s28, s28, s29
        s_add_u32 s28, s28, {hx(QB)}
        s_mul_i32 s29, s6, {2*163840}
        s_lshr_b32 s30, s16, 1
        s_mul_i32 s30, s30, 5120
        s_add_u32 s29, s29, s30
        s_add_u32 s29, s29, {hx(KVB)}
        s_and_b32 s33, s16, 1
        s_lshl_b32 s30, s33, 10
        s_add_u32 s30, s30, s29
        s_lshl_b32 s31, s33, 8
        s_add_u32 s31, s31, s29
        s_mul_i32 s32, s33, 1280
        s_add_u32 s32, s32, s29
        v_mul_u32_u24 v{AVW}, 40, v{LN}
        v_add_u32 v{AVW}, s19, v{AVW}
        v_lshrrev_b32 v{t}, 4, v{LN}
        v_and_b32 v{t+1}, 3, v{LN}
        v_lshl_add_u32 v{t}, v{t}, 2, v{t+1}
        v_bfe_u32 v{t+1}, v{LN}, 2, 2
        """)
        for p in range(3):
            k(f"v_add_u32 v{t+2}, {16*p}, v{t}")
            vdiv(k, t+3, t+2, 5, 48)
            k(f"""
            v_mul_u32_u24 v{t+4}, 5, v{t+3}
            v_sub_u32 v{t+4}, v{t+2}, v{t+4}
            v_lshrrev_b32 v{t+5}, 1, v{t+3}
            v_lshl_add_u32 v{t+5}, v{t+5}, 4, v{t+1}
            v_and_b32 v{t+3}, 1, v{t+3}
            v_lshl_add_u32 v{t+5}, v{t+3}, 2, v{t+5}
            v_mul_u32_u24 v{t+5}, 40, v{t+5}
            v_lshl_add_u32 v{t+5}, v{t+4}, 3, v{t+5}
            v_add_u32 v{AVR+p}, s19, v{t+5}
            """)
        k(f"""
        v_mov_b32 v{AVS}, v{L16}
        v_cmp_gt_u32 vcc, 16, v{LN}
        v_add_u32 v{t}, 1024, v{L16}
        v_add_u32 v{t+1}, {hx(163840 - 256)}, v{L16}
        v_cndmask_b32 v{AVS+1}, v{t+1}, v{t}, vcc
        v_cmp_gt_u32 vcc, 32, v{LN}
        v_add_u32 v{t}, {hx(163840 + 768)}, v{L16}
        v_mov_b32 v{t+1}, {hx(OOB)}
        v_cndmask_b32 v{AVS+2}, v{t+1}, v{t}, vcc
        """)
    else:
        KVS, RR = 32768, 57344
        AW, ATA, ATB, APM, APT, AG, ARW, ARM, ART, AOT = range(E0, E0+10)
        k(f"""
        s_lshl_b32 s28, s3, 5
        v_lshl_add_u32 v{t}, v{HH}, 7, v{TOK}
        v_add_u32 v{t}, s28, v{t}
        v_mul_u32_u24 v{AW}, 96, v{t}
        v_bfe_u32 v{t}, v{LN}, 2, 2
        v_lshl_add_u32 v{t}, v{HH}, 3, v{t}
        s_lshl_b32 s28, s3, 7
        v_add_u32 v{t}, s28, v{t}
        v_mul_u32_u24 v{t}, 96, v{t}
        v_bfe_u32 v{t+1}, v{LN}, 4, 1
        v_and_b32 v{t+2}, 1, v{LN}
        v_bfe_u32 v{t+3}, v{LN}, 1, 1
        v_lshl_add_u32 v{t+2}, v{t+2}, 1, v{t+3}
        v_lshl_add_u32 v{t+2}, v{t+1}, 2, v{t+2}
        v_min_u32 v{t+2}, 4, v{t+2}
        v_lshl_add_u32 v{ATA}, v{t+2}, 3, v{t}
        v_and_b32 v{t+2}, 3, v{LN}
        v_lshl_add_u32 v{t+2}, v{t+1}, 2, v{t+2}
        v_min_u32 v{t+2}, 5, v{t+2}
        v_lshl_add_u32 v{ATB}, v{t+2}, 3, v{t}
        v_min_u32 v{t}, 20, v{TOK}
        v_mad_u32_u24 v{t+1}, v{HH}, 21, v{t}
        v_lshlrev_b32 v{ARM}, 4, v{t+1}
        v_lshlrev_b32 v{ART}, 3, v{t+1}
        v_mov_b32 v{t+2}, {hx(OOB)}
        s_mul_i32 s28, s3, 672
        s_mul_i32 s29, s3, 168
        v_add_u32 v{t}, s28, v{ARM}
        v_cmp_gt_u32 vcc, 21, v{TOK}
        v_add_u32 v{t+1}, s29, v{ART}
        v_cndmask_b32 v{APM}, v{t+2}, v{t}, vcc
        v_cmp_gt_u32 vcc, 21, v{LN}
        v_lshlrev_b32 v{ARW}, 3, v{TID}
        v_cndmask_b32 v{APT}, v{t+2}, v{t+1}, vcc
        v_cmp_gt_u32 vcc, 210, v{TID}
        s_lshl_b32 s30, s6, 15
        s_add_u32 s30, s30, {hx(KVP)}
        v_cndmask_b32 v{AG}, v{t+2}, v{ARW}, vcc
        s_lshl_b32 s31, s7, 11
        s_add_u32 s31, s31, s30
        s_and_b32 s32, s6, 1
        s_lshl_b32 s32, s32, 9
        v_cmp_gt_u32 vcc, 32, v{LN}
        v_add_u32 v{t}, s32, v{L16}
        s_mul_i32 s32, s16, 40960
        s_add_u32 s32, s32, {hx(OB)}
        v_cndmask_b32 v{AOT}, v{t+2}, v{t}, vcc
        s_lshr_b32 s33, s6, 1
        s_add_u32 s33, s33, 32
        s_lshl_b32 s33, s33, 10
        s_add_u32 s33, s33, s32
        s_lshl_b32 s34, s6, 11
        s_add_u32 s32, s32, s34
        """)
        for j in range(8): k(f"s_add_u32 s{40+j}, s30, {j*4096}")
    def rd(ks, tt): return f"ds_read_b128 v[{WF+4*tt}:{WF+4*tt+3}], v{L16} offset:{(ks%16)*4096 + tt*1024}"
    k("s_waitcnt vmcnt(16)\ns_barrier")
    for tt in range(4): k(rd(0, tt))
    for s in gsetup(3): k(s)
    k(xload(3, 0)); k(wload(3, 0))
    for ks in range(40):
        G = (ks + 13) // 4; i = (ks + 13) % 4
        x = XR + 4*(ks % 16)
        for tt in range(4):
            lg = 3 if ks < 39 else 3 - tt
            if tt == 0 and ks % 4 == 3 and ks < 39:
                g = (ks + 1) // 4
                k(f"s_waitcnt vmcnt({8*min(2, 9-g)}) lgkmcnt({lg})\ns_barrier")
            else:
                k(f"s_waitcnt lgkmcnt({lg})")
            a = f"v[{ACC+16*tt}:{ACC+16*tt+15}]"
            k(f"v_mfma_f32_32x32x16_bf16 {a}, v[{WF+4*tt}:{WF+4*tt+3}], v[{x}:{x+3}], {a if ks else 0}")
            if ks < 39: k(rd(ks+1, tt))
            k(f"v_dot2c_f32_bf16 v{SS}, v{x+tt}, v{x+tt}")
            if G < 10:
                if tt == 0 and i == 0:
                    for s in gsetup(G): k(s)
                if tt == 1: k(xload(G, i))
                if tt == 2: k(wload(G, i))
    RS = T0 + 8
    k(f"""
    v_mov_b32 v{t}, v{SS}
    v_permlane32_swap_b32 v{t}, v{SS}
    v_add_f32 v{SS}, v{t}, v{SS}
    v_mov_b32 v{t+1}, {hx(f2u(1e-5))}
    v_fmac_f32 v{t+1}, {hx(f2u(1/640))}, v{SS}
    v_mul_f32 v{t}, {hx(f2u(1/640))}, v{ACC+60}
    v_fma_f32 v{t+1}, -v{t}, v{t}, v{t+1}
    v_rsq_f32 v{RS}, v{t+1}
    """)
    P = WF
    def scale_pack(src, dst, n):
        for j in range(n):
            k(f"v_pk_mul_f32 v[{src+2*j}:{src+2*j+1}], v[{src+2*j}:{src+2*j+1}], v[{RS}:{RS+1}] op_sel_hi:[1,0]")
            if j: k(f"v_cvt_pk_bf16_f32 v{dst+j-1}, v{src+2*j-2}, v{src+2*j-1}")
        k(f"v_cvt_pk_bf16_f32 v{dst+n-1}, v{src+2*n-2}, v{src+2*n-1}")
    if layer == "B":
        scale_pack(ACC+40, P+20, 10)
        for j in range(5): k(f"ds_write_b64 v{AVW}, v[{P+20+2*j}:{P+21+2*j}] offset:{8*j}")
        scale_pack(ACC+20, P+10, 10)
        k(f"""
        buffer_store_dwordx4 v[{P+10}:{P+13}], v{AK}, s[24:27], s30 offen
        buffer_store_dwordx4 v[{P+14}:{P+17}], v{AK}, s[24:27], s30 offen offset:512
        buffer_store_dwordx2 v[{P+18}:{P+19}], v{AKT}, s[24:27], s31 offen offset:2048
        s_waitcnt lgkmcnt(0)
        """)
        for p in range(3):
            k(f"ds_read_b64_tr_b16 v[{P+32+4*p}:{P+33+4*p}], v{AVR+p}")
            k(f"ds_read_b64_tr_b16 v[{P+34+4*p}:{P+35+4*p}], v{AVR+p} offset:320")
        scale_pack(ACC, P, 10)
        for p in range(3):
            k(f"s_waitcnt lgkmcnt({4-2*p})")
            k(f"buffer_store_dwordx4 v[{P+32+4*p}:{P+35+4*p}], v{AVS+p}, s[24:27], s32 offen offset:2560")
        k(f"""
        buffer_store_dwordx4 v[{P}:{P+3}], v{AQ}, s[24:27], s28 offen
        buffer_store_dwordx4 v[{P+4}:{P+7}], v{AQ}, s[24:27], s28 offen offset:512
        buffer_store_dwordx2 v[{P+8}:{P+9}], v{AQT}, s[24:27], s28 offen offset:1024
        """)
    else:
        EPS = RS + 4
        TE = 120
        k(f"v_mul_f32 v{RS+2}, {hx(f2u(LOG2E))}, v{RS}\nv_mov_b32 v{EPS}, {hx(f2u(1e-6))}")
        def phi_pack(src, dst, n):
            for j in range(n + 1):
                a = src + 2*j; e = TE + 2*(j % 2)
                if j < n:
                    k(f"""
                    v_pk_mul_f32 v[{e}:{e+1}], v[{a}:{a+1}], v[{RS+2}:{RS+3}] op_sel_hi:[1,0]
                    v_max_f32 v{a}, 0, v{a}
                    v_exp_f32 v{e}, v{e} clamp
                    v_exp_f32 v{e+1}, v{e+1} clamp
                    v_max_f32 v{a+1}, 0, v{a+1}
                    """)
                if j: k(f"v_cvt_pk_bf16_f32 v{dst+j-1}, v{a-2}, v{a-1}")
                if j < n:
                    k(f"""
                    v_pk_fma_f32 v[{a}:{a+1}], v[{a}:{a+1}], v[{RS}:{RS+1}], v[{EPS}:{EPS+1}] op_sel_hi:[1,0,0]
                    v_pk_add_f32 v[{a}:{a+1}], v[{a}:{a+1}], v[{e}:{e+1}]
                    """)
        PK = P + 12
        scale_pack(ACC+40, PK+10, 10)
        k(f"""
        v_mov_b32 v{PK+20}, 0x3f803f80
        v_mov_b32 v{PK+21}, 0x3f803f80
        ds_write_b128 v{AW}, v[{PK+12}:{PK+15}] offset:{KVS+48}
        ds_write_b128 v{AW}, v[{PK+16}:{PK+19}] offset:{KVS+64}
        ds_write_b64 v{AW}, v[{PK+20}:{PK+21}] offset:{KVS+80}
        """)
        phi_pack(ACC+20, PK, 10)
        for j in range(3): k(f"ds_write_b128 v{AW}, v[{PK+4*j}:{PK+4*j+3}] offset:{KVS+16*j}")
        k(f"""
        s_waitcnt lgkmcnt(0)
        s_barrier
        s_cmp_ge_u32 s3, 2
        s_cbranch_scc1 {L('nokv')}
        """)
        FA = 76
        D = 24
        for c in range(8):
            for h in range(2):
                k(f"ds_read_b64_tr_b16 v[{FA+8*c+2*h}:{FA+8*c+2*h+1}], v{ATA} offset:{KVS + c*1536 + h*384}")
                k(f"ds_read_b64_tr_b16 v[{FA+8*c+4+2*h}:{FA+8*c+5+2*h}], v{ATB} offset:{KVS + 40 + c*1536 + h*384}")
            if c >= 3:
                cc = c - 3
                k(f"s_waitcnt lgkmcnt(12)")
                k(f"v_mfma_f32_32x32x16_bf16 v[{D}:{D+15}], v[{FA+8*cc}:{FA+8*cc+3}], v[{FA+8*cc+4}:{FA+8*cc+7}], {f'v[{D}:{D+15}]' if cc else 0}")
        for cc in range(5, 8):
            k(f"s_waitcnt lgkmcnt({4*(7-cc)})")
            k(f"v_mfma_f32_32x32x16_bf16 v[{D}:{D+15}], v[{FA+8*cc}:{FA+8*cc+3}], v[{FA+8*cc+4}:{FA+8*cc+7}], v[{D}:{D+15}]")
        for j in range(6): k(f"v_cvt_pk_bf16_f32 v{44+j}, v{D+2*j}, v{D+2*j+1}")
        for j in range(6): k(f"v_min_u32 v{44+j}, -2, v{44+j}")
        k(f"""
        buffer_store_dwordx4 v[44:47], v{APM}, s[24:27], s31 offen sc1
        buffer_store_dwordx2 v[48:49], v{APT}, s[24:27], s31 offen offset:1344 sc1
        {L('nokv')}:
        """)
        phi_pack(ACC, P, 10)
        GA = 80
        k(f"""
        s_mov_b32 s36, 0x40000
        s_mov_b32 s37, 0x3f80
        s_mov_b32 s38, 0x3f800000
        {L('poll')}:
        """)
        for j in range(16):
            k(f"buffer_load_dwordx2 v[{GA+2*j}:{GA+2*j+1}], v{AG}, s[24:27], s{40+j//2} offen offset:{(j%2)*2048} sc1")
        k(f"s_sub_u32 s36, s36, 1")
        for j in range(16):
            if j % 2 == 0: k(f"s_waitcnt vmcnt({14-j})")
            k(f"v_max3_u32 v{t}, v{GA+2*j}, v{GA+2*j+1}, {f'v{t}' if j else 0}")
        k(f"""
        v_cmp_eq_u32 vcc, -1, v{t}
        s_cmp_eq_u32 s36, 0
        s_cbranch_scc1 {L('got')}
        s_cbranch_vccnz {L('poll')}
        {L('got')}:
        """)
        for j in range(16):
            for q in range(4):
                c = 0 if j == 0 else f"v{t+q}"
                k(f"v_dot2_f32_bf16 v{t+q}, v{GA+2*j+q//2}, s{37+q%2}, {c}")
        for j in range(4): k(f"v_permlane32_swap_b32 v{P+j}, v{P+4+j}")
        k(f"""
        v_cvt_pk_bf16_f32 v{t+4}, v{t}, v{t+1}
        v_cvt_pk_bf16_f32 v{t+5}, v{t+2}, v{t+3}
        ds_write_b64 v{ARW}, v[{t+4}:{t+5}] offset:{RR}
        s_waitcnt lgkmcnt(0)
        s_barrier
        ds_read_b128 v[80:83], v{ARM} offset:{RR}
        ds_read_b128 v[84:87], v{ARM} offset:{RR+672}
        ds_read_b64 v[88:89], v{ART} offset:{RR+1344}
        s_waitcnt lgkmcnt(0)
        v_mfma_f32_32x32x4_2b_bf16 v[0:31], v[88:89], v[{P+8}:{P+9}], 0
        v_mfma_f32_32x32x16_bf16 v[0:15], v[80:83], v[{P}:{P+3}], v[0:15]
        v_mfma_f32_32x32x16_bf16 v[16:31], v[84:87], v[{P+4}:{P+7}], v[16:31]
        """)
        for H in range(2):
            d = 16*H
            k(f"v_add_f32 v{d+12}, v{EPS}, v{d+12}\nv_rcp_f32 v{RS}, v{d+12}")
            scale_pack(d, 40 + 6*H, 6)
            k(f"buffer_store_dwordx4 v[{40+6*H}:{43+6*H}], v{L16}, s[24:27], s32 offen offset:{1024*H}")
        k(f"""
        v_mov_b32 v52, v44
        v_mov_b32 v53, v45
        v_mov_b32 v54, v50
        v_mov_b32 v55, v51
        buffer_store_dwordx4 v[52:55], v{AOT}, s[24:27], s33 offen
        """)
    k(f"{L('end')}:\ns_endpgm")
    return k
```

```python
import sys, os
sys.path.insert(0, os.path.dirname(os.path.abspath(__file__)))
from common import *
from prep import gen_prep
from qkv import gen_qkv
from op import gen_op
from att import gen_att
NAME = "interleave_layers__linear_attn_block__softmax_full_mha__prompt"
def build(verbose=False):
    att = gen_att("att_kernel")
    seq = [gen_prep(),
           gen_qkv("qkva0_kernel", "A", WA, X0, KVP0), gen_op("op0_kernel", WOA, X0, X1),
           gen_qkv("qkvb0_kernel", "B", WB, X1), att, gen_op("op1_kernel", WOB, X1, X2),
           gen_qkv("qkva1_kernel", "A", WA, X2, KVP1), gen_op("op2_kernel", WOA, X2, X3),
           gen_qkv("qkvb1_kernel", "B", WB, X3), att, gen_op(NAME + "_kernel", WOB, X3, None)]
    return emit(seq, verbose)
def emit(seq, verbose=False):
    ref = open(f"cdna_kernels/{NAME}.s.ref").read().split("\n")
    head = [l for l in ref if l.startswith(";") and "@launch" not in l]
    out = head[:]
    for k in seq: out.append(f"; @launch kernel={k.name} grid=({k.grid},1,1) block=({k.block},1,1) lds={k.lds}")
    out += ['.amdgcn_target "amdgcn-amd-amdhsa--gfx950"', ".text"]
    uniq = []
    for k in seq:
        if k not in uniq: uniq.append(k)
    for k in uniq: out.append(k.text(verbose))
    out += ['.section .rodata,"a"']
    for k in uniq: out += [".p2align 6", k.desc()]
    return "\n".join(out)
if __name__ == "__main__":
    txt = build("-v" in sys.argv)
    dst = f"cdna_kernels/{NAME}.s"
    for a in sys.argv[1:]:
        if a.endswith(".s"): dst = a
    open(dst, "w").write(txt)
    print(dst, len(txt))
```

```python
import re

def vr(a, n=1):
    return f"v{a}" if n == 1 else f"v[{a}:{a+n-1}]"
def sr(a, n=1):
    return f"s{a}" if n == 1 else f"s[{a}:{a+n-1}]"

_reg = re.compile(r"^(-|\|)?([vsa])(?:(\d+)|\[(\d+):(\d+)\])\|?$")
def regs_of(op):
    op = op.strip()
    if op in ("vcc",): return {("s", 106), ("s", 107)}
    if op == "vcc_lo": return {("s", 106)}
    if op == "vcc_hi": return {("s", 107)}
    if op == "exec": return {("s", 126), ("s", 127)}
    if op == "exec_lo": return {("s", 126)}
    if op == "exec_hi": return {("s", 127)}
    if op == "m0": return {("s", 124)}
    m = _reg.match(op)
    if not m: return set()
    k = m.group(2)
    if m.group(3) is not None: return {(k, int(m.group(3)))}
    return {(k, i) for i in range(int(m.group(4)), int(m.group(5)) + 1)}

TRANS = ("v_exp_f32", "v_log_f32", "v_rcp_f32", "v_rsq_f32", "v_sqrt_f32")
PASSES = {"v_mfma_f32_32x32x16_bf16": 8, "v_mfma_f32_16x16x32_bf16": 4,
          "v_mfma_f32_32x32x4_2b_bf16": 16, "v_mfma_f32_32x32x8_bf16": 8,
          "v_mfma_f32_32x32x4_2b_bf16_1k": 16, "v_mfma_f32_32x32x8_bf16_1k": 8}

class Ins:
    def __init__(self, text):
        self.text = text
        t = text.split(";")[0].strip()
        self.label = t[:-1] if t.endswith(":") else None
        self.op = None; self.dst = set(); self.src = set(); self.states = 0
        self.kind = None; self.target = None
        if self.label or not t or t.startswith("."): return
        parts = t.split(None, 1)
        op = parts[0]; self.op = op
        rest = parts[1] if len(parts) > 1 else ""
        ops = [x.strip() for x in re.split(r",(?![^\[]*\])", rest)] if rest else []
        mods = ""
        if ops:
            sp = ops[-1].split(None, 1)
            ops[-1] = sp[0]
            if len(sp) > 1: mods = sp[1]
        self.ops = ops; self.mods = mods
        self.states = 1
        base = op.replace("_e32", "").replace("_e64", "")
        self.base = base
        R = [regs_of(o) for o in ops]
        allr = lambda xs: set().union(*xs) if xs else set()
        if op == "s_nop":
            self.kind = "nop"; self.states = int(ops[0]) + 1
        elif op.startswith("s_cbranch") or op == "s_branch":
            self.kind = "branch"; self.target = ops[0]
        elif op == "s_endpgm":
            self.kind = "end"
        elif op.startswith("v_mfma"):
            self.kind = "mfma"; self.dst = R[0]; self.ab = R[1] | R[2]; self.c = R[3]
            self.src = self.ab | self.c; self.passes = PASSES[op]
        elif op.startswith("v_"):
            self.kind = "valu"
            if base.startswith("v_permlane") and "swap" in base:
                self.dst = R[0] | R[1]; self.src = R[0] | R[1]
            elif base.startswith("v_cmp"):
                self.dst = R[0]; self.src = allr(R[1:])
            elif base in ("v_add_co_u32", "v_sub_co_u32"):
                self.dst = R[0] | R[1]; self.src = allr(R[2:])
            elif base in ("v_addc_co_u32",):
                self.dst = R[0] | R[1]; self.src = allr(R[2:])
            else:
                self.dst = R[0]; self.src = allr(R[1:])
                if base in ("v_fmac_f32", "v_dot2c_f32_bf16", "v_writelane_b32"): self.src |= R[0]
                if base == "v_cndmask_b32" and len(ops) == 3: self.src |= regs_of("vcc")
        elif op.startswith("buffer_") or op.startswith("global_"):
            self.kind = "vmem"
            self.lds = " lds" in (" " + mods)
            if "load" in op and not self.lds:
                self.dst = R[0]; self.src = allr(R[1:])
            else:
                self.src = allr(R)
            self.wide_store = ("store" in op) and (op.endswith("x4") or op.endswith("x3"))
            self.data = R[0] if "store" in op else set()
        elif op.startswith("ds_"):
            self.kind = "ds"
            if "read" in op or "permute" in op or "swizzle" in op or "rtn" in op:
                self.dst = R[0]; self.src = allr(R[1:])
            else:
                self.src = allr(R)
        elif op.startswith("s_"):
            self.kind = "salu"
            if op.startswith("s_cmp") or op in ("s_waitcnt", "s_barrier", "s_setprio", "s_sleep", "s_bitcmp1_b32", "s_bitcmp0_b32"):
                self.src = allr(R)
            else:
                self.dst = R[0] if R else set(); self.src = allr(R[1:])
                if "saveexec" in op: self.dst = self.dst | regs_of("exec")
        else:
            raise ValueError("unknown instruction: " + text)

def V(s): return {r for r in s if r[0] in "va"}
def S(s): return {r for r in s if r[0] == "s"}

def need(p, c):
    n = 0
    if p.kind == "valu":
        pd = V(p.dst); ps = S(p.dst)
        if c.kind == "mfma" and pd & c.src: n = max(n, 2)
        if c.kind == "valu":
            if p.base in TRANS and c.base not in TRANS and pd & c.src: n = max(n, 1)
            if ps & c.src: n = max(n, 4 if c.base in ("v_readlane_b32", "v_writelane_b32") else 2)
            if c.base in ("v_readfirstlane_b32", "v_readlane_b32") and pd & c.src: n = max(n, 1)
            if (c.base.startswith("v_permlane") or "dpp" in c.op or "row_" in c.mods or "quad_perm" in c.mods) and pd & c.src: n = max(n, 2)
            if ("sdwa" in p.op or ("op_sel" in p.mods and not p.base.startswith("v_pk_"))) and pd & (c.src | c.dst): n = max(n, 1)
        if p.base.startswith("v_dot"):
            if c.kind in ("valu", "vmem", "ds", "mfma") and pd & (c.src | c.dst):
                same = c.kind == "valu" and c.base == p.base and not (pd & (regs_of(c.ops[1]) | regs_of(c.ops[2])))
                if not same: n = max(n, 3)
        if c.kind == "vmem" and ps & c.src: n = max(n, 5)
    if p.kind == "mfma":
        if c.kind == "mfma":
            if p.dst & c.ab: n = max(n, p.passes + 4)
            if p.dst & c.c:
                if not (p.dst == c.c and p.op == c.op): n = max(n, p.passes + 2)
            elif p.dst & c.dst: n = max(n, p.passes + 2)
        elif c.kind in ("valu", "vmem", "ds"):
            if p.dst & (c.src | c.dst): n = max(n, p.passes + 4)
            if c.kind == "valu" and V(p.c) & c.dst: n = max(n, p.passes - 1)
    if p.kind == "salu" and ("s", 124) in p.dst and c.kind == "vmem" and c.lds: n = max(n, 1)
    if p.kind == "vmem" and p.wide_store and p.data & c.dst:
        n = max(n, 2 if c.kind == "valu" else 1)
    return n

def pad(lines, verbose=False):
    ins = [Ins(l) for l in lines]
    total = 0; start = 0
    while True:
        labels = {x.label: i for i, x in enumerate(ins) if x.label}
        br = {}
        for i, x in enumerate(ins):
            if x.kind == "branch": br.setdefault(x.target, []).append(i)
        fix = None
        for i in range(start, len(ins)):
            c = ins[i]
            if c.kind in (None, "nop", "branch", "end"): continue
            worst = 0
            stack = [(i - 1, 0)]; seen = set()
            while stack:
                j, d = stack.pop()
                while j >= 0 and d < 21:
                    if (j, d) in seen: break
                    seen.add((j, d))
                    p = ins[j]
                    if p.label:
                        for b in br.get(p.label, []): stack.append((b, d))
                        if j > 0 and (ins[j-1].kind == "end" or ins[j-1].op == "s_branch"): break
                    elif p.kind == "end": break
                    elif p.kind is not None:
                        k = need(p, c)
                        if k - d > worst: worst = k - d; why = p.text
                        d += p.states
                    j -= 1
            if worst > 0:
                fix = (i, worst, why); break
        if not fix: break
        i, w, why = fix
        if verbose: print(f"pad {w} before [{ins[i].text.strip()}] after [{why.strip()}]")
        total += w
        new = []
        while w > 0:
            k = min(w, 16); new.append(Ins(f"    s_nop {k-1}")); w -= k
        ins[i:i] = new; start = i
    return [x.text for x in ins], total

import subprocess, tempfile, os
def sizes(lines):
    src = '.amdgcn_target "amdgcn-amd-amdhsa--gfx950"\n.text\n' + "\n".join(lines) + "\n"
    r = subprocess.run(["llvm-mc", "-triple=amdgcn-amd-amdhsa", "-mcpu=gfx950", "-show-encoding"],
                       input=src, capture_output=True, text=True)
    assert r.returncode == 0, r.stderr[:500]
    enc = [l.split("encoding: [")[1].count(",") + 1 for l in r.stdout.split("\n") if "encoding: [" in l]
    out = []; j = 0
    for l in lines:
        if Ins(l).op is None: out.append(0)
        else: out.append(enc[j]); j += 1
    assert j == len(enc)
    return out
NO64 = ("v_readfirstlane", "v_dot2c", "v_permlane", "v_fmac", "v_cndmask", "v_cmp")
def align8(lines):
    sz = sizes(lines); off = 0; cand = None; miss = 0
    lines = list(lines)
    for i, l in enumerate(lines):
        x = Ins(l)
        if l.strip().startswith(".p2align"): off = 0; cand = None; continue
        if sz[i] == 4:
            if x.kind == "valu" and not x.op.startswith(NO64) and not x.op.endswith("_e32"): cand = i
            off += 4
        elif sz[i] >= 8:
            if off % 8:
                if cand is not None:
                    lines[cand] = lines[cand].replace(Ins(lines[cand]).op, Ins(lines[cand]).op + "_e64", 1); off += 4
                else: miss += 1
            off += sz[i]; cand = None
    return lines, miss

class K:
    def __init__(self, name, grid, block, lds, vgpr, sgpr=96, agpr=0):
        self.name = name; self.grid = grid; self.block = block; self.lds = lds
        self.vgpr = vgpr; self.sgpr = sgpr; self.agpr = agpr
        self.L = []; self.align = True
        self.entries = []
    def __call__(self, s):
        for l in s.strip("\n").split("\n"):
            l = l.strip()
            if not l: continue
            self.L.append(l if l.endswith(":") else "    " + l)
    PROF = False
    def stamp(self, j):
        if K.PROF: self(f"s_memrealtime s[{64+4*j}:{65+4*j}]\ns_memtime s[{66+4*j}:{67+4*j}]")
    def prof_end(self, wave, j, nw=8):
        if not K.PROF: return
        self("s_waitcnt vmcnt(0)"); self.stamp(j)
        self(f"""
        s_load_dwordx4 s[48:51], s[0:1], 56
        s_mov_b64 exec, -1
        v_mov_b32 v0, 0
        s_waitcnt lgkmcnt(0)
        s_bfe_u32 s56, s48, 0x60009
        s_lshl_b32 s56, s56, 17
        s_add_u32 s56, s56, 0x3000000
        s_add_u32 s52, s50, s56
        s_addc_u32 s53, s51, 0
        s_mov_b32 s54, 0x20000
        s_mov_b32 s55, 0x20000
        s_lshl_b32 s57, s2, 3
        s_add_u32 s57, s57, s{wave}
        s_lshl_b32 s57, s57, 6
        """)
        for i in range(2*(j+1)): self(f"v_writelane_b32 v0, s{64+2*i}, {i}")
        self("""
        v_mbcnt_lo_u32_b32 v1, -1, 0
        v_lshlrev_b32 v1, 2, v1
        s_mov_b64 exec, 0xffff
        buffer_store_dword v0, v1, s[52:55], s57 offen
        """)
    def lab(self, n): return f"L_{self.name}_{n}"
    def text(self, verbose=False):
        body, n = pad(self.L, verbose)
        if self.align:
            body, miss = align8(body)
            if verbose: print(self.name, "misaligned left:", miss)
        hi = 0
        for l in body:
            x = Ins(l)
            for r in (x.dst | x.src):
                if r[0] == "v": hi = max(hi, r[1])
        assert hi < self.vgpr, (self.name, hi, self.vgpr)
        head = lambda n: f".globl {n}\n.p2align 8\n.type {n},@function\n{n}:\n"
        if not self.entries: return head(self.name) + "\n".join(body) + "\n"
        out = ""
        sets = lambda ps: "".join(f"    s_mov_b32 s{r}, 0x{v & 0xffffffff:x}\n" for r, v in ps)
        n, ps = self.entries[0]
        out += head(n) + sets(ps) + f".p2align 3\n{self.lab('body')}:\n" + "\n".join(body) + "\n"
        for n, ps in self.entries[1:]:
            out += head(n) + sets(ps) + f"    s_branch {self.lab('body')}\n"
        return out
    def entry(self, name, **ps):
        self.entries.append((name, [(self.params[a], b) for a, b in ps.items()]))
        assert set(ps) == set(self.params)
        return (self, name)
    def descs(self):
        return "".join(".p2align 6\n" + self.desc(n) for n in ([e[0] for e in self.entries] or [self.name]))
    def desc(self, name):
        acc = (self.vgpr + 3) // 4 * 4
        return f""".amdhsa_kernel {name}
  .amdhsa_next_free_vgpr {acc + self.agpr}
  .amdhsa_next_free_sgpr {self.sgpr}
  .amdhsa_accum_offset {acc}
  .amdhsa_group_segment_fixed_size 0
  .amdhsa_kernarg_size 72
  .amdhsa_user_sgpr_count 2
  .amdhsa_user_sgpr_kernarg_segment_ptr 1
  .amdhsa_system_sgpr_workgroup_id_x 1
.end_amdhsa_kernel
"""
```

```python
from common import *
OOB = 0x40000000

def gen_att(name, opt=(), D=3, POS=(0, 5, 15, 24, 30, 36, 42), NS=3):
    k = K(name, 256, 256, 20480*NS, vgpr=216)
    k.params = dict(QS=60, OUT=61)
    L = k.lab
    SA, SB, PA, PB, OA, OBR, MA, MB = 0, 32, 64, 80, 96, 112, 128, 144
    K0, K1, K4, VV, QA, QA4, QBR, QB4 = 160, 164, 168, 170, 186, 190, 192, 196
    LN, L16, L16B, L8, LV, AK, AK4, AV, AOT, _, t = range(198, 209)
    GS = 20480
    k.stamp(0)
    k(f"""
    s_cmp_ge_u32 s2, 256
    s_cbranch_scc1 {L('end')}
    s_load_dwordx2 s[4:5], s[0:1], 64
    v_lshrrev_b32 v1, 6, v0
    v_and_b32 v{LN}, 63, v0
    v_readfirstlane_b32 s3, v1
    s_and_b32 s6, s2, 3
    s_lshl_b32 s6, s6, 3
    s_and_b32 s7, s2, 4
    s_add_u32 s6, s6, s7
    s_bfe_u32 s7, s2, 0x20003
    s_add_u32 s6, s6, s7
    s_lshr_b32 s7, s2, 5
    s_lshl_b32 s16, s7, 2
    s_add_u32 s16, s16, s3
    s_lshl_b32 s16, s16, 1
    s_mul_i32 s17, s6, 163840
    s_add_u32 s17, s17, s60
    s_add_u32 s17, s17, {hx(QSZ)}
    s_mul_i32 s18, s6, 81920
    s_mul_i32 s19, s16, 1280
    s_add_u32 s18, s18, s19
    s_add_u32 s18, s18, s60
    s_mul_i32 s19, s3, 5120
    v_lshlrev_b32 v{L16}, 4, v{LN}
    v_add_u32 v{L16B}, 4096, v{L16}
    v_and_b32 v{t}, 31, v{LN}
    v_lshlrev_b32 v{t+1}, 3, v{t}
    s_mov_b32 s20, s19
    s_mov_b32 m0, s19
    s_waitcnt lgkmcnt(0)
    """)
    srd(k, 8, 4, "s17", 163840)
    srd(k, 12, 4, "s18", 2560)
    def dma(i):
        if i < 4: return f"buffer_load_dwordx4 v{L16}, s[8:11], s20 offen offset:{i*1024} lds"
        return f"buffer_load_dwordx4 v{L16B}, s[8:11], s20 offen lds"
    for i in range(3): k(dma(i))
    k(f"""
    buffer_load_dwordx4 v[{QA}:{QA+3}], v{L16}, s[12:15], 0 offen
    buffer_load_dwordx2 v[{QA4}:{QA4+1}], v{t+1}, s[12:15], 0 offen offset:1024
    buffer_load_dwordx4 v[{QBR}:{QBR+3}], v{L16}, s[12:15], 0 offen offset:1280
    buffer_load_dwordx2 v[{QB4}:{QB4+1}], v{t+1}, s[12:15], 0 offen offset:2304
    """)
    k(dma(3)); k("s_add_u32 m0, m0, 4096"); k(dma(4))
    for g in range(1, NS-1):
        k(f"s_add_u32 s20, s20, {GS}\ns_mov_b32 m0, s20")
        for i in range(4): k(dma(i))
        k("s_add_u32 m0, m0, 4096"); k(dma(4))
    k(f"""
    s_add_u32 s20, s20, {GS}
    s_add_u32 s23, s19, {(7+NS)*GS}
    s_mov_b32 s46, s20
    s_add_u32 s47, s19, {NS*GS}
    s_mov_b32 s21, {GS}
    s_mov_b32 s44, 0xfffff
    s_mov_b32 s45, 0xfffff
    v_lshlrev_b32 v{L8}, 3, v{LN}
    v_lshrrev_b32 v{t+2}, 5, v{LN}
    v_mad_u32_u24 v{LV}, v{t+2}, 20, v{t}
    v_lshlrev_b32 v{LV}, 4, v{LV}
    v_mov_b32 v{AK}, v{L16}
    v_mov_b32 v{AK4}, v{L8}
    v_mov_b32 v{AV}, v{LV}
    s_mul_i32 s28, s16, 40960
    s_add_u32 s28, s28, s61
    """)
    srd(k, 24, 4, "s28", 2*40960)
    k(f"""
    s_lshl_b32 s29, s6, 10
    s_lshr_b32 s30, s6, 2
    s_add_u32 s30, s30, 32
    s_lshl_b32 s30, s30, 10
    s_bfe_u32 s31, s6, 0x10001
    s_lshl_b32 s31, s31, 9
    s_add_u32 s30, s30, s31
    s_and_b32 s31, s6, 1
    s_lshl_b32 s31, s31, 3
    s_add_u32 s30, s30, s31
    s_add_u32 s32, s29, 40960
    s_add_u32 s33, s30, 40960
    v_lshl_add_u32 v{AOT}, v{t+2}, 30, v{L16}
    """)
    if "allones" in opt:
        for r in range(16): k(f"v_mov_b32 v{VV+r}, 0x3f803f80")
    else:
        k(f"v_and_b32 v{t+3}, 27, v{LN}\nv_cmp_eq_u32 vcc, 24, v{t+3}\nv_mov_b32 v{t+3}, 0x3f803f80\nv_cndmask_b32 v{VV}, 0, v{t+3}, vcc\nv_mov_b32 v{VV+1}, v{VV}")
        for r in range(2, 16, 2): k(f"v_mov_b64 v[{VV+r}:{VV+r+1}], v[{VV}:{VV+1}]")
    for r in range(PB, PB+48, 2): k(f"v_mov_b64 v[{r}:{r+1}], 0")
    def qk(S, Q, Q4, C):
        c = (lambda: 0) if C is None else (lambda: f"v[{C}:{C+15}]")
        return [f"v_mfma_f32_32x32x16_bf16 v[{S}:{S+15}], v[{K0}:{K0+3}], v[{Q}:{Q+3}], {c()}",
                f"v_mfma_f32_32x32x16_bf16 v[{S+16}:{S+31}], v[{K1}:{K1+3}], v[{Q}:{Q+3}], {c()}",
                f"v_mfma_f32_32x32x4_2b_bf16 v[{S}:{S+31}], v[{K4}:{K4+1}], v[{Q4}:{Q4+1}], v[{S}:{S+31}]"]
    def pv(O, P, m):
        return f"v_mfma_f32_32x32x16_bf16 v[{O}:{O+15}], v[{VV+4*m}:{VV+4*m+3}], v[{P+4*m}:{P+4*m+3}], v[{O}:{O+15}]"
    def kread(o):
        return [f"ds_read_b128 v[{K0}:{K0+3}], v{AK} offset:{o}",
                f"ds_read_b128 v[{K1}:{K1+3}], v{AK} offset:{o+1024}",
                f"ds_read_b64 v[{K4}:{K4+1}], v{AK4} offset:{o+2048}"]
    def vread(o):
        return (["s_andn2_b64 exec, s[44:45], 0x40000000"]
                + [f"ds_read_b128 v[{VV+4*m}:{VV+4*m+3}], v{AV} offset:{o+2560+640*m}" for m in range(4)]
                + ["s_mov_b64 exec, -1"])
    def maxchain(S, d, init):
        for j in range(16):
            if j == 0 and init: k(f"v_max_f32 v{d}, v{S}, v{S+1}")
            else: k(f"v_max3_f32 v{d}, v{S+2*j}, v{S+2*j+1}, v{d}")
    def setm(d, M, bias):
        k(f"""
        v_mov_b32 v{d+1}, v{d}
        v_permlane32_swap_b32 v{d+1}, v{d}
        v_max_f32 v{d}, v{d}, v{d+1}
        v_sub_f32 v{M}, {bias}, v{d}
        v_sub_f32 v{M+1}, {bias}, v{d}
        """)
        for r in range(M+2, M+16, 2): k(f"v_mov_b64 v[{r}:{r+1}], v[{M}:{M+1}]")
    def valu_seq(S, P):
        e = lambda i: f"v_exp_f32 v{S+i}, v{S+i}"
        c = lambda j: f"v_cvt_pk_bf16_f32 v{P+j}, v{S+2*j}, v{S+2*j+1}"
        seq = [e(0), e(1)]
        for j in range(14): seq += [e(2*j+2), c(j), e(2*j+3)]
        return seq + [e(30), e(31), c(14), c(15)]
    POS = list(POS)
    cv = lambda S, P, j: f"v_cvt_pk_bf16_f32 v{P+j}, v{S+2*j}, v{S+2*j+1}"
    NC = [j for j in range(16) if 2*j+1+D > 31]
    def rot_seq(S, P, S2, P2):
        seq = []
        for i in range(32):
            seq.append(f"v_exp_f32 v{S+i}, v{S+i}")
            j2 = i - 1 - D
            if j2 % 2 == 0:
                j = j2 // 2
                seq.append(cv(S, P, j) if j >= 0 else cv(S2, P2, 16 + j))
        return seq
    def phase(S, P, mfs, after, before={}):
        seq = rot_seq(S, P, SA + SB - S, PA + PB - P)
        assert all(f"v{SA+SB-S+31}" not in x for x in seq[POS[1]:])
        for i, x in enumerate(seq):
            if i in POS:
                j = POS.index(i)
                for y in before.get(j, []): k(y)
                if not (("noqk4" in opt and j == 2) or ("nopv" in opt and j >= 3)): k(mfs[j])
                for y in after.get(j, []): k(y)
            k(x)
    k(f"s_waitcnt vmcnt({2+5*(NS-2)})\ns_barrier")
    k.stamp(1)
    for x in kread(0): k(x)
    k("s_waitcnt lgkmcnt(0)")
    qa, qb = qk(SA, QA, QA4, None), qk(SB, QBR, QB4, None)
    for x in (qa[0], qa[1], qb[0], qb[1], qa[2], qb[2]): k(x)
    maxchain(SA, t, True); setm(t, MA, hx(f2u(-32.0)))
    qa = qk(SA, QA, QA4, MA)
    k(qa[0]); k(qa[1])
    maxchain(SB, t+2, True)
    k(qa[2])
    setm(t+2, MB, hx(f2u(-32.0)))
    for j in NC: k(f"v_mov_b64 v[{SB+2*j}:{SB+2*j+1}], 0")
    k(f"s_waitcnt vmcnt({5*(NS-2)})\ns_barrier\ns_nop 1")
    k.stamp(2)
    k(f".p2align 6\n{L('loop')}:")
    for j in range(4):
        kr = kread((j+1) % 4 * 5120)
        aft = {0: [kr[0]], 1: [kr[1]], 2: [kr[2]], 5: ["s_waitcnt lgkmcnt(0)"], 6: vread(j*5120)}
        if j == 0:
            aft[3] = [f"s_add_u32 s22, s21, {GS}"]
        if j == 3:
            aft[3] = [dma(0)]; aft[4] = [dma(1)]
        phase(SA, PA, qk(SB, QBR, QB4, MB) + [pv(OBR, PB, m) for m in range(4)], aft)
        aft = {}; bef = {3: ["s_waitcnt lgkmcnt(0)"]}
        if j == 0: aft[0] = [f"s_cmp_eq_u32 s22, {NS*GS}"]; aft[1] = ["s_cselect_b32 s22, 0, s22"]
        if j == 1:
            aft[0] = ["s_mov_b32 m0, s46"]; aft[1] = [f"s_add_u32 s46, s46, {GS}"]
            aft[4] = ["s_cmp_eq_u32 s46, s47"]; aft[5] = ["s_cselect_b32 s46, s19, s46"]
        if j == 2:
            aft[3] = [f"v_add_u32 v{AK}, s21, v{L16}"]; aft[4] = [f"v_add_u32 v{AK4}, s21, v{L8}"]
            aft[5] = [f"s_waitcnt vmcnt({5*(NS-3)})"]; aft[6] = ["s_barrier"]
        if j == 3:
            aft[0] = [dma(2)]; aft[1] = [dma(3)]
            aft[2] = [f"v_add_u32 v{AV}, s21, v{LV}"]
            aft[3] = ["s_add_u32 m0, m0, 4096"]; aft[4] = ["s_and_b32 s21, s22, 0xffffff", dma(4)]
            aft[5] = [f"s_add_u32 s20, s20, {GS}"]; aft[6] = ["s_cmp_lg_u32 s20, s23"]
        phase(SB, PB, qk(SA, QA, QA4, MA) + [pv(OA, PA, m) for m in range(4)], aft, bef)
    i0 = k.L.index(L("loop") + ":") + 1
    for o in opt:
        if o.startswith("-"): k.L[i0:] = [x for x in k.L[i0:] if o[1:] not in x]
    k(f"s_cbranch_scc1 {L('loop')}")
    for m in range(4):
        k(pv(OBR, PB, m))
        if m == 0:
            for j in NC: k(cv(SB, PB, j))
    k("s_waitcnt vmcnt(0)")
    k.stamp(3)
    BIG = hx(f2u(2.0**64))
    k(f"""
    v_cmp_ngt_f32 vcc, {BIG}, v{OA+12}
    s_cbranch_vccnz {L('slow')}
    v_cmp_ngt_f32 vcc, {BIG}, v{OBR+12}
    s_cbranch_vccnz {L('slow')}
    {L('fin')}:
    """)
    for O, P, s0, s1 in ((OA, PA, 29, 30), (OBR, PB, 32, 33)):
        k(f"v_rcp_f32 v{t}, v{O+12}")
        for j in range(6): k(f"v_pk_mul_f32 v[{O+2*j}:{O+2*j+1}], v[{O+2*j}:{O+2*j+1}], v[{t}:{t+1}] op_sel_hi:[1,0]")
        for j in range(6): k(f"v_cvt_pk_bf16_f32 v{P+j}, v{O+2*j}, v{O+2*j+1}")
        k(f"buffer_store_dwordx4 v[{P}:{P+3}], v{L16}, s[24:27], s{s0} offen")
        k(f"buffer_store_dwordx2 v[{P+4}:{P+5}], v{AOT}, s[24:27], s{s1} offen")
    k.stamp(4)
    k.prof_end(3, 5)
    k(f"{L('end')}:\ns_endpgm")
    def gk():
        k(f"""
        buffer_load_dwordx4 v[{K0}:{K0+3}], v{L16}, s[8:11], s20 offen
        buffer_load_dwordx4 v[{K1}:{K1+3}], v{L16}, s[8:11], s20 offen offset:1024
        buffer_load_dwordx2 v[{K4}:{K4+1}], v{L8}, s[8:11], s20 offen offset:2048
        """)
    k(f"""
    {L('slow')}:
    s_waitcnt vmcnt(0) lgkmcnt(0)
    s_mov_b32 s20, 0
    v_mov_b32 v{t}, 0xff800000
    v_mov_b32 v{t+2}, 0xff800000
    {L('slow1')}:
    """)
    gk()
    k("s_waitcnt vmcnt(0)")
    for x in qk(SA, QA, QA4, None) + qk(SB, QBR, QB4, None): k(x)
    maxchain(SA, t, False); maxchain(SB, t+2, False)
    k(f"""
    s_add_u32 s20, s20, 5120
    s_cmp_lg_u32 s20, 163840
    s_cbranch_scc1 {L('slow1')}
    s_mov_b32 s20, 0
    v_add_u32 v{AV}, 2560, v{LV}
    """)
    setm(t, MA, 0); setm(t+2, MB, 0)
    for r in range(OA, OA+32, 2): k(f"v_mov_b64 v[{r}:{r+1}], 0")
    k(f"{L('slow2')}:")
    gk()
    k("s_mov_b64 exec, s[44:45]")
    for m in range(4): k(f"buffer_load_dwordx4 v[{VV+4*m}:{VV+4*m+3}], v{AV}, s[8:11], s20 offen offset:{640*m}")
    k("s_mov_b64 exec, -1\ns_waitcnt vmcnt(0)")
    for x in qk(SA, QA, QA4, MA) + qk(SB, QBR, QB4, MB): k(x)
    for x in valu_seq(SA, PA) + valu_seq(SB, PB): k(x)
    for m in range(4): k(pv(OA, PA, m)); k(pv(OBR, PB, m))
    k(f"""
    s_add_u32 s20, s20, 5120
    s_cmp_lg_u32 s20, 163840
    s_cbranch_scc1 {L('slow2')}
    s_nop 15
    s_branch {L('fin')}
    """)
    return k
```

```python
from asmlib import *
import struct
def f2u(x): return struct.unpack("<I", struct.pack("<f", x))[0]
def hx(x): return f"0x{x & 0xffffffff:x}"

WSZ  = 16*40*4096
WOSZ = 8*20*5120
XT   = 42*1024
XSZ  = 64*XT
OSZ  = 64*40*1024
QSZ  = 32*64*1280
KVSZ = 32*32*5120
KVPSZ = 256*2048
WA = 0
WB = WA + WSZ
WOA = WB + WSZ
WOB = WOA + WOSZ
KVP0 = WOB + WOSZ
KVP1 = KVP0 + KVPSZ
FLG = KVP1 + KVPSZ
PFL = FLG + 10*256*128
EPO = PFL + 767*128
X0 = PFL + 768*128
XS = [X0 + i*XSZ for i in range(4)]
OS = [XS[3] + XSZ + i*OSZ for i in range(4)]
QS = [OS[3] + OSZ + i*(QSZ + KVSZ) for i in range(2)]
WSEND = QS[1] + QSZ + KVSZ
KA_X, KA_WA, KA_WOA, KA_WB, KA_WOB, KA_OUT, KA_DBG, KA_WS = 0, 8, 16, 32, 40, 48, 56, 64

def srd(k, d, base, off, size):
    if off == 0:
        k(f"s_mov_b32 s{d}, s{base}\ns_mov_b32 s{d+1}, s{base+1}")
    else:
        o = hx(off) if isinstance(off, int) else off
        k(f"s_add_u32 s{d}, s{base}, {o}\ns_addc_u32 s{d+1}, s{base+1}, 0")
    k(f"s_mov_b32 s{d+2}, {hx(size)}\ns_mov_b32 s{d+3}, 0x20000")

def magic(d, n):
    for sh in range(8, 24):
        m = (1 << sh) // d + 1
        if all((x*m) >> sh == x // d for x in range(n)) and m * n < 2**32: return m, sh
    raise ValueError
def vdiv(k, dst, src, d, n):
    m, sh = magic(d, n)
    k(f"v_mul_u32_u24 v{dst}, {hx(m)}, v{src}\nv_lshrrev_b32 v{dst}, {sh}, v{dst}")
def sdiv(k, dst, src, d, n):
    m, sh = magic(d, n)
    k(f"s_mul_i32 s{dst}, s{src}, {m}\ns_lshr_b32 s{dst}, s{dst}, {sh}")
```

```python
from common import *
OOB = 0x40000000

def gen_op(name, UP=27, RATE=1):
    k = K(name, 256, 256, 102400, vgpr=192)
    k.params = dict(WO=60, OIN=61, XRES=62, XOUT=63)
    L = k.lab
    X, Y, HA, HB, OF, WF, RF = 0, 16, 32, 48, 64, 144, 164
    LN, L16, AX, AY, AH, AS, AR, AO, AOH, ASQ, t = range(176, 187)
    k.stamp(0)
    k(f"""
    s_cmp_ge_u32 s2, 256
    s_cbranch_scc1 {L('end')}
    s_load_dwordx2 s[4:5], s[0:1], 64
    s_load_dwordx2 s[28:29], s[0:1], 48
    v_lshrrev_b32 v1, 6, v0
    v_and_b32 v{LN}, 63, v0
    v_readfirstlane_b32 s3, v1
    s_and_b32 s6, s2, 1
    s_lshl_b32 s6, s6, 2
    s_bfe_u32 s7, s2, 0x20003
    s_add_u32 s6, s6, s7
    s_bfe_u32 s7, s2, 0x20001
    s_lshl_b32 s7, s7, 3
    s_lshr_b32 s16, s2, 5
    s_add_u32 s7, s7, s16
    s_and_b32 s34, s3, 1
    s_lshr_b32 s35, s3, 1
    s_lshl_b32 s16, s7, 1
    s_add_u32 s16, s16, s34
    s_mul_i32 s17, s6, 102400
    s_add_u32 s17, s17, s60
    s_mul_i32 s36, s16, 40960
    s_add_u32 s18, s36, s61
    s_mul_i32 s19, s35, 10
    s_add_u32 s19, s19, s34
    s_mul_i32 s19, s19, 5120
    s_mul_i32 s21, s35, 20480
    v_lshlrev_b32 v{L16}, 4, v{LN}
    s_mov_b32 m0, s19
    s_waitcnt lgkmcnt(0)
    """)
    srd(k, 8, 4, "s17", 102400)
    srd(k, 12, 4, "s18", 40960)
    loads = []
    for c in range(5):
        for i in range(4):
            loads.append((f"buffer_load_dwordx4 v[{OF+16*c+4*i}:{OF+16*c+4*i+3}], v{L16}, s[12:15], s21 offen offset:{i*1024}",
                          ["s_add_u32 s21, s21, 4096"] if i == 3 else []))
            loads.append((f"buffer_load_dwordx4 v{L16}, s[8:11], s19 offen offset:{i*1024} lds",
                          ["s_add_u32 s19, s19, 4096", "s_mov_b32 m0, s19"] if i == 3 else []))
        loads.append((f"buffer_load_dwordx4 v{L16}, s[8:11], s19 offen lds",
                      [f"s_add_u32 s19, s19, {10240-4096}", "s_mov_b32 m0, s19"]))
    loads += [(f"buffer_load_dwordx4 v[{RF}:{RF+3}], v{L16}, s[24:27], s46 offen", []),
              (f"buffer_load_dwordx4 v[{RF+4}:{RF+7}], v{L16}, s[24:27], s46 offen offset:1024", []),
              (f"buffer_load_dwordx4 v[{RF+8}:{RF+11}], v{L16}, s[24:27], s47 offen", [])]
    n = [0]
    def issue(c=1):
        for _ in range(c):
            if n[0] < len(loads):
                k(loads[n[0]][0])
                for s in loads[n[0]][1]: k(s)
                n[0] += 1
    issue(9)
    k(f"""
    s_mul_i32 s37, s6, 5
    s_lshl_b32 s38, s35, 1
    s_add_u32 s38, s38, s37
    s_add_u32 s37, s37, 4
    s_mul_i32 s33, s16, {XT}
    s_add_u32 s20, s33, s62
    """)
    srd(k, 24, 4, "s20", 40960)
    k(f"""
    s_lshl_b32 s46, s38, 10
    s_lshl_b32 s47, s37, 10
    s_mul_i32 s22, s35, 51200
    v_add_u32 v{AH}, s22, v{L16}
    s_lshl_b32 s22, s35, 10
    v_add_u32 v{AY}, s22, v{AH}
    s_xor_b32 s22, s22, 1024
    v_add_u32 v{AX}, s22, v{AH}
    s_mul_i32 s22, s3, 6144
    v_add_u32 v{AS}, s22, v{L16}
    s_xor_b32 s22, s3, 2
    s_mul_i32 s22, s22, 6144
    v_add_u32 v{AR}, s22, v{L16}
    s_mov_b32 s42, 0x3f80
    s_mov_b32 s43, 0x3f800000
    s_lshl_b32 s41, s35, 30
    s_cmp_eq_u32 s35, 0
    s_cselect_b32 s45, s43, 0
    v_and_b32 v{t}, 31, v{LN}
    s_mov_b32 s31, 0x20000
    s_cmp_eq_u32 s63, 0
    s_cbranch_scc1 {L('fin')}
    s_add_u32 s20, s33, s63
    s_add_u32 s28, s4, s20
    s_addc_u32 s29, s5, 0
    s_mov_b32 s30, {XT}
    v_mov_b32 v{AO}, v{L16}
    v_lshlrev_b32 v{ASQ}, 2, v{t}
    s_mov_b32 s39, s46
    s_add_u32 s44, s46, 1024
    s_mov_b32 s40, s47
    s_lshl_b32 s32, s6, 1
    s_add_u32 s32, s32, s35
    s_lshl_b32 s32, s32, 7
    s_add_u32 s32, s32, 40960
    s_branch {L('go')}
    {L('fin')}:
    s_mov_b32 s30, {2048*1280}
    v_mul_u32_u24 v{AO}, 1280, v{t}
    v_lshrrev_b32 v{t}, 5, v{LN}
    v_lshl_add_u32 v{AO}, v{t}, 4, v{AO}
    v_mov_b32 v{ASQ}, {hx(OOB)}
    s_lshl_b32 s39, s38, 5
    s_add_u32 s39, s39, s36
    s_add_u32 s44, s39, 32
    s_lshl_b32 s40, s37, 5
    s_add_u32 s40, s40, s36
    s_mov_b32 s32, 0
    {L('go')}:
    v_add_u32 v{AOH}, s41, v{AO}
    """)
    issue(UP - 9)
    def rd(p, j):
        a, o = [(AH, 4096), (AX, 0), (AY, 0), (AX, 2048), (AY, 2048)][j]
        return f"ds_read_b128 v[{WF+4*j}:{WF+4*j+3}], v{a} offset:{p*5120 + o}"
    def mf(d, j, ks, first):
        a = f"v[{d}:{d+15}]"
        return f"v_mfma_f32_32x32x16_bf16 {a}, v[{WF+4*j}:{WF+4*j+3}], v[{OF+4*ks}:{OF+4*ks+3}], {0 if first else a}"
    k.stamp(1)
    k(f"s_waitcnt vmcnt({n[0]-9})\ns_barrier")
    k.stamp(2)
    for j in range(5): k(rd(0, j))
    for p in range(10):
        last = p == 9
        if p % 2 == 1 and not last:
            need = 9*((p+1)//2 + 1)
            assert n[0] >= need
            k(f"s_waitcnt vmcnt({n[0] - need}) lgkmcnt(4)\ns_barrier")
        else:
            k("s_waitcnt lgkmcnt(4)")
        k(mf(HA, 0, 2*p, p == 0))
        issue(RATE)
        k(mf(HB, 0, 2*p+1, p == 0))
        if not last: k(rd(p+1, 0))
        for j in range(1, 5):
            k(f"s_waitcnt lgkmcnt({4 - j if last else 4})")
            k(mf(X if j % 2 else Y, j, 2*p + (j-1)//2, p == 0 and j < 3))
            if not last: k(rd(p+1, j))
            issue(RATE)
            if last and j == 3:
                for i in range(4): k(f"v_pk_add_f32 v[{HA+2*i}:{HA+2*i+1}], v[{HA+2*i}:{HA+2*i+1}], v[{HB+8+2*i}:{HB+9+2*i}]")
    assert n[0] == len(loads)
    k.stamp(3)
    for i in range(2): k(f"ds_write_b128 v{AS}, v[{HA+4*i}:{HA+4*i+3}] offset:{4096 + i*1024}")
    k("s_waitcnt vmcnt(0)")
    for i in range(8): k(f"v_dot2_f32_bf16 v{HB+i}, v{RF+8+i//2}, s{42+i%2}, v{HA+i}")
    for i in range(4): k(f"ds_write_b128 v{AS}, v[{X+4*i}:{X+4*i+3}] offset:{i*1024}")
    for i in range(16): k(f"v_dot2_f32_bf16 v{Y+i}, v{RF+i//2}, s{42+i%2}, v{Y+i}")
    k("s_waitcnt lgkmcnt(0)\ns_barrier")
    for i in range(6): k(f"ds_read_b128 v[{OF+4*i}:{OF+4*i+3}], v{AR} offset:{i*1024}")
    for f in range(3):
        own = Y + 8*f if f < 2 else HB
        k(f"s_waitcnt lgkmcnt({4-2*f})")
        for i in range(4): k(f"v_pk_add_f32 v[{own+2*i}:{own+2*i+1}], v[{own+2*i}:{own+2*i+1}], v[{OF+8*f+2*i}:{OF+8*f+2*i+1}]")
        for i in range(4): k(f"v_cvt_pk_bf16_f32 v{WF+4*f+i}, v{own+2*i}, v{own+2*i+1}")
        k(f"buffer_store_dwordx4 v[{WF+4*f}:{WF+4*f+3}], v{AOH if f == 2 else AO}, s[28:31], s{(39, 44, 40)[f]} offen")
    for i in range(4):
        for f in range(3): k(f"v_dot2_f32_bf16 v{t+f}, v{WF+4*f+i}, v{WF+4*f+i}, {f'v{t+f}' if i else 0}")
    k(f"""
    v_add_f32 v{t}, v{t}, v{t+1}
    v_fma_f32 v{t}, v{t+2}, s45, v{t}
    v_mov_b32 v{t+1}, v{t}
    v_permlane32_swap_b32 v{t+1}, v{t}
    v_add_f32 v{t}, v{t}, v{t+1}
    buffer_store_dword v{t}, v{ASQ}, s[28:31], s32 offen
    """)
    k.stamp(4)
    k.prof_end(3, 5)
    k(f"{L('end')}:\ns_endpgm")
    return k
```

```python
from common import *
QSCALE = 20 ** -0.5 * 1.4426950408889634

def gen_prep():
    k = K("prep_kernel", 240, 512, 8*5120 + 1024, vgpr=64)
    L = k.lab
    RED = 8*5120
    k.stamp(0)
    k(f"""
    s_cmp_ge_u32 s2, 240
    s_cbranch_scc1 {L('end')}
    s_load_dwordx4 s[4:7], s[0:1], 0
    s_load_dwordx2 s[8:9], s[0:1], 16
    s_load_dwordx4 s[12:15], s[0:1], 32
    s_load_dwordx2 s[10:11], s[0:1], 64
    v_lshrrev_b32 v1, 6, v0
    v_and_b32 v0, 63, v0
    v_readfirstlane_b32 s3, v1
    s_mul_i32 s16, s3, 5120
    s_mul_i32 s17, s3, 5
    v_lshrrev_b32 v2, 5, v0
    s_waitcnt lgkmcnt(0)
    """)
    srd(k, 20, 10, 0, WSEND)
    k(f"""
    s_cmp_ge_u32 s2, 160
    s_cbranch_scc1 {L('xpart')}
    s_and_b32 s18, s2, 7
    s_lshr_b32 s19, s2, 4
    s_lshl_b32 s19, s19, 3
    s_add_u32 s18, s18, s19
    s_lshl_b32 s18, s18, 1
    s_bfe_u32 s19, s2, 0x10003
    s_add_u32 s18, s18, s19
    v_bfe_u32 v3, v0, 4, 1
    v_bfe_u32 v4, v0, 2, 2
    v_and_b32 v5, 3, v0
    v_lshlrev_b32 v6, 9, v2
    v_lshl_add_u32 v6, v4, 6, v6
    v_lshl_add_u32 v6, v3, 5, v6
    v_lshl_add_u32 v6, v5, 3, v6
    v_add_u32 v6, s16, v6
    s_cmp_ge_u32 s18, 120
    s_cbranch_scc1 {L('wo')}
    """)
    def fills():
        n = fills.n = getattr(fills, "n", 0) + 1
        k(f"""
        s_lshl_b32 s40, s2, 3
        s_add_u32 s40, s40, s3
        s_cmp_ge_u32 s40, 1344
        s_cbranch_scc1 {L(f'fdone{n}')}
        s_cmp_ge_u32 s40, 1024
        s_cbranch_scc1 {L(f'fpad{n}')}
        s_lshl_b32 s41, s40, 10
        s_add_u32 s41, s41, {hx(KVP0)}
        v_lshlrev_b32 v60, 4, v0
        v_mov_b32 v56, -1
        v_mov_b32 v57, -1
        v_mov_b32 v58, -1
        v_mov_b32 v59, -1
        buffer_store_dwordx4 v[56:59], v60, s[20:23], s41 offen sc1
        s_branch {L(f'fdone{n}')}
        {L(f'fpad{n}')}:
        s_sub_u32 s41, s40, 1024
        s_lshl_b32 s41, s41, 14
        v_lshrrev_b32 v60, 4, v0
        v_lshlrev_b32 v60, 12, v60
        v_bfe_u32 v61, v0, 3, 1
        v_lshl_add_u32 v60, v61, 9, v60
        v_and_b32 v61, 7, v0
        v_lshl_add_u32 v60, v61, 4, v60
        v_mov_b32 v56, 0x3f803f80
        v_mov_b32 v57, 0x3f803f80
        v_mov_b32 v58, 0x3f803f80
        v_mov_b32 v59, 0x3f803f80
        buffer_store_dwordx4 v[56:59], v60, s[20:23], s41 offen offset:{3*1024+24*16}
        {L(f'fdone{n}')}:
        """)
    def trreads():
        for i in range(5):
            k(f"ds_read_b64_tr_b16 v[{16+4*i}:{17+4*i}], v6 offset:{i*1024}")
            k(f"ds_read_b64_tr_b16 v[{18+4*i}:{19+4*i}], v6 offset:{i*1024+256}")
    k(f"""
    s_cmp_ge_u32 s18, 60
    s_cselect_b32 s24, s12, s6
    s_cselect_b32 s25, s13, s7
    s_cselect_b32 s30, {hx(WB)}, 0
    s_cselect_b32 s31, 60, 0
    s_cselect_b32 s33, {hx(f2u(QSCALE))}, 1.0
    s_mov_b32 s26, {640*3840}
    s_mov_b32 s27, 0x20000
    s_sub_u32 s31, s18, s31
    v_lshrrev_b32 v7, 2, v0
    v_mul_u32_u24 v7, 3840, v7
    v_lshl_add_u32 v7, v5, 4, v7
    s_lshl_b32 s32, s31, 6
    s_mul_i32 s34, s17, {16*3840}
    s_add_u32 s34, s34, s32
    """)
    for i in range(5):
        k(f"s_add_u32 m0, s16, {i*1024}")
        if i: k(f"s_add_u32 s34, s34, {16*3840}")
        k(f"buffer_load_dwordx4 v7, s[24:27], s34 offen lds")
    sdiv(k, 35, 31, 20, 60)
    k(f"""
    s_cmp_eq_u32 s35, 0
    s_cselect_b32 s33, s33, 1.0
    s_mul_i32 s36, s35, 20
    s_sub_u32 s36, s31, s36
    s_lshl_b32 s36, s36, 5
    s_mul_i32 s35, s35, 5
    v_and_b32 v8, 31, v0
    v_add_u32 v8, s36, v8
    """)
    vdiv(k, 9, 8, 20, 640)
    k(f"""
    v_mul_u32_u24 v10, 20, v9
    v_sub_u32 v10, v8, v10
    v_lshrrev_b32 v11, 2, v10
    v_add_u32 v11, s35, v11
    v_lshrrev_b32 v12, 1, v9
    v_mul_u32_u24 v12, {hx(163840)}, v12
    v_lshrrev_b32 v13, 2, v11
    v_lshl_add_u32 v12, v13, 10, v12
    v_and_b32 v13, 3, v11
    v_lshl_add_u32 v12, v13, 7, v12
    v_and_b32 v13, 1, v9
    v_lshl_add_u32 v12, v13, 6, v12
    v_and_b32 v13, 3, v10
    v_lshl_add_u32 v12, v13, 4, v12
    v_lshl_add_u32 v12, v2, 9, v12
    s_lshl_b32 s37, s17, 12
    s_add_u32 s37, s37, s30
    v_mov_b32 v14, 0
    v_mov_b32 v15, 0x3f803f80
    v_and_b32 v8, 31, v0
    v_lshlrev_b32 v9, 5, v8
    s_lshl_b32 s38, s3, 2
    v_add_u32 v10, s38, v9
    s_waitcnt vmcnt(0)
    """)
    trreads()
    k("s_waitcnt lgkmcnt(0)")
    for r in range(16, 36): k(f"v_dot2c_f32_bf16 v14, v{r}, v15")
    k(f"""
    v_mov_b32 v13, v14
    v_permlane32_swap_b32 v13, v14
    v_add_f32 v14, v13, v14
    ds_write_b32 v10, v14 offset:{RED}
    s_waitcnt lgkmcnt(0)
    s_barrier
    ds_read_b128 v[40:43], v9 offset:{RED}
    ds_read_b128 v[44:47], v9 offset:{RED+16}
    s_waitcnt lgkmcnt(0)
    v_add_f32 v40, v40, v41
    v_add_f32 v42, v42, v43
    v_add_f32 v44, v44, v45
    v_add_f32 v46, v46, v47
    v_add_f32 v40, v40, v42
    v_add_f32 v44, v44, v46
    v_add_f32 v40, v40, v44
    v_mul_f32 v40, {hx(f2u(-1.0/640))}, v40
    v_mul_f32 v40, s33, v40
    """)
    for i in range(5):
        for r in range(16+4*i, 20+4*i):
            k(f"""
            v_lshlrev_b32 v41, 16, v{r}
            v_and_b32 v42, 0xffff0000, v{r}
            v_fma_f32 v41, v41, s33, v40
            v_fma_f32 v42, v42, s33, v40
            v_cvt_pk_bf16_f32 v{r}, v41, v42
            """)
        if i: k(f"s_add_u32 s37, s37, 4096")
        k(f"buffer_store_dwordx4 v[{16+4*i}:{19+4*i}], v12, s[20:23], s37 offen")
    k(f"s_branch {L('fill')}")
    k(f"""
    {L('wo')}:
    s_cmp_ge_u32 s18, 140
    s_cselect_b32 s24, s14, s8
    s_cselect_b32 s25, s15, s9
    s_cselect_b32 s30, {hx(WOSZ)}, 0
    s_cselect_b32 s31, 20, 0
    s_add_u32 s30, s30, {hx(WOA)}
    s_mov_b32 s26, {640*1280}
    s_mov_b32 s27, 0x20000
    s_sub_u32 s31, s18, s31
    s_sub_u32 s31, s31, 120
    s_lshl_b32 s32, s31, 6
    v_lshlrev_b32 v7, 3, v3
    v_lshl_add_u32 v7, v2, 2, v7
    v_add_u32 v7, v7, v4
    v_mul_u32_u24 v7, 1280, v7
    v_lshl_add_u32 v7, v5, 4, v7
    v_mul_u32_u24 v8, 40, v2
    v_mad_u32_u24 v8, v3, 20, v8
    v_add3_u32 v8, v8, v4, 16
    v_mul_u32_u24 v8, 1280, v8
    v_lshl_add_u32 v8, v5, 4, v8
    """)
    for i in range(5):
        k(f"""
        s_add_u32 s34, s17, {i}
        s_mul_i32 s35, s34, {20*1280}
        s_sub_u32 s36, s34, 32
        s_mul_i32 s36, s36, {80*1280}
        s_cmp_lt_u32 s34, 32
        s_cselect_b32 s35, s35, s36
        s_cselect_b64 vcc, -1, 0
        s_add_u32 s35, s35, s32
        v_cndmask_b32 v9, v8, v7, vcc
        s_add_u32 m0, s16, {i*1024}
        s_nop 0
        buffer_load_dwordx4 v9, s[24:27], s35 offen lds
        """)
    k(f"""
    s_lshl_b32 s36, s31, 5
    v_and_b32 v8, 31, v0
    v_add_u32 v8, s36, v8
    """)
    vdiv(k, 9, 8, 80, 640)
    k(f"""
    v_mul_u32_u24 v10, 80, v9
    v_sub_u32 v10, v8, v10
    v_mul_u32_u24 v12, {hx(102400)}, v9
    v_lshl_add_u32 v12, v2, 9, v12
    v_and_b32 v13, 3, v10
    v_lshl_add_u32 v12, v13, 4, v12
    v_bfe_u32 v13, v10, 3, 1
    v_lshl_add_u32 v12, v13, 6, v12
    v_bfe_u32 v13, v10, 2, 1
    v_lshl_add_u32 v12, v13, 7, v12
    v_bfe_u32 v13, v10, 4, 1
    v_lshl_add_u32 v12, v13, 8, v12
    v_bfe_u32 v13, v10, 5, 1
    v_lshl_add_u32 v12, v13, 10, v12
    v_bfe_u32 v13, v10, 6, 1
    v_lshl_add_u32 v12, v13, 12, v12
    v_mul_u32_u24 v13, {2048-256}, v13
    v_sub_u32 v13, 2048, v13
    s_waitcnt vmcnt(0)
    """)
    trreads()
    for i in range(5):
        k(f"""
        s_add_u32 s34, s17, {i}
        s_lshr_b32 s35, s34, 1
        s_mul_i32 s35, s35, 5120
        s_add_u32 s35, s35, s30
        s_and_b32 s34, s34, 1
        v_mad_u32_u24 v14, v13, s34, v12
        s_waitcnt lgkmcnt({8-2*i})
        buffer_store_dwordx4 v[{16+4*i}:{19+4*i}], v14, s[20:23], s35 offen
        """)
    k(f"s_branch {L('fill')}")
    k(f"""
    {L('xpart')}:
    s_sub_u32 s18, s2, 160
    s_lshl_b32 s18, s18, 3
    s_add_u32 s18, s18, s3
    """)
    sdiv(k, 19, 18, 10, 640)
    srd(k, 24, 4, 0, 2048*1280)
    k(f"""
    s_mul_i32 s30, s19, 10
    s_sub_u32 s30, s18, s30
    s_mul_i32 s31, s19, {32*1280}
    s_lshl_b32 s32, s30, 7
    s_add_u32 s32, s32, s31
    v_lshrrev_b32 v3, 3, v0
    v_xor_b32 v4, v3, v0
    v_and_b32 v4, 7, v4
    v_mul_u32_u24 v7, 1280, v3
    v_lshl_add_u32 v7, v4, 4, v7
    """)
    for i in range(4):
        k(f"s_add_u32 m0, s16, {i*1024}")
        if i: k(f"s_add_u32 s32, s32, {8*1280}")
        k(f"buffer_load_dwordx4 v7, s[24:27], s32 offen lds")
    k(f"""
    v_and_b32 v8, 31, v0
    v_xor_b32 v9, v8, v2
    v_and_b32 v9, 7, v9
    v_lshlrev_b32 v9, 4, v9
    v_lshl_add_u32 v9, v8, 7, v9
    v_xor_b32 v10, 32, v9
    v_xor_b32 v11, 64, v9
    v_xor_b32 v12, 96, v9
    v_add_u32 v9, s16, v9
    v_add_u32 v10, s16, v10
    v_add_u32 v11, s16, v11
    v_add_u32 v12, s16, v12
    v_lshlrev_b32 v13, 4, v0
    s_mul_i32 s34, s19, {XT}
    s_add_u32 s34, s34, {hx(X0)}
    s_lshl_b32 s33, s30, 12
    s_add_u32 s33, s33, s34
    s_lshl_b32 s35, s30, 7
    s_add_u32 s34, s34, s35
    s_add_u32 s34, s34, 40960
    s_cmp_lt_u32 s30, 6
    s_cselect_b32 s35, {1280-128}, 0x40000000
    v_lshlrev_b32 v14, 2, v0
    v_mul_lo_u32 v15, v2, s35
    v_add_u32 v14, v14, v15
    v_mov_b32 v15, 0
    s_waitcnt vmcnt(0)
    """)
    for i in range(4): k(f"ds_read_b128 v[{16+4*i}:{19+4*i}], v{9+i}")
    for i in range(4):
        k(f"s_waitcnt lgkmcnt({3-i})")
        k(f"buffer_store_dwordx4 v[{16+4*i}:{19+4*i}], v13, s[20:23], s33 offen offset:{i*1024}")
    for r in range(16, 32): k(f"v_dot2c_f32_bf16 v15, v{r}, v{r}")
    k("""
    v_mov_b32 v32, 0
    v_permlane32_swap_b32 v15, v32
    v_add_f32 v15, v15, v32
    buffer_store_dword v15, v14, s[20:23], s34 offen
    """)
    k(f"{L('fill')}:")
    k.stamp(1)
    fills()
    k.prof_end(3, 2)
    k(f"{L('end')}:\ns_endpgm")
    return k
```

```python
from common import *
LOG2E = 1.4426950408889634
OOB = 0x40000000

def gen_qkv(name, opt=()):
    k = K(name, 256, 256, 65536, vgpr=200)
    k.params = dict(W=60, XIN=61, OUT=62, KVP=63)
    SQ, ASQ = 180, 163
    L = k.lab
    ACC, WF, XR = 0, 64, 80
    LN, L16, LW, SS, T0 = 144, 145, 146, 147, 148
    TID, HH, TOK = 160, 161, 162
    k.stamp(0)
    E0 = 164
    k(f"""
    s_cmp_ge_u32 s2, 256
    s_cbranch_scc1 {L('end')}
    s_load_dwordx2 s[4:5], s[0:1], 64
    v_mov_b32 v{TID}, v0
    v_lshrrev_b32 v1, 6, v0
    v_and_b32 v{LN}, 63, v0
    v_readfirstlane_b32 s3, v1
    s_and_b32 s6, s2, 3
    s_lshl_b32 s6, s6, 2
    s_bfe_u32 s7, s2, 0x20003
    s_add_u32 s6, s6, s7
    s_bfe_u32 s7, s2, 0x10002
    s_lshl_b32 s7, s7, 3
    s_lshr_b32 s16, s2, 5
    s_add_u32 s7, s7, s16
    s_lshl_b32 s16, s7, 2
    s_add_u32 s16, s16, s3
    s_mul_i32 s17, s6, 163840
    s_add_u32 s17, s17, s60
    s_mul_i32 s18, s16, {XT}
    s_add_u32 s18, s18, s61
    s_lshl_b32 s19, s3, 12
    v_lshlrev_b32 v{L16}, 4, v{LN}
    v_add_u32 v{LW}, s19, v{L16}
    s_mov_b32 s20, 0
    s_mov_b32 s21, 0
    s_waitcnt lgkmcnt(0)
    """)
    srd(k, 8, 4, "s17", 163840)
    srd(k, 12, 4, "s18", XT)
    def xload(G, i):
        ks = 4*G + i
        return f"buffer_load_dwordx4 v[{XR+4*(ks%16)}:{XR+4*(ks%16)+3}], v{L16}, s[12:15], s21 offen offset:{i*1024}"
    def wload(G, i):
        return f"buffer_load_dwordx4 v{LW}, s[8:11], s20 offen offset:{i*1024} lds"
    def gsetup(G):
        r = [f"s_add_u32 m0, s19, {(G%4)*16384}"]
        if G: r += [f"s_mov_b32 s20, {G*16384}", f"s_mov_b32 s21, {G*4096}"]
        return r
    for G in range(3):
        for s in gsetup(G): k(s)
        for i in range(4):
            k(xload(G, i)); k(wload(G, i))
    srd(k, 24, 4, 0, WSEND)
    k(f"""
    v_lshrrev_b32 v{HH}, 5, v{LN}
    v_and_b32 v{TOK}, 31, v{LN}
    v_lshlrev_b32 v{ASQ}, 10, v{HH}
    v_lshl_add_u32 v{ASQ}, v{TOK}, 2, v{ASQ}
    s_cmp_lg_u32 s63, 0
    s_cbranch_scc1 {L('proA')}
    """)
    t = T0
    if True:
        AQ, AQT, AK, AKT, AVW, AVR, AVS = E0, E0+1, E0+2, E0+3, E0+4, E0+5, E0+8
        k(f"""
        v_mul_u32_u24 v{t}, {hx(81920)}, v{HH}
        v_lshl_add_u32 v{AQ}, v{TOK}, 4, v{t}
        v_lshl_add_u32 v{AQT}, v{TOK}, 3, v{t}
        v_lshlrev_b32 v{t}, 1, v{t}
        v_lshl_add_u32 v{AK}, v{TOK}, 4, v{t}
        v_lshl_add_u32 v{AKT}, v{TOK}, 3, v{t}
        s_mul_i32 s28, s6, {2*81920}
        s_mul_i32 s29, s16, 1280
        s_add_u32 s28, s28, s29
        s_add_u32 s28, s28, s62
        s_mul_i32 s29, s6, {2*163840}
        s_lshr_b32 s30, s16, 1
        s_mul_i32 s30, s30, 5120
        s_add_u32 s29, s29, s30
        s_add_u32 s29, s29, s62
        s_add_u32 s29, s29, {hx(QSZ)}
        s_and_b32 s33, s16, 1
        s_lshl_b32 s30, s33, 10
        s_add_u32 s30, s30, s29
        s_lshl_b32 s31, s33, 8
        s_add_u32 s31, s31, s29
        s_mul_i32 s32, s33, 1280
        s_add_u32 s32, s32, s29
        v_mul_u32_u24 v{AVW}, 40, v{LN}
        v_add_u32 v{AVW}, s19, v{AVW}
        v_lshrrev_b32 v{t}, 4, v{LN}
        v_and_b32 v{t+1}, 3, v{LN}
        v_lshl_add_u32 v{t}, v{t}, 2, v{t+1}
        v_bfe_u32 v{t+1}, v{LN}, 2, 2
        """)
        for p in range(3):
            k(f"v_add_u32 v{t+2}, {16*p}, v{t}")
            vdiv(k, t+3, t+2, 5, 48)
            k(f"""
            v_mul_u32_u24 v{t+4}, 5, v{t+3}
            v_sub_u32 v{t+4}, v{t+2}, v{t+4}
            v_lshrrev_b32 v{t+5}, 1, v{t+3}
            v_lshl_add_u32 v{t+5}, v{t+5}, 4, v{t+1}
            v_and_b32 v{t+3}, 1, v{t+3}
            v_lshl_add_u32 v{t+5}, v{t+3}, 2, v{t+5}
            v_mul_u32_u24 v{t+5}, 40, v{t+5}
            v_lshl_add_u32 v{t+5}, v{t+4}, 3, v{t+5}
            v_add_u32 v{AVR+p}, s19, v{t+5}
            """)
        k(f"""
        v_mov_b32 v{AVS}, v{L16}
        v_cmp_gt_u32 vcc, 16, v{LN}
        v_add_u32 v{t}, 1024, v{L16}
        v_add_u32 v{t+1}, {hx(163840 - 256)}, v{L16}
        v_cndmask_b32 v{AVS+1}, v{t+1}, v{t}, vcc
        v_cmp_gt_u32 vcc, 32, v{LN}
        v_add_u32 v{t}, {hx(163840 + 768)}, v{L16}
        v_mov_b32 v{t+1}, {hx(OOB)}
        v_cndmask_b32 v{AVS+2}, v{t+1}, v{t}, vcc
        s_branch {L('main')}
        {L('proA')}:
        """)
    if True:
        KVS, RR = 32768, 57344
        AW, ATA, ATB, APM, APT, AG, ARW, ARM, ART, AOT = range(E0, E0+10)
        k(f"""
        s_lshl_b32 s28, s3, 5
        v_lshl_add_u32 v{t}, v{HH}, 7, v{TOK}
        v_add_u32 v{t}, s28, v{t}
        v_mul_u32_u24 v{AW}, 96, v{t}
        v_bfe_u32 v{t}, v{LN}, 2, 2
        v_lshl_add_u32 v{t}, v{HH}, 3, v{t}
        s_lshl_b32 s28, s3, 7
        v_add_u32 v{t}, s28, v{t}
        v_mul_u32_u24 v{t}, 96, v{t}
        v_bfe_u32 v{t+1}, v{LN}, 4, 1
        v_and_b32 v{t+2}, 1, v{LN}
        v_bfe_u32 v{t+3}, v{LN}, 1, 1
        v_lshl_add_u32 v{t+2}, v{t+2}, 1, v{t+3}
        v_lshl_add_u32 v{t+2}, v{t+1}, 2, v{t+2}
        v_min_u32 v{t+2}, 4, v{t+2}
        v_lshl_add_u32 v{ATA}, v{t+2}, 3, v{t}
        v_and_b32 v{t+2}, 3, v{LN}
        v_lshl_add_u32 v{t+2}, v{t+1}, 2, v{t+2}
        v_min_u32 v{t+2}, 5, v{t+2}
        v_lshl_add_u32 v{ATB}, v{t+2}, 3, v{t}
        v_min_u32 v{t}, 20, v{TOK}
        v_mad_u32_u24 v{t+1}, v{HH}, 21, v{t}
        v_lshlrev_b32 v{ARM}, 4, v{t+1}
        v_lshlrev_b32 v{ART}, 3, v{t+1}
        v_mov_b32 v{t+2}, {hx(OOB)}
        s_mul_i32 s28, s3, 672
        s_mul_i32 s29, s3, 168
        v_add_u32 v{t}, s28, v{ARM}
        v_cmp_gt_u32 vcc, 21, v{TOK}
        v_add_u32 v{t+1}, s29, v{ART}
        v_cndmask_b32 v{APM}, v{t+2}, v{t}, vcc
        v_cmp_gt_u32 vcc, 21, v{LN}
        v_lshlrev_b32 v{ARW}, 3, v{TID}
        v_cndmask_b32 v{APT}, v{t+2}, v{t+1}, vcc
        v_cmp_gt_u32 vcc, 210, v{TID}
        s_lshl_b32 s30, s6, 15
        s_add_u32 s30, s30, s63
        v_cndmask_b32 v{AG}, v{t+2}, v{ARW}, vcc
        s_lshl_b32 s31, s7, 11
        s_add_u32 s31, s31, s30
        s_and_b32 s32, s6, 1
        s_lshl_b32 s32, s32, 9
        v_cmp_gt_u32 vcc, 32, v{LN}
        v_add_u32 v{t}, s32, v{L16}
        s_mul_i32 s32, s16, 40960
        s_add_u32 s32, s32, s62
        v_cndmask_b32 v{AOT}, v{t+2}, v{t}, vcc
        s_lshr_b32 s33, s6, 1
        s_add_u32 s33, s33, 32
        s_lshl_b32 s33, s33, 10
        s_add_u32 s33, s33, s32
        s_lshl_b32 s34, s6, 11
        s_add_u32 s32, s32, s34
        """)
        for j in range(8): k(f"s_add_u32 s{40+j}, s30, {j*4096}")
    def rd(ks, tt): return f"ds_read_b128 v[{WF+4*tt}:{WF+4*tt+3}], v{L16} offset:{(ks%16)*4096 + tt*1024}"
    k(f"{L('main')}:\ns_mov_b32 s22, 40960\ns_waitcnt vmcnt(16)\ns_barrier")
    k.stamp(1)
    for tt in range(4): k(rd(0, tt))
    for s in gsetup(3): k(s)
    k(xload(3, 0)); k(wload(3, 0))
    for ks in range(40):
        G = (ks + 13) // 4; i = (ks + 13) % 4
        x = XR + 4*(ks % 16)
        for tt in range(4):
            lg = 3 if ks < 39 else 3 - tt
            if tt == 0 and ks % 4 == 3 and ks < 39:
                g = (ks + 1) // 4
                k(f"s_waitcnt vmcnt({8*min(2, 10-g)}) lgkmcnt({lg})\ns_barrier")
            else:
                k(f"s_waitcnt lgkmcnt({lg})")
            a = f"v[{ACC+16*tt}:{ACC+16*tt+15}]"
            k(f"v_mfma_f32_32x32x16_bf16 {a}, v[{WF+4*tt}:{WF+4*tt+3}], v[{x}:{x+3}], {a if ks else 0}")
            if ks < 39: k(rd(ks+1, tt))
            if G == 10 and tt in (1, 2):
                j = 2*i + tt - 1
                k(f"buffer_load_dword v{SQ+j}, v{ASQ}, s[12:15], s22 offen offset:{128*j}")
            if ks == 38 and tt == 0: k("s_waitcnt vmcnt(0)")
            if ks == 38 and tt < 4: k(f"v_add_f32 v{SQ+tt}, v{SQ+tt}, v{SQ+4+tt}")
            if ks == 39 and tt < 2: k(f"v_add_f32 v{SQ+tt}, v{SQ+tt}, v{SQ+2+tt}")
            if ks == 39 and tt == 2: k(f"v_add_f32 v{SS}, v{SQ}, v{SQ+1}\nv_add_f32 v{T0}, v{SQ}, v{SQ+1}")
            if G < 10:
                if tt == 0 and i == 0:
                    for s in gsetup(G): k(s)
                if tt == 1: k(xload(G, i))
                if tt == 2: k(wload(G, i))
    k.stamp(2)
    RS = T0 + 8
    k(f"""
    v_permlane32_swap_b32 v{t}, v{SS}
    v_add_f32 v{SS}, v{t}, v{SS}
    v_mov_b32 v{t+1}, {hx(f2u(1e-5))}
    v_fmac_f32 v{t+1}, {hx(f2u(1/640))}, v{SS}
    v_mul_f32 v{t}, {hx(f2u(1/640))}, v{ACC+60}
    v_fma_f32 v{t+1}, -v{t}, v{t}, v{t+1}
    v_rsq_f32 v{RS}, v{t+1}
    """)
    P = WF
    def scale_pack(src, dst, n):
        for j in range(n):
            k(f"v_pk_mul_f32 v[{src+2*j}:{src+2*j+1}], v[{src+2*j}:{src+2*j+1}], v[{RS}:{RS+1}] op_sel_hi:[1,0]")
            if j: k(f"v_cvt_pk_bf16_f32 v{dst+j-1}, v{src+2*j-2}, v{src+2*j-1}")
        k(f"v_cvt_pk_bf16_f32 v{dst+n-1}, v{src+2*n-2}, v{src+2*n-1}")
    k(f"s_cmp_lg_u32 s63, 0\ns_cbranch_scc1 {L('epiA')}")
    if True:
        scale_pack(ACC+40, P+20, 10)
        for j in range(5): k(f"ds_write_b64 v{AVW}, v[{P+20+2*j}:{P+21+2*j}] offset:{8*j}")
        scale_pack(ACC+20, P+10, 10)
        k(f"""
        buffer_store_dwordx4 v[{P+10}:{P+13}], v{AK}, s[24:27], s30 offen
        buffer_store_dwordx4 v[{P+14}:{P+17}], v{AK}, s[24:27], s30 offen offset:512
        buffer_store_dwordx2 v[{P+18}:{P+19}], v{AKT}, s[24:27], s31 offen offset:2048
        s_waitcnt lgkmcnt(0)
        """)
        for p in range(3):
            k(f"ds_read_b64_tr_b16 v[{P+32+4*p}:{P+33+4*p}], v{AVR+p}")
            k(f"ds_read_b64_tr_b16 v[{P+34+4*p}:{P+35+4*p}], v{AVR+p} offset:320")
        scale_pack(ACC, P, 10)
        for p in range(3):
            k(f"s_waitcnt lgkmcnt({4-2*p})")
            k(f"buffer_store_dwordx4 v[{P+32+4*p}:{P+35+4*p}], v{AVS+p}, s[24:27], s32 offen offset:2560")
        k(f"""
        buffer_store_dwordx4 v[{P}:{P+3}], v{AQ}, s[24:27], s28 offen
        buffer_store_dwordx4 v[{P+4}:{P+7}], v{AQ}, s[24:27], s28 offen offset:512
        buffer_store_dwordx2 v[{P+8}:{P+9}], v{AQT}, s[24:27], s28 offen offset:1024
        s_branch {L('done')}
        {L('epiA')}:
        """)
    if True:
        EPS = RS + 4
        TE = 120
        k(f"v_mul_f32 v{RS+2}, {hx(f2u(LOG2E))}, v{RS}\nv_mov_b32 v{EPS}, {hx(f2u(1e-6))}")
        def phi_pack(src, dst, n):
            for j in range(n + 1):
                a = src + 2*j; e = TE + 2*(j % 2)
                if j < n:
                    k(f"""
                    v_pk_mul_f32 v[{e}:{e+1}], v[{a}:{a+1}], v[{RS+2}:{RS+3}] op_sel_hi:[1,0]
                    v_max_f32 v{a}, 0, v{a}
                    v_exp_f32 v{e}, v{e} clamp
                    v_exp_f32 v{e+1}, v{e+1} clamp
                    v_max_f32 v{a+1}, 0, v{a+1}
                    """)
                if j: k(f"v_cvt_pk_bf16_f32 v{dst+j-1}, v{a-2}, v{a-1}")
                if j < n:
                    k(f"""
                    v_pk_fma_f32 v[{a}:{a+1}], v[{a}:{a+1}], v[{RS}:{RS+1}], v[{EPS}:{EPS+1}] op_sel_hi:[1,0,0]
                    v_pk_add_f32 v[{a}:{a+1}], v[{a}:{a+1}], v[{e}:{e+1}]
                    """)
        PK = P + 12
        scale_pack(ACC+40, PK+10, 10)
        k(f"""
        v_mov_b32 v{PK+20}, 0x3f803f80
        v_mov_b32 v{PK+21}, 0x3f803f80
        ds_write_b128 v{AW}, v[{PK+12}:{PK+15}] offset:{KVS+48}
        ds_write_b128 v{AW}, v[{PK+16}:{PK+19}] offset:{KVS+64}
        ds_write_b64 v{AW}, v[{PK+20}:{PK+21}] offset:{KVS+80}
        """)
        phi_pack(ACC+20, PK, 10)
        for j in range(3): k(f"ds_write_b128 v{AW}, v[{PK+4*j}:{PK+4*j+3}] offset:{KVS+16*j}")
        k(f"""
        s_waitcnt lgkmcnt(0)
        s_barrier
        s_cmp_ge_u32 s3, 2
        s_cbranch_scc1 {L('nokv')}
        """)
        k.stamp(3)
        FA = 76
        D = 24
        for c in range(8):
            for h in range(2):
                k(f"ds_read_b64_tr_b16 v[{FA+8*c+2*h}:{FA+8*c+2*h+1}], v{ATA} offset:{KVS + c*1536 + h*384}")
                k(f"ds_read_b64_tr_b16 v[{FA+8*c+4+2*h}:{FA+8*c+5+2*h}], v{ATB} offset:{KVS + 40 + c*1536 + h*384}")
            if c >= 3:
                cc = c - 3
                k(f"s_waitcnt lgkmcnt(12)")
                k(f"v_mfma_f32_32x32x16_bf16 v[{D}:{D+15}], v[{FA+8*cc}:{FA+8*cc+3}], v[{FA+8*cc+4}:{FA+8*cc+7}], {f'v[{D}:{D+15}]' if cc else 0}")
        for cc in range(5, 8):
            k(f"s_waitcnt lgkmcnt({4*(7-cc)})")
            k(f"v_mfma_f32_32x32x16_bf16 v[{D}:{D+15}], v[{FA+8*cc}:{FA+8*cc+3}], v[{FA+8*cc+4}:{FA+8*cc+7}], v[{D}:{D+15}]")
        for j in range(6): k(f"v_cvt_pk_bf16_f32 v{44+j}, v{D+2*j}, v{D+2*j+1}")
        for j in range(6): k(f"v_min_u32 v{44+j}, -2, v{44+j}")
        k(f"""
        buffer_store_dwordx4 v[44:47], v{APM}, s[24:27], s31 offen sc1
        buffer_store_dwordx2 v[48:49], v{APT}, s[24:27], s31 offen offset:1344 sc1
        {L('nokv')}:
        """)
        phi_pack(ACC, P, 10)
        k.stamp(4)
        GA = 80
        k(f"""
        s_mov_b32 s36, 0x40000
        s_mov_b32 s37, 0x3f80
        s_mov_b32 s38, 0x3f800000
        {L('poll')}:
        """)
        for j in range(16):
            k(f"buffer_load_dwordx2 v[{GA+2*j}:{GA+2*j+1}], v{AG}, s[24:27], s{40+j//2} offen offset:{(j%2)*2048} sc1")
        k(f"s_sub_u32 s36, s36, 1")
        for j in range(16):
            if j % 2 == 0: k(f"s_waitcnt vmcnt({14-j})")
            k(f"v_max3_u32 v{t}, v{GA+2*j}, v{GA+2*j+1}, {f'v{t}' if j else 0}")
        k(f"""
        v_cmp_eq_u32 vcc, -1, v{t}
        s_cmp_eq_u32 s36, 0
        s_cbranch_scc1 {L('got')}
        s_cbranch_vccnz {L('poll')}
        {L('got')}:
        """)
        k.stamp(5)
        for j in range(16):
            for q in range(4):
                c = 0 if j == 0 else f"v{t+q}"
                k(f"v_dot2_f32_bf16 v{t+q}, v{GA+2*j+q//2}, s{37+q%2}, {c}")
        for j in range(4): k(f"v_permlane32_swap_b32 v{P+j}, v{P+4+j}")
        k(f"""
        v_cvt_pk_bf16_f32 v{t+4}, v{t}, v{t+1}
        v_cvt_pk_bf16_f32 v{t+5}, v{t+2}, v{t+3}
        ds_write_b64 v{ARW}, v[{t+4}:{t+5}] offset:{RR}
        s_waitcnt lgkmcnt(0)
        s_barrier
        ds_read_b128 v[80:83], v{ARM} offset:{RR}
        ds_read_b128 v[84:87], v{ARM} offset:{RR+672}
        ds_read_b64 v[88:89], v{ART} offset:{RR+1344}
        s_waitcnt lgkmcnt(0)
        v_mfma_f32_32x32x4_2b_bf16 v[0:31], v[88:89], v[{P+8}:{P+9}], 0
        v_mfma_f32_32x32x16_bf16 v[0:15], v[80:83], v[{P}:{P+3}], v[0:15]
        v_mfma_f32_32x32x16_bf16 v[16:31], v[84:87], v[{P+4}:{P+7}], v[16:31]
        """)
        for H in range(2):
            d = 16*H
            k(f"v_add_f32 v{d+12}, v{EPS}, v{d+12}\nv_rcp_f32 v{RS}, v{d+12}")
            scale_pack(d, 40 + 6*H, 6)
            k(f"buffer_store_dwordx4 v[{40+6*H}:{43+6*H}], v{L16}, s[24:27], s32 offen offset:{1024*H}")
        k(f"""
        v_mov_b32 v52, v44
        v_mov_b32 v53, v45
        v_mov_b32 v54, v50
        v_mov_b32 v55, v51
        buffer_store_dwordx4 v[52:55], v{AOT}, s[24:27], s33 offen
        """)
    k(f"{L('done')}:")
    k.stamp(6)
    k.prof_end(3, 7)
    k(f"{L('end')}:\ns_endpgm")
    return k
```

```python
import sys, os
sys.path.insert(0, os.path.dirname(os.path.abspath(__file__)))
from common import *
from prep import gen_prep
from qkv import gen_qkv
from op import gen_op
from att import gen_att
NAME = "interleave_layers__linear_attn_block__softmax_full_mha__prompt"
def build(verbose=False, qo={}, oo={}, ao={}):
    prep = gen_prep(); qkv = gen_qkv("qkv", **qo); op = gen_op("op", **oo); att = gen_att("att", **ao)
    seq = [(prep, prep.name)]
    for l in range(2):
        seq += [qkv.entry(f"qkva{l}_kernel", W=WA, XIN=XS[2*l], OUT=OS[2*l], KVP=(KVP0, KVP1)[l]),
                op.entry(f"op{2*l}_kernel", WO=WOA, OIN=OS[2*l], XRES=XS[2*l], XOUT=XS[2*l+1]),
                qkv.entry(f"qkvb{l}_kernel", W=WB, XIN=XS[2*l+1], OUT=QS[l], KVP=0),
                att.entry(f"att{l}_kernel", QS=QS[l], OUT=OS[2*l+1]),
                op.entry(NAME + "_kernel" if l else "op1_kernel", WO=WOB, OIN=OS[2*l+1], XRES=XS[2*l+1], XOUT=0 if l else XS[2])]
    return emit(seq, verbose)
def emit(seq, verbose=False):
    ref = open(f"cdna_kernels/{NAME}.s.ref").read().split("\n")
    head = [l for l in ref if l.startswith(";") and "@launch" not in l]
    out = head[:]
    for k, n in seq: out.append(f"; @launch kernel={n} grid=({k.grid},1,1) block=({k.block},1,1) lds={k.lds}")
    out += ['.amdgcn_target "amdgcn-amd-amdhsa--gfx950"', ".text"]
    uniq = []
    for k, n in seq:
        if k not in uniq: uniq.append(k)
    for k in uniq: out.append(k.text(verbose))
    out += ['.section .rodata,"a"']
    for k in uniq: out.append(k.descs())
    return "\n".join(out)
if __name__ == "__main__":
    K.PROF = "-p" in sys.argv
    txt = build("-v" in sys.argv)
    dst = f"cdna_kernels/{NAME}.s"
    for a in sys.argv[1:]:
        if a.endswith(".s"): dst = a
    open(dst, "w").write(txt)
    print(dst, len(txt))
```

```python
from gen import *
import gen as G, re
t = build()
open("a.s", "w").write(t)
scr = "    s_cbranch_scc1 L_%s_end\n    s_and_b32 s6, s2, 7\n    s_lshl_b32 s6, s6, 5\n    s_lshr_b32 s2, s2, 3\n    s_or_b32 s2, s2, s6\n"
u = t
for n in ("qkv", "op", "att"): u = u.replace("    s_cbranch_scc1 L_%s_end\n" % n, scr % n, 1)
open("b.s", "w").write(u)
open("d.s", "w").write(build(oo=dict(UP=18)))
G.OS = [OS[0]]*4; G.QS = [OS[1]]*2
open("c.s", "w").write(build())
```

```python
import re

def vr(a, n=1):
    return f"v{a}" if n == 1 else f"v[{a}:{a+n-1}]"
def sr(a, n=1):
    return f"s{a}" if n == 1 else f"s[{a}:{a+n-1}]"

_reg = re.compile(r"^(-|\|)?([vsa])(?:(\d+)|\[(\d+):(\d+)\])\|?$")
def regs_of(op):
    op = op.strip()
    if op in ("vcc",): return {("s", 106), ("s", 107)}
    if op == "vcc_lo": return {("s", 106)}
    if op == "vcc_hi": return {("s", 107)}
    if op == "exec": return {("s", 126), ("s", 127)}
    if op == "exec_lo": return {("s", 126)}
    if op == "exec_hi": return {("s", 127)}
    if op == "m0": return {("s", 124)}
    m = _reg.match(op)
    if not m: return set()
    k = m.group(2)
    if m.group(3) is not None: return {(k, int(m.group(3)))}
    return {(k, i) for i in range(int(m.group(4)), int(m.group(5)) + 1)}

TRANS = ("v_exp_f32", "v_log_f32", "v_rcp_f32", "v_rsq_f32", "v_sqrt_f32")
PASSES = {"v_mfma_f32_32x32x16_bf16": 8, "v_mfma_f32_16x16x32_bf16": 4,
          "v_mfma_f32_32x32x4_2b_bf16": 16, "v_mfma_f32_32x32x8_bf16": 8,
          "v_mfma_f32_32x32x4_2b_bf16_1k": 16, "v_mfma_f32_32x32x8_bf16_1k": 8}

class Ins:
    def __init__(self, text):
        self.text = text
        t = text.split(";")[0].strip()
        self.label = t[:-1] if t.endswith(":") else None
        self.op = None; self.dst = set(); self.src = set(); self.states = 0
        self.kind = None; self.target = None
        if self.label or not t or t.startswith("."): return
        parts = t.split(None, 1)
        op = parts[0]; self.op = op
        rest = parts[1] if len(parts) > 1 else ""
        ops = [x.strip() for x in re.split(r",(?![^\[]*\])", rest)] if rest else []
        mods = ""
        if ops:
            sp = ops[-1].split(None, 1)
            ops[-1] = sp[0]
            if len(sp) > 1: mods = sp[1]
        self.ops = ops; self.mods = mods
        self.states = 1
        base = op.replace("_e32", "").replace("_e64", "")
        self.base = base
        R = [regs_of(o) for o in ops]
        allr = lambda xs: set().union(*xs) if xs else set()
        if op == "s_nop":
            self.kind = "nop"; self.states = int(ops[0]) + 1
        elif op.startswith("s_cbranch") or op == "s_branch":
            self.kind = "branch"; self.target = ops[0]
        elif op == "s_endpgm":
            self.kind = "end"
        elif op.startswith("v_mfma"):
            self.kind = "mfma"; self.dst = R[0]; self.ab = R[1] | R[2]; self.c = R[3]
            self.src = self.ab | self.c; self.passes = PASSES[op]
        elif op.startswith("v_"):
            self.kind = "valu"
            if base.startswith("v_permlane") and "swap" in base:
                self.dst = R[0] | R[1]; self.src = R[0] | R[1]
            elif base.startswith("v_cmp"):
                self.dst = R[0]; self.src = allr(R[1:])
            elif base in ("v_add_co_u32", "v_sub_co_u32"):
                self.dst = R[0] | R[1]; self.src = allr(R[2:])
            elif base in ("v_addc_co_u32",):
                self.dst = R[0] | R[1]; self.src = allr(R[2:])
            else:
                self.dst = R[0]; self.src = allr(R[1:])
                if base in ("v_fmac_f32", "v_dot2c_f32_bf16", "v_writelane_b32"): self.src |= R[0]
                if base == "v_cndmask_b32" and len(ops) == 3: self.src |= regs_of("vcc")
        elif op.startswith("buffer_") or op.startswith("global_"):
            self.kind = "vmem"
            self.lds = " lds" in (" " + mods)
            if "load" in op and not self.lds:
                self.dst = R[0]; self.src = allr(R[1:])
            else:
                self.src = allr(R)
            self.wide_store = ("store" in op) and (op.endswith("x4") or op.endswith("x3"))
            self.data = R[0] if "store" in op else set()
        elif op.startswith("ds_"):
            self.kind = "ds"
            if "read" in op or "permute" in op or "swizzle" in op or "rtn" in op:
                self.dst = R[0]; self.src = allr(R[1:])
            else:
                self.src = allr(R)
        elif op.startswith("s_"):
            self.kind = "salu"
            if op.startswith("s_cmp") or op in ("s_waitcnt", "s_barrier", "s_setprio", "s_sleep", "s_bitcmp1_b32", "s_bitcmp0_b32"):
                self.src = allr(R)
            else:
                self.dst = R[0] if R else set(); self.src = allr(R[1:])
                if "saveexec" in op: self.dst = self.dst | regs_of("exec")
        else:
            raise ValueError("unknown instruction: " + text)

def V(s): return {r for r in s if r[0] in "va"}
def S(s): return {r for r in s if r[0] == "s"}

def need(p, c):
    n = 0
    if p.kind == "valu":
        pd = V(p.dst); ps = S(p.dst)
        if c.kind == "mfma" and pd & c.src: n = max(n, 2)
        if c.kind == "valu":
            if p.base in TRANS and c.base not in TRANS and pd & c.src: n = max(n, 1)
            if ps & c.src: n = max(n, 4 if c.base in ("v_readlane_b32", "v_writelane_b32") else 2)
            if c.base in ("v_readfirstlane_b32", "v_readlane_b32") and pd & c.src: n = max(n, 1)
            if (c.base.startswith("v_permlane") or "dpp" in c.op or "row_" in c.mods or "quad_perm" in c.mods) and pd & c.src: n = max(n, 2)
            if ("sdwa" in p.op or ("op_sel" in p.mods and not p.base.startswith("v_pk_"))) and pd & (c.src | c.dst): n = max(n, 1)
        if p.base.startswith("v_dot"):
            if c.kind in ("valu", "vmem", "ds", "mfma") and pd & (c.src | c.dst):
                same = c.kind == "valu" and c.base == p.base and not (pd & (regs_of(c.ops[1]) | regs_of(c.ops[2])))
                if not same: n = max(n, 3)
        if c.kind == "vmem" and ps & c.src: n = max(n, 5)
    if p.kind == "mfma":
        if c.kind == "mfma":
            if p.dst & c.ab: n = max(n, p.passes + 4)
            if p.dst & c.c:
                if not (p.dst == c.c and p.op == c.op): n = max(n, p.passes + 2)
            elif p.dst & c.dst: n = max(n, p.passes + 2)
        elif c.kind in ("valu", "vmem", "ds"):
            if p.dst & (c.src | c.dst): n = max(n, p.passes + 4)
            if c.kind == "valu" and V(p.c) & c.dst: n = max(n, p.passes - 1)
    if p.kind == "salu" and ("s", 124) in p.dst and c.kind == "vmem" and c.lds: n = max(n, 1)
    if p.kind == "vmem" and p.wide_store and p.data & c.dst:
        n = max(n, 2 if c.kind == "valu" else 1)
    return n

def pad(lines, verbose=False):
    ins = [Ins(l) for l in lines]
    total = 0; start = 0
    while True:
        labels = {x.label: i for i, x in enumerate(ins) if x.label}
        br = {}
        for i, x in enumerate(ins):
            if x.kind == "branch": br.setdefault(x.target, []).append(i)
        fix = None
        for i in range(start, len(ins)):
            c = ins[i]
            if c.kind in (None, "nop", "branch", "end"): continue
            worst = 0
            stack = [(i - 1, 0)]; seen = set()
            while stack:
                j, d = stack.pop()
                while j >= 0 and d < 21:
                    if (j, d) in seen: break
                    seen.add((j, d))
                    p = ins[j]
                    if p.label:
                        for b in br.get(p.label, []): stack.append((b, d))
                        if j > 0 and (ins[j-1].kind == "end" or ins[j-1].op == "s_branch"): break
                    elif p.kind == "end": break
                    elif p.kind is not None:
                        k = need(p, c)
                        if k - d > worst: worst = k - d; why = p.text
                        d += p.states
                    j -= 1
            if worst > 0:
                fix = (i, worst, why); break
        if not fix: break
        i, w, why = fix
        if verbose: print(f"pad {w} before [{ins[i].text.strip()}] after [{why.strip()}]")
        total += w
        new = []
        while w > 0:
            k = min(w, 16); new.append(Ins(f"    s_nop {k-1}")); w -= k
        ins[i:i] = new; start = i
    return [x.text for x in ins], total

import subprocess, tempfile, os
def sizes(lines):
    src = '.amdgcn_target "amdgcn-amd-amdhsa--gfx950"\n.text\n' + "\n".join(lines) + "\n"
    r = subprocess.run(["llvm-mc", "-triple=amdgcn-amd-amdhsa", "-mcpu=gfx950", "-show-encoding"],
                       input=src, capture_output=True, text=True)
    assert r.returncode == 0, r.stderr[:500]
    enc = [l.split("encoding: [")[1].count(",") + 1 for l in r.stdout.split("\n") if "encoding: [" in l]
    out = []; j = 0
    for l in lines:
        if Ins(l).op is None: out.append(0)
        else: out.append(enc[j]); j += 1
    assert j == len(enc)
    return out
NO64 = ("v_readfirstlane", "v_dot2c", "v_permlane", "v_fmac", "v_cndmask", "v_cmp")
def align8(lines):
    sz = sizes(lines); off = 0; cand = None; miss = 0
    lines = list(lines)
    for i, l in enumerate(lines):
        x = Ins(l)
        if l.strip().startswith(".p2align"): off = 0; cand = None; continue
        if sz[i] == 4:
            if x.kind == "valu" and not x.op.startswith(NO64) and not x.op.endswith("_e32"): cand = i
            off += 4
        elif sz[i] >= 8:
            if off % 8:
                if cand is not None:
                    lines[cand] = lines[cand].replace(Ins(lines[cand]).op, Ins(lines[cand]).op + "_e64", 1); off += 4
                else: miss += 1
            off += sz[i]; cand = None
    return lines, miss

class K:
    def __init__(self, name, grid, block, lds, vgpr, sgpr=96, agpr=0):
        self.name = name; self.grid = grid; self.block = block; self.lds = lds
        self.vgpr = vgpr; self.sgpr = sgpr; self.agpr = agpr
        self.L = []; self.align = True
        self.entries = []
    def __call__(self, s):
        for l in s.strip("\n").split("\n"):
            l = l.strip()
            if not l: continue
            self.L.append(l if l.endswith(":") else "    " + l)
    PROF = False
    def stamp(self, j):
        if K.PROF: self(f"s_memrealtime s[{64+4*j}:{65+4*j}]\ns_memtime s[{66+4*j}:{67+4*j}]")
    def prof_end(self, wave, j, ph=None):
        if not K.PROF: return
        if ph is None: self("s_waitcnt vmcnt(0)")
        self.stamp(j)
        self("s_load_dwordx4 s[48:51], s[0:1], 56" if ph is None else "s_mov_b64 s[50:51], s[4:5]")
        self(f"""
        s_mov_b64 exec, -1
        v_mov_b32 v0, 0
        s_waitcnt lgkmcnt(0)
        {'s_bfe_u32 s56, s48, 0x60009' if ph is None else f's_mov_b32 s56, s{ph}'}
        s_lshl_b32 s56, s56, 17
        s_add_u32 s56, s56, 0x3000000
        s_add_u32 s52, s50, s56
        s_addc_u32 s53, s51, 0
        s_mov_b32 s54, 0x20000
        s_mov_b32 s55, 0x20000
        s_lshl_b32 s57, s2, 3
        s_add_u32 s57, s57, s{wave}
        s_lshl_b32 s57, s57, 6
        """)
        for i in range(2*(j+1)): self(f"v_writelane_b32 v0, s{64+2*i}, {i}")
        self("""
        v_mbcnt_lo_u32_b32 v1, -1, 0
        v_lshlrev_b32 v1, 2, v1
        s_mov_b64 exec, 0xffff
        buffer_store_dword v0, v1, s[52:55], s57 offen
        s_mov_b64 exec, -1
        """)
    def lab(self, n): return f"L_{self.name}_{n}"
    def text(self, verbose=False):
        body, n = pad(self.L, verbose)
        if self.align:
            body, miss = align8(body)
            if verbose: print(self.name, "misaligned left:", miss)
        hi = 0
        for l in body:
            x = Ins(l)
            for r in (x.dst | x.src):
                if r[0] == "v": hi = max(hi, r[1])
        assert hi < self.vgpr, (self.name, hi, self.vgpr)
        head = lambda n: f".globl {n}\n.p2align 8\n.type {n},@function\n{n}:\n"
        if not self.entries: return head(self.name) + "\n".join(body) + "\n"
        out = ""
        sets = lambda ps: "".join(f"    s_mov_b32 s{r}, 0x{v & 0xffffffff:x}\n" for r, v in ps)
        n, ps = self.entries[0]
        out += head(n) + sets(ps) + f".p2align 3\n{self.lab('body')}:\n" + "\n".join(body) + "\n"
        for n, ps in self.entries[1:]:
            out += head(n) + sets(ps) + f"    s_branch {self.lab('body')}\n"
        return out
    def entry(self, name, **ps):
        self.entries.append((name, [(self.params[a], b) for a, b in ps.items()]))
        assert set(ps) == set(self.params)
        return (self, name)
    def descs(self):
        return "".join(".p2align 6\n" + self.desc(n) for n in ([e[0] for e in self.entries] or [self.name]))
    def desc(self, name):
        acc = (self.vgpr + 3) // 4 * 4
        return f""".amdhsa_kernel {name}
  .amdhsa_next_free_vgpr {acc + self.agpr}
  .amdhsa_next_free_sgpr {self.sgpr}
  .amdhsa_accum_offset {acc}
  .amdhsa_group_segment_fixed_size 0
  .amdhsa_kernarg_size 72
  .amdhsa_user_sgpr_count 2
  .amdhsa_user_sgpr_kernarg_segment_ptr 1
  .amdhsa_system_sgpr_workgroup_id_x 1
.end_amdhsa_kernel
"""
```

```python
from mcommon import *
OOB = 0x40000000

def m_att(k, opt=(), D=3, POS=(0, 5, 15, 24, 30, 36, 42), NS=3):
    L = lambda n: k.lab("a" + n)
    SA, SB, PA, PB, OA, OBR, MA, MB = 0, 32, 64, 80, 96, 112, 128, 144
    K0, K1, K4, VV, QA, QA4, QBR, QB4 = 160, 164, 168, 170, 186, 190, 192, 196
    _, _, L16B, L8, LV, AK, AK4, AV, AOT, _, t = range(198, 209)
    GS = 20480
    k(f"{L('top')}:")
    k.stamp(0)
    k(f"""
    s_mov_b32 s60, s62
    s_mul_i32 s61, s{NL}, {OSZ}
    s_add_u32 s61, s61, {hx(OS[0])}
    s_and_b32 s6, s2, 3
    s_lshl_b32 s6, s6, 3
    s_and_b32 s7, s2, 4
    s_add_u32 s6, s6, s7
    s_bfe_u32 s7, s2, 0x20003
    s_add_u32 s6, s6, s7
    s_lshr_b32 s7, s2, 5
    s_lshl_b32 s16, s7, 2
    s_add_u32 s16, s16, s3
    s_lshl_b32 s16, s16, 1
    s_mul_i32 s17, s6, 163840
    s_add_u32 s17, s17, s60
    s_add_u32 s17, s17, {hx(QSZ)}
    s_mul_i32 s18, s6, 81920
    s_mul_i32 s19, s16, 1280
    s_add_u32 s18, s18, s19
    s_add_u32 s18, s18, s60
    s_mul_i32 s19, s3, 5120
    v_add_u32 v{L16B}, 4096, v{L16}
    v_and_b32 v{t}, 31, v{LN}
    v_lshlrev_b32 v{t+1}, 3, v{t}
    s_mov_b32 s20, s19
    s_mov_b32 m0, s19
    s_lshr_b32 s21, s6, 1
    s_lshl_b32 s21, s21, 4
    """)
    srd(k, 8, 4, "s17", 163840)
    srd(k, 12, 4, "s18", 2560)
    wait_setup(k, 21, 15, t+4)
    wait(k, t+4)
    k.stamp(1)
    def dma(i):
        if i < 4: return f"buffer_load_dwordx4 v{L16}, s[8:11], s20 offen offset:{i*1024} sc1 lds"
        return f"buffer_load_dwordx4 v{L16B}, s[8:11], s20 offen sc1 lds"
    for i in range(3): k(dma(i))
    k(f"""
    buffer_load_dwordx4 v[{QA}:{QA+3}], v{L16}, s[12:15], 0 offen sc1
    buffer_load_dwordx2 v[{QA4}:{QA4+1}], v{t+1}, s[12:15], 0 offen offset:1024 sc1
    buffer_load_dwordx4 v[{QBR}:{QBR+3}], v{L16}, s[12:15], 0 offen offset:1280 sc1
    buffer_load_dwordx2 v[{QB4}:{QB4+1}], v{t+1}, s[12:15], 0 offen offset:2304 sc1
    """)
    k(dma(3)); k("s_add_u32 m0, m0, 4096"); k(dma(4))
    for g in range(1, NS-1):
        k(f"s_add_u32 s20, s20, {GS}\ns_mov_b32 m0, s20")
        for i in range(4): k(dma(i))
        k("s_add_u32 m0, m0, 4096"); k(dma(4))
    k(f"""
    s_add_u32 s20, s20, {GS}
    s_add_u32 s23, s19, {(7+NS)*GS}
    s_mov_b32 s46, s20
    s_add_u32 s47, s19, {NS*GS}
    s_mov_b32 s21, {GS}
    s_mov_b32 s44, 0xfffff
    s_mov_b32 s45, 0xfffff
    v_lshlrev_b32 v{L8}, 3, v{LN}
    v_lshrrev_b32 v{t+2}, 5, v{LN}
    v_mad_u32_u24 v{LV}, v{t+2}, 20, v{t}
    v_lshlrev_b32 v{LV}, 4, v{LV}
    v_mov_b32 v{AK}, v{L16}
    v_mov_b32 v{AK4}, v{L8}
    v_mov_b32 v{AV}, v{LV}
    s_mul_i32 s28, s16, 40960
    s_add_u32 s28, s28, s61
    """)
    srd(k, 24, 4, "s28", 2*40960)
    k(f"""
    s_lshl_b32 s29, s6, 10
    s_lshr_b32 s30, s6, 2
    s_add_u32 s30, s30, 32
    s_lshl_b32 s30, s30, 10
    s_bfe_u32 s31, s6, 0x10001
    s_lshl_b32 s31, s31, 9
    s_add_u32 s30, s30, s31
    s_and_b32 s31, s6, 1
    s_lshl_b32 s31, s31, 3
    s_add_u32 s30, s30, s31
    s_add_u32 s32, s29, 40960
    s_add_u32 s33, s30, 40960
    v_lshl_add_u32 v{AOT}, v{t+2}, 30, v{L16}
    """)
    if "allones" in opt:
        for r in range(16): k(f"v_mov_b32 v{VV+r}, 0x3f803f80")
    else:
        k(f"v_and_b32 v{t+3}, 27, v{LN}\nv_cmp_eq_u32 vcc, 24, v{t+3}\nv_mov_b32 v{t+3}, 0x3f803f80\nv_cndmask_b32 v{VV}, 0, v{t+3}, vcc\nv_mov_b32 v{VV+1}, v{VV}")
        for r in range(2, 16, 2): k(f"v_mov_b64 v[{VV+r}:{VV+r+1}], v[{VV}:{VV+1}]")
    for r in range(PB, PB+48, 2): k(f"v_mov_b64 v[{r}:{r+1}], 0")
    def qk(S, Q, Q4, C):
        c = (lambda: 0) if C is None else (lambda: f"v[{C}:{C+15}]")
        return [f"v_mfma_f32_32x32x16_bf16 v[{S}:{S+15}], v[{K0}:{K0+3}], v[{Q}:{Q+3}], {c()}",
                f"v_mfma_f32_32x32x16_bf16 v[{S+16}:{S+31}], v[{K1}:{K1+3}], v[{Q}:{Q+3}], {c()}",
                f"v_mfma_f32_32x32x4_2b_bf16 v[{S}:{S+31}], v[{K4}:{K4+1}], v[{Q4}:{Q4+1}], v[{S}:{S+31}]"]
    def pv(O, P, m):
        return f"v_mfma_f32_32x32x16_bf16 v[{O}:{O+15}], v[{VV+4*m}:{VV+4*m+3}], v[{P+4*m}:{P+4*m+3}], v[{O}:{O+15}]"
    def kread(o):
        return [f"ds_read_b128 v[{K0}:{K0+3}], v{AK} offset:{o}",
                f"ds_read_b128 v[{K1}:{K1+3}], v{AK} offset:{o+1024}",
                f"ds_read_b64 v[{K4}:{K4+1}], v{AK4} offset:{o+2048}"]
    def vread(o):
        return (["s_andn2_b64 exec, s[44:45], 0x40000000"]
                + [f"ds_read_b128 v[{VV+4*m}:{VV+4*m+3}], v{AV} offset:{o+2560+640*m}" for m in range(4)]
                + ["s_mov_b64 exec, -1"])
    def maxchain(S, d, init):
        for j in range(16):
            if j == 0 and init: k(f"v_max_f32 v{d}, v{S}, v{S+1}")
            else: k(f"v_max3_f32 v{d}, v{S+2*j}, v{S+2*j+1}, v{d}")
    def setm(d, M, bias):
        k(f"""
        v_mov_b32 v{d+1}, v{d}
        v_permlane32_swap_b32 v{d+1}, v{d}
        v_max_f32 v{d}, v{d}, v{d+1}
        v_sub_f32 v{M}, {bias}, v{d}
        v_sub_f32 v{M+1}, {bias}, v{d}
        """)
        for r in range(M+2, M+16, 2): k(f"v_mov_b64 v[{r}:{r+1}], v[{M}:{M+1}]")
    def valu_seq(S, P):
        e = lambda i: f"v_exp_f32 v{S+i}, v{S+i}"
        c = lambda j: f"v_cvt_pk_bf16_f32 v{P+j}, v{S+2*j}, v{S+2*j+1}"
        seq = [e(0), e(1)]
        for j in range(14): seq += [e(2*j+2), c(j), e(2*j+3)]
        return seq + [e(30), e(31), c(14), c(15)]
    POS = list(POS)
    cv = lambda S, P, j: f"v_cvt_pk_bf16_f32 v{P+j}, v{S+2*j}, v{S+2*j+1}"
    NC = [j for j in range(16) if 2*j+1+D > 31]
    def rot_seq(S, P, S2, P2):
        seq = []
        for i in range(32):
            seq.append(f"v_exp_f32 v{S+i}, v{S+i}")
            j2 = i - 1 - D
            if j2 % 2 == 0:
                j = j2 // 2
                seq.append(cv(S, P, j) if j >= 0 else cv(S2, P2, 16 + j))
        return seq
    def phase(S, P, mfs, after, before={}):
        seq = rot_seq(S, P, SA + SB - S, PA + PB - P)
        assert all(f"v{SA+SB-S+31}" not in x for x in seq[POS[1]:])
        for i, x in enumerate(seq):
            if i in POS:
                j = POS.index(i)
                for y in before.get(j, []): k(y)
                if not (("noqk4" in opt and j == 2) or ("nopv" in opt and j >= 3)): k(mfs[j])
                for y in after.get(j, []): k(y)
            k(x)
    k(f"s_waitcnt vmcnt({2+5*(NS-2)})\ns_barrier")
    k.stamp(2)
    for x in kread(0): k(x)
    k("s_waitcnt lgkmcnt(0)")
    qa, qb = qk(SA, QA, QA4, None), qk(SB, QBR, QB4, None)
    for x in (qa[0], qa[1], qb[0], qb[1], qa[2], qb[2]): k(x)
    maxchain(SA, t, True); setm(t, MA, hx(f2u(-32.0)))
    qa = qk(SA, QA, QA4, MA)
    k(qa[0]); k(qa[1])
    maxchain(SB, t+2, True)
    k(qa[2])
    setm(t+2, MB, hx(f2u(-32.0)))
    for j in NC: k(f"v_mov_b64 v[{SB+2*j}:{SB+2*j+1}], 0")
    k(f"s_waitcnt vmcnt({5*(NS-2)})\ns_barrier\ns_nop 1")
    k.stamp(3)
    k(f".p2align 6\n{L('loop')}:")
    for j in range(4):
        kr = kread((j+1) % 4 * 5120)
        aft = {0: [kr[0]], 1: [kr[1]], 2: [kr[2]], 5: ["s_waitcnt lgkmcnt(0)"], 6: vread(j*5120)}
        if j == 0:
            aft[3] = [f"s_add_u32 s22, s21, {GS}"]
        if j == 3:
            aft[3] = [dma(0)]; aft[4] = [dma(1)]
        phase(SA, PA, qk(SB, QBR, QB4, MB) + [pv(OBR, PB, m) for m in range(4)], aft)
        aft = {}; bef = {3: ["s_waitcnt lgkmcnt(0)"]}
        if j == 0: aft[0] = [f"s_cmp_eq_u32 s22, {NS*GS}"]; aft[1] = ["s_cselect_b32 s22, 0, s22"]
        if j == 1:
            aft[0] = ["s_mov_b32 m0, s46"]; aft[1] = [f"s_add_u32 s46, s46, {GS}"]
            aft[4] = ["s_cmp_eq_u32 s46, s47"]; aft[5] = ["s_cselect_b32 s46, s19, s46"]
        if j == 2:
            aft[3] = [f"v_add_u32 v{AK}, s21, v{L16}"]; aft[4] = [f"v_add_u32 v{AK4}, s21, v{L8}"]
            aft[5] = [f"s_waitcnt vmcnt({5*(NS-3)})"]; aft[6] = ["s_barrier"]
        if j == 3:
            aft[0] = [dma(2)]; aft[1] = [dma(3)]
            aft[2] = [f"v_add_u32 v{AV}, s21, v{LV}"]
            aft[3] = ["s_add_u32 m0, m0, 4096"]; aft[4] = ["s_and_b32 s21, s22, 0xffffff", dma(4)]
            aft[5] = [f"s_add_u32 s20, s20, {GS}"]; aft[6] = ["s_cmp_lg_u32 s20, s23"]
        phase(SB, PB, qk(SA, QA, QA4, MA) + [pv(OA, PA, m) for m in range(4)], aft, bef)
    i0 = k.L.index(L("loop") + ":") + 1
    for o in opt:
        if o.startswith("-"): k.L[i0:] = [x for x in k.L[i0:] if o[1:] not in x]
    k(f"s_cbranch_scc1 {L('loop')}")
    for m in range(4):
        k(pv(OBR, PB, m))
        if m == 0:
            for j in NC: k(cv(SB, PB, j))
    k("s_waitcnt vmcnt(0)")
    k.stamp(4)
    BIG = hx(f2u(2.0**64))
    k(f"""
    v_cmp_ngt_f32 vcc, {BIG}, v{OA+12}
    s_cbranch_vccnz {L('slow')}
    v_cmp_ngt_f32 vcc, {BIG}, v{OBR+12}
    s_cbranch_vccnz {L('slow')}
    {L('fin')}:
    """)
    for O, P, s0, s1 in ((OA, PA, 29, 30), (OBR, PB, 32, 33)):
        k(f"v_rcp_f32 v{t}, v{O+12}")
        for j in range(6): k(f"v_pk_mul_f32 v[{O+2*j}:{O+2*j+1}], v[{O+2*j}:{O+2*j+1}], v[{t}:{t+1}] op_sel_hi:[1,0]")
        for j in range(6): k(f"v_cvt_pk_bf16_f32 v{P+j}, v{O+2*j}, v{O+2*j+1}")
        k(f"buffer_store_dwordx4 v[{P}:{P+3}], v{L16}, s[24:27], s{s0} offen sc1")
        k(f"buffer_store_dwordx2 v[{P+4}:{P+5}], v{AOT}, s[24:27], s{s1} offen sc1")
    k("s_lshl_b32 s7, s7, 5\ns_add_u32 s6, s6, s7")
    k.stamp(5)
    publish(k, 6, t, 6)
    k(f"s_branch {k.lab('otop')}")
    def gk():
        k(f"""
        buffer_load_dwordx4 v[{K0}:{K0+3}], v{L16}, s[8:11], s20 offen sc1
        buffer_load_dwordx4 v[{K1}:{K1+3}], v{L16}, s[8:11], s20 offen offset:1024 sc1
        buffer_load_dwordx2 v[{K4}:{K4+1}], v{L8}, s[8:11], s20 offen offset:2048 sc1
        """)
    k(f"""
    {L('slow')}:
    s_waitcnt vmcnt(0) lgkmcnt(0)
    s_mov_b32 s20, 0
    v_mov_b32 v{t}, 0xff800000
    v_mov_b32 v{t+2}, 0xff800000
    {L('slow1')}:
    """)
    gk()
    k("s_waitcnt vmcnt(0)")
    for x in qk(SA, QA, QA4, None) + qk(SB, QBR, QB4, None): k(x)
    maxchain(SA, t, False); maxchain(SB, t+2, False)
    k(f"""
    s_add_u32 s20, s20, 5120
    s_cmp_lg_u32 s20, 163840
    s_cbranch_scc1 {L('slow1')}
    s_mov_b32 s20, 0
    v_add_u32 v{AV}, 2560, v{LV}
    """)
    setm(t, MA, 0); setm(t+2, MB, 0)
    for r in range(OA, OA+32, 2): k(f"v_mov_b64 v[{r}:{r+1}], 0")
    k(f"{L('slow2')}:")
    gk()
    k("s_mov_b64 exec, s[44:45]")
    for m in range(4): k(f"buffer_load_dwordx4 v[{VV+4*m}:{VV+4*m+3}], v{AV}, s[8:11], s20 offen offset:{640*m} sc1")
    k("s_mov_b64 exec, -1\ns_waitcnt vmcnt(0)")
    for x in qk(SA, QA, QA4, MA) + qk(SB, QBR, QB4, MB): k(x)
    for x in valu_seq(SA, PA) + valu_seq(SB, PB): k(x)
    for m in range(4): k(pv(OA, PA, m)); k(pv(OBR, PB, m))
    k(f"""
    s_add_u32 s20, s20, 5120
    s_cmp_lg_u32 s20, 163840
    s_cbranch_scc1 {L('slow2')}
    s_nop 15
    s_branch {L('fin')}
    """)
```

```python
from common import *
OOB = 0x40000000
LN, L16, RES = 252, 253, 240
EP = 100
PH, NL, DO = 96, 97, 98
WOL = 61440
FS = 7
def publish(k, slot, t, j):
    n = f"pub{len(k.L)}"
    k(f"""
    s_lshl_b32 s22, s{PH}, {8+FS}
    s_lshl_b32 s23, s{slot}, {FS}
    s_add_u32 s22, s22, s23
    s_add_u32 s22, s22, {hx(FLG - (256 << FS))}
    v_mov_b32 v{t}, 0
    s_waitcnt vmcnt(0)
    s_barrier
    s_cmp_lg_u32 s3, 0
    s_cbranch_scc1 {k.lab(n)}
    s_mov_b64 exec, 1
    buffer_store_dword v{t}, v{t}, s[56:59], s22 offen sc1
    s_mov_b64 exec, -1
    {k.lab(n)}:
    """)
    k.prof_end(3, j, PH)
    if K.PROF: srd(k, 56, 4, 0, WSEND)
    k(f"s_add_u32 s{PH}, s{PH}, 1")
def wait_setup(k, slot, mask, t):
    k(f"""
    s_lshl_b32 s22, s{PH}, {8+FS}
    s_lshl_b32 s23, s{slot}, {FS}
    s_add_u32 s22, s22, s23
    s_add_u32 s22, s22, {hx(FLG - (512 << FS))}
    v_and_b32 v{t}, {mask}, v{LN}
    v_lshlrev_b32 v{t}, {FS}, v{t}
    s_mov_b32 s23, 0x40000
    """)
def wait(k, t):
    n = f"poll{len(k.L)}"
    k(f"""
    {k.lab(n)}:
    buffer_load_dword v{t+1}, v{t}, s[56:59], s22 offen sc1
    s_sub_u32 s23, s23, 1
    s_cbranch_scc1 {k.lab(n+'x')}
    s_waitcnt vmcnt(0)
    v_cmp_ne_u32 vcc, 0, v{t+1}
    s_cbranch_vccnz {k.lab(n)}
    {k.lab(n+'x')}:
    """)
def qkv_map(k, cg, rb, t):
    k(f"""
    s_and_b32 s{cg}, s2, 3
    s_lshl_b32 s{cg}, s{cg}, 2
    s_bfe_u32 s{rb}, s2, 0x20003
    s_add_u32 s{cg}, s{cg}, s{rb}
    s_bfe_u32 s{rb}, s2, 0x10002
    s_lshl_b32 s{rb}, s{rb}, 3
    s_lshr_b32 s{t}, s2, 5
    s_add_u32 s{rb}, s{rb}, s{t}
    """)
def op_map(k, cg, rb, t):
    k(f"""
    s_and_b32 s{cg}, s2, 1
    s_lshl_b32 s{cg}, s{cg}, 2
    s_bfe_u32 s{rb}, s2, 0x20003
    s_add_u32 s{cg}, s{cg}, s{rb}
    s_bfe_u32 s{rb}, s2, 0x20001
    s_lshl_b32 s{rb}, s{rb}, 3
    s_lshr_b32 s{t}, s2, 5
    s_add_u32 s{rb}, s{rb}, s{t}
    """)
def wpre_setup(k, odd):
    k(f"s_cselect_b32 s17, {hx(WB)}, {hx(WA)}" if odd is None else f"s_mov_b32 s17, {hx(WB if odd else WA)}")
    qkv_map(k, 48, 49, 50)
    k("s_mul_i32 s48, s48, 163840\ns_add_u32 s17, s17, s48\ns_lshl_b32 s49, s3, 12")
    srd(k, 8, 4, "s17", 163840)
def wpre_loads():
    r = []
    for G in range(3):
        for i in range(4):
            pre = [f"s_add_u32 s50, s49, {G*16384}", "s_mov_b32 m0, s50"] if i == 0 else []
            r.append((f"buffer_load_dwordx4 v{L16}, s[8:11], s50 offen offset:{i*1024} sc1 lds", pre))
    return r
```

```python
from mcommon import *
OOB = 0x40000000

def m_op(k):
    L = lambda n: k.lab("o" + n)
    X, Y, HA, HB, OF, WF, RF = 0, 16, 32, 48, 64, 144, RES
    AX, AY, AH, AS, AR, AO, AOH, ASQ, t = range(178, 187)
    k(f"{L('top')}:")
    k.stamp(0)
    op_map(k, 6, 7, 16)
    k(f"""
    s_and_b32 s34, s3, 1
    s_lshr_b32 s35, s3, 1
    s_lshl_b32 s16, s7, 1
    s_add_u32 s16, s16, s34
    s_mul_i32 s36, s16, 40960
    s_mul_i32 s18, s{NL}, {OSZ}
    s_add_u32 s18, s18, s36
    s_add_u32 s18, s18, {hx(OS[0])}
    s_mul_i32 s21, s35, 20480
    s_bitcmp1_b32 s{NL}, 0
    s_cselect_b32 s19, 31, 15
    s_lshl_b32 s20, s7, 3
    s_andn2_b32 s20, s20, s19
    """)
    srd(k, 12, 4, "s18", 40960)
    wait_setup(k, 20, "s19", t)
    wait(k, t)
    k.stamp(1)
    for c in range(5):
        for i in range(4):
            k(f"buffer_load_dwordx4 v[{OF+16*c+4*i}:{OF+16*c+4*i+3}], v{L16}, s[12:15], s21 offen offset:{i*1024} sc1")
        if c < 4: k("s_add_u32 s21, s21, 4096")
        if c == 0:
            k(f"""
            s_mul_i32 s22, s35, 51200
            s_add_u32 s22, s22, {WOL}
            v_add_u32 v{AH}, s22, v{L16}
            s_lshl_b32 s22, s35, 10
            v_add_u32 v{AY}, s22, v{AH}
            s_xor_b32 s22, s22, 1024
            v_add_u32 v{AX}, s22, v{AH}
            """)
    loads = wpre_loads()
    n = [20]
    def issue():
        if loads:
            x, pre = loads.pop(0)
            for s in pre: k(s)
            k(x); n[0] += 1
    k(f"s_bitcmp0_b32 s{NL}, 0")
    wpre_setup(k, None)
    k(f"""
    s_mul_i32 s37, s6, 5
    s_lshl_b32 s38, s35, 1
    s_add_u32 s38, s38, s37
    s_add_u32 s37, s37, 4
    s_mul_i32 s22, s3, 6144
    s_add_u32 s22, s22, {WOL}
    v_add_u32 v{AS}, s22, v{L16}
    s_xor_b32 s22, s3, 2
    s_mul_i32 s22, s22, 6144
    s_add_u32 s22, s22, {WOL}
    v_add_u32 v{AR}, s22, v{L16}
    s_mov_b32 s42, 0x3f80
    s_mov_b32 s43, 0x3f800000
    s_lshl_b32 s41, s35, 30
    s_cmp_eq_u32 s35, 0
    s_cselect_b32 s45, s43, 0
    v_and_b32 v{t}, 31, v{LN}
    s_mov_b32 s31, 0x20000
    s_cmp_eq_u32 s{NL}, 3
    s_cbranch_scc1 {L('fin')}
    s_mul_i32 s33, s16, {XT}
    s_mul_i32 s20, s{NL}, {XSZ}
    s_add_u32 s20, s20, s33
    s_add_u32 s20, s20, {hx(XS[1])}
    s_add_u32 s28, s4, s20
    s_addc_u32 s29, s5, 0
    s_mov_b32 s30, {XT}
    v_mov_b32 v{AO}, v{L16}
    v_lshlrev_b32 v{ASQ}, 2, v{t}
    s_lshl_b32 s39, s38, 10
    s_add_u32 s44, s39, 1024
    s_lshl_b32 s40, s37, 10
    s_lshl_b32 s32, s6, 1
    s_add_u32 s32, s32, s35
    s_lshl_b32 s32, s32, 7
    s_add_u32 s32, s32, 40960
    s_branch {L('go')}
    {L('fin')}:
    s_mov_b64 s[28:29], s[{DO}:{DO+1}]
    s_mov_b32 s30, {2048*1280}
    v_mul_u32_u24 v{AO}, 1280, v{t}
    v_lshrrev_b32 v{t}, 5, v{LN}
    v_lshl_add_u32 v{AO}, v{t}, 4, v{AO}
    v_mov_b32 v{ASQ}, {hx(OOB)}
    s_lshl_b32 s39, s38, 5
    s_add_u32 s39, s39, s36
    s_add_u32 s44, s39, 32
    s_lshl_b32 s40, s37, 5
    s_add_u32 s40, s40, s36
    s_mov_b32 s32, 0
    {L('go')}:
    v_add_u32 v{AOH}, s41, v{AO}
    """)
    def rd(p, j):
        a, o = [(AH, 4096), (AX, 0), (AY, 0), (AX, 2048), (AY, 2048)][j]
        return f"ds_read_b128 v[{WF+4*j}:{WF+4*j+3}], v{a} offset:{p*5120 + o}"
    def mf(d, j, ks, first):
        a = f"v[{d}:{d+15}]"
        return f"v_mfma_f32_32x32x16_bf16 {a}, v[{WF+4*j}:{WF+4*j+3}], v[{OF+4*ks}:{OF+4*ks+3}], {0 if first else a}"
    for j in range(5): k(rd(0, j))
    for p in range(10):
        last = p == 9
        k(f"s_waitcnt vmcnt({n[0] - 2*p - 2}) lgkmcnt(4)")
        if p == 0: k.stamp(2)
        if p == 6: k("s_barrier")
        k(mf(HA, 0, 2*p, p == 0))
        k(mf(HB, 0, 2*p+1, p == 0))
        if not last: k(rd(p+1, 0))
        for j in range(1, 5):
            k(f"s_waitcnt lgkmcnt({4 - j if last else 4})")
            k(mf(X if j % 2 else Y, j, 2*p + (j-1)//2, p == 0 and j < 3))
            if not last: k(rd(p+1, j))
            if j in (1, 3): issue()
            if last and j == 3:
                for i in range(4): k(f"v_pk_add_f32 v[{HA+2*i}:{HA+2*i+1}], v[{HA+2*i}:{HA+2*i+1}], v[{HB+8+2*i}:{HB+9+2*i}]")
    assert not loads
    k.stamp(3)
    for i in range(2): k(f"ds_write_b128 v{AS}, v[{HA+4*i}:{HA+4*i+3}] offset:{4096 + i*1024}")
    for i in range(8): k(f"v_dot2_f32_bf16 v{HB+i}, v{RF+8+i//2}, s{42+i%2}, v{HA+i}")
    for i in range(4): k(f"ds_write_b128 v{AS}, v[{X+4*i}:{X+4*i+3}] offset:{i*1024}")
    for i in range(16): k(f"v_dot2_f32_bf16 v{Y+i}, v{RF+i//2}, s{42+i%2}, v{Y+i}")
    k("s_waitcnt lgkmcnt(0)\ns_barrier")
    for i in range(6): k(f"ds_read_b128 v[{OF+4*i}:{OF+4*i+3}], v{AR} offset:{i*1024}")
    for f in range(3):
        own = Y + 8*f if f < 2 else HB
        k(f"s_waitcnt lgkmcnt({4-2*f})")
        for i in range(4): k(f"v_pk_add_f32 v[{own+2*i}:{own+2*i+1}], v[{own+2*i}:{own+2*i+1}], v[{OF+8*f+2*i}:{OF+8*f+2*i+1}]")
        for i in range(4): k(f"v_cvt_pk_bf16_f32 v{RF+4*f+i}, v{own+2*i}, v{own+2*i+1}")
        k(f"buffer_store_dwordx4 v[{RF+4*f}:{RF+4*f+3}], v{AOH if f == 2 else AO}, s[28:31], s{(39, 44, 40)[f]} offen sc1")
    for i in range(4):
        for f in range(3): k(f"v_dot2_f32_bf16 v{t+f}, v{RF+4*f+i}, v{RF+4*f+i}, {f'v{t+f}' if i else 0}")
    k(f"""
    v_add_f32 v{t}, v{t}, v{t+1}
    v_fma_f32 v{t}, v{t+2}, s45, v{t}
    v_mov_b32 v{t+1}, v{t}
    v_permlane32_swap_b32 v{t+1}, v{t}
    v_add_f32 v{t}, v{t}, v{t+1}
    buffer_store_dword v{t}, v{ASQ}, s[28:31], s32 offen sc1
    s_lshl_b32 s7, s7, 3
    s_add_u32 s6, s6, s7
    """)
    k.stamp(4)
    publish(k, 6, t, 5)
    k(f"s_add_u32 s{NL}, s{NL}, 1\ns_cmp_lg_u32 s{NL}, 4\ns_cbranch_scc1 {k.lab('qtop')}")
```

```python
from mcommon import *
LOG2E = 1.4426950408889634
OOB = 0x40000000

def m_qkv(k):
    SQ, ASQ = 180, 163
    L = lambda n: k.lab("q" + n)
    ACC, WF, XR = 0, 64, 80
    LW, SS, T0 = 146, 147, 148
    TID, HH, TOK = 160, 161, 162
    E0 = 164
    k(f"{L('top')}:")
    k.stamp(0)
    qkv_map(k, 6, 7, 16)
    k(f"""
    s_lshl_b32 s16, s7, 2
    s_add_u32 s16, s16, s3
    s_mul_i32 s18, s16, {XT}
    s_mul_i32 s19, s{NL}, {XSZ}
    s_add_u32 s18, s18, s19
    s_add_u32 s18, s18, {hx(X0)}
    s_lshr_b32 s20, s16, 1
    s_lshl_b32 s20, s20, 3
    """)
    srd(k, 12, 4, "s18", XT)
    wait_setup(k, 20, 7, T0)
    k(f"s_cmp_eq_u32 s{NL}, 0\ns_cbranch_scc1 {L('go')}")
    wait(k, T0)
    k(f"{L('go')}:")
    k.stamp(1)
    def xload(G, i):
        ks = 4*G + i
        return f"buffer_load_dwordx4 v[{XR+4*(ks%16)}:{XR+4*(ks%16)+3}], v{L16}, s[12:15], s21 offen offset:{i*1024} sc1"
    def wload(G, i):
        return f"buffer_load_dwordx4 v{LW}, s[8:11], s20 offen offset:{i*1024} lds"
    def gsetup(G):
        r = [f"s_add_u32 m0, s19, {(G%4)*16384}"]
        if G: r += [f"s_mov_b32 s20, {G*16384}", f"s_mov_b32 s21, {G*4096}"]
        return r
    for G in range(3):
        k(f"s_mov_b32 s21, {G*4096}")
        for i in range(4): k(xload(G, i))
    srd(k, 24, 4, 0, WSEND)
    op_map(k, 52, 53, 54)
    k(f"""
    s_lshl_b32 s19, s3, 12
    v_add_u32 v{LW}, s19, v{L16}
    s_lshl_b32 s53, s3, 6
    v_add_u32 v{TID}, s53, v{LN}
    s_lshr_b32 s53, s{NL}, 1
    s_mul_i32 s62, s{NL}, {OSZ}
    s_add_u32 s62, s62, {hx(OS[0])}
    s_mul_i32 s61, s53, {QSZ+KVSZ}
    s_add_u32 s61, s61, {hx(QS[0])}
    s_mul_i32 s63, s53, {KVPSZ}
    s_add_u32 s63, s63, {hx(KVP0)}
    s_mul_i32 s52, s52, 102400
    s_bitcmp1_b32 s{NL}, 0
    s_cselect_b32 s62, s61, s62
    s_cselect_b32 s63, 0, s63
    s_cselect_b32 s53, {WOSZ}, 0
    s_add_u32 s52, s52, s53
    s_add_u32 s52, s52, {hx(WOA)}
    s_mul_i32 s53, s3, 25600
    s_add_u32 s53, s53, {6*4096}
    """)
    srd(k, 48, 4, "s52", 102400)
    k(f"""
    v_lshrrev_b32 v{HH}, 5, v{LN}
    v_and_b32 v{TOK}, 31, v{LN}
    v_lshlrev_b32 v{ASQ}, 10, v{HH}
    v_lshl_add_u32 v{ASQ}, v{TOK}, 2, v{ASQ}
    s_cmp_lg_u32 s63, 0
    s_cbranch_scc1 {L('proA')}
    """)
    t = T0
    if True:
        AQ, AQT, AK, AKT, AVW, AVR, AVS = E0, E0+1, E0+2, E0+3, E0+4, E0+5, E0+8
        k(f"""
        v_mul_u32_u24 v{t}, {hx(81920)}, v{HH}
        v_lshl_add_u32 v{AQ}, v{TOK}, 4, v{t}
        v_lshl_add_u32 v{AQT}, v{TOK}, 3, v{t}
        v_lshlrev_b32 v{t}, 1, v{t}
        v_lshl_add_u32 v{AK}, v{TOK}, 4, v{t}
        v_lshl_add_u32 v{AKT}, v{TOK}, 3, v{t}
        s_mul_i32 s28, s6, {2*81920}
        s_mul_i32 s29, s16, 1280
        s_add_u32 s28, s28, s29
        s_add_u32 s28, s28, s62
        s_mul_i32 s29, s6, {2*163840}
        s_lshr_b32 s30, s16, 1
        s_mul_i32 s30, s30, 5120
        s_add_u32 s29, s29, s30
        s_add_u32 s29, s29, s62
        s_add_u32 s29, s29, {hx(QSZ)}
        s_and_b32 s33, s16, 1
        s_lshl_b32 s30, s33, 10
        s_add_u32 s30, s30, s29
        s_lshl_b32 s31, s33, 8
        s_add_u32 s31, s31, s29
        s_mul_i32 s32, s33, 1280
        s_add_u32 s32, s32, s29
        v_mul_u32_u24 v{AVW}, 40, v{LN}
        v_add_u32 v{AVW}, s19, v{AVW}
        v_lshrrev_b32 v{t}, 4, v{LN}
        v_and_b32 v{t+1}, 3, v{LN}
        v_lshl_add_u32 v{t}, v{t}, 2, v{t+1}
        v_bfe_u32 v{t+1}, v{LN}, 2, 2
        """)
        for p in range(3):
            k(f"v_add_u32 v{t+2}, {16*p}, v{t}")
            vdiv(k, t+3, t+2, 5, 48)
            k(f"""
            v_mul_u32_u24 v{t+4}, 5, v{t+3}
            v_sub_u32 v{t+4}, v{t+2}, v{t+4}
            v_lshrrev_b32 v{t+5}, 1, v{t+3}
            v_lshl_add_u32 v{t+5}, v{t+5}, 4, v{t+1}
            v_and_b32 v{t+3}, 1, v{t+3}
            v_lshl_add_u32 v{t+5}, v{t+3}, 2, v{t+5}
            v_mul_u32_u24 v{t+5}, 40, v{t+5}
            v_lshl_add_u32 v{t+5}, v{t+4}, 3, v{t+5}
            v_add_u32 v{AVR+p}, s19, v{t+5}
            """)
        k(f"""
        v_mov_b32 v{AVS}, v{L16}
        v_cmp_gt_u32 vcc, 16, v{LN}
        v_add_u32 v{t}, 1024, v{L16}
        v_add_u32 v{t+1}, {hx(163840 - 256)}, v{L16}
        v_cndmask_b32 v{AVS+1}, v{t+1}, v{t}, vcc
        v_cmp_gt_u32 vcc, 32, v{LN}
        v_add_u32 v{t}, {hx(163840 + 768)}, v{L16}
        v_mov_b32 v{t+1}, {hx(OOB)}
        v_cndmask_b32 v{AVS+2}, v{t+1}, v{t}, vcc
        s_branch {L('main')}
        {L('proA')}:
        """)
    if True:
        KVS, RR = 32768, 57344
        AW, ATA, ATB, APM, APT, AG, ARW, ARM, ART, AOT = range(E0, E0+10)
        k(f"""
        s_lshl_b32 s28, s3, 5
        v_lshl_add_u32 v{t}, v{HH}, 7, v{TOK}
        v_add_u32 v{t}, s28, v{t}
        v_mul_u32_u24 v{AW}, 96, v{t}
        v_bfe_u32 v{t}, v{LN}, 2, 2
        v_lshl_add_u32 v{t}, v{HH}, 3, v{t}
        s_lshl_b32 s28, s3, 7
        v_add_u32 v{t}, s28, v{t}
        v_mul_u32_u24 v{t}, 96, v{t}
        v_bfe_u32 v{t+1}, v{LN}, 4, 1
        v_and_b32 v{t+2}, 1, v{LN}
        v_bfe_u32 v{t+3}, v{LN}, 1, 1
        v_lshl_add_u32 v{t+2}, v{t+2}, 1, v{t+3}
        v_lshl_add_u32 v{t+2}, v{t+1}, 2, v{t+2}
        v_min_u32 v{t+2}, 4, v{t+2}
        v_lshl_add_u32 v{ATA}, v{t+2}, 3, v{t}
        v_and_b32 v{t+2}, 3, v{LN}
        v_lshl_add_u32 v{t+2}, v{t+1}, 2, v{t+2}
        v_min_u32 v{t+2}, 5, v{t+2}
        v_lshl_add_u32 v{ATB}, v{t+2}, 3, v{t}
        v_min_u32 v{t}, 20, v{TOK}
        v_mad_u32_u24 v{t+1}, v{HH}, 21, v{t}
        v_lshlrev_b32 v{ARM}, 4, v{t+1}
        v_lshlrev_b32 v{ART}, 3, v{t+1}
        v_mov_b32 v{t+2}, {hx(OOB)}
        s_mul_i32 s28, s3, 672
        s_mul_i32 s29, s3, 168
        v_add_u32 v{t}, s28, v{ARM}
        v_cmp_gt_u32 vcc, 21, v{TOK}
        v_add_u32 v{t+1}, s29, v{ART}
        v_cndmask_b32 v{APM}, v{t+2}, v{t}, vcc
        v_cmp_gt_u32 vcc, 21, v{LN}
        v_lshlrev_b32 v{ARW}, 3, v{TID}
        v_cndmask_b32 v{APT}, v{t+2}, v{t+1}, vcc
        v_cmp_gt_u32 vcc, 210, v{TID}
        s_lshl_b32 s30, s6, 15
        s_add_u32 s30, s30, s63
        v_cndmask_b32 v{AG}, v{t+2}, v{ARW}, vcc
        s_lshl_b32 s31, s7, 11
        s_add_u32 s31, s31, s30
        s_and_b32 s32, s6, 1
        s_lshl_b32 s32, s32, 9
        v_cmp_gt_u32 vcc, 32, v{LN}
        v_add_u32 v{t}, s32, v{L16}
        s_mul_i32 s32, s16, 40960
        s_add_u32 s32, s32, s62
        v_cndmask_b32 v{AOT}, v{t+2}, v{t}, vcc
        s_lshr_b32 s33, s6, 1
        s_add_u32 s33, s33, 32
        s_lshl_b32 s33, s33, 10
        s_add_u32 s33, s33, s32
        s_lshl_b32 s34, s6, 11
        s_add_u32 s32, s32, s34
        """)
        for j in range(8): k(f"s_add_u32 s{40+j}, s30, {j*4096}")
    def rd(ks, tt): return f"ds_read_b128 v[{WF+4*tt}:{WF+4*tt+3}], v{L16} offset:{(ks%16)*4096 + tt*1024}"
    k(f"{L('main')}:\ns_mov_b32 s22, 40960\ns_waitcnt vmcnt(8)\ns_barrier")
    k.stamp(2)
    wo = []
    for i in range(24, -1, -1):
        pre = []
        if i == 24 or i % 4 == 3: pre = ([] if i == 24 else ["s_sub_u32 s53, s53, 4096"]) + [f"s_add_u32 m0, s53, {WOL}"]
        wo.append((f"buffer_load_dwordx4 v{L16}, s[48:51], s53 offen offset:{(i%4)*1024} lds", pre))
    cnt = [12]; done = {0: 4, 1: 8, 2: 12}
    def ld(x): k(x); cnt[0] += 1
    for tt in range(4): k(rd(0, tt))
    for s in gsetup(3): k(s)
    ld(xload(3, 0)); ld(wload(3, 0))
    for ks in range(40):
        G = (ks + 13) // 4; i = (ks + 13) % 4
        x = XR + 4*(ks % 16)
        for tt in range(4):
            lg = 3 if ks < 39 else 3 - tt
            if tt == 0 and ks % 4 == 3 and ks < 39:
                g = (ks + 1) // 4
                k(f"s_waitcnt vmcnt({cnt[0] - done[g]}) lgkmcnt({lg})\ns_barrier")
            else:
                k(f"s_waitcnt lgkmcnt({lg})")
            a = f"v[{ACC+16*tt}:{ACC+16*tt+15}]"
            k(f"v_mfma_f32_32x32x16_bf16 {a}, v[{WF+4*tt}:{WF+4*tt+3}], v[{x}:{x+3}], {a if ks else 0}")
            if ks < 39: k(rd(ks+1, tt))
            if G == 10 and tt in (0, 3):
                j = 2*i + tt//3
                ld(f"buffer_load_dword v{SQ+j}, v{ASQ}, s[12:15], s22 offen offset:{128*j} sc1")
                done[10] = cnt[0]
            if G >= 10 and tt in (1, 2) and wo:
                x_, pre = wo.pop(0)
                for s in pre: k(s)
                ld(x_)
            if ks == 38 and tt == 0: k(f"s_waitcnt vmcnt({cnt[0] - done[10]})")
            if ks == 38 and tt < 4: k(f"v_add_f32 v{SQ+tt}, v{SQ+tt}, v{SQ+4+tt}")
            if ks == 39 and tt < 2: k(f"v_add_f32 v{SQ+tt}, v{SQ+tt}, v{SQ+2+tt}")
            if ks == 39 and tt == 2: k(f"v_add_f32 v{SS}, v{SQ}, v{SQ+1}\nv_add_f32 v{T0}, v{SQ}, v{SQ+1}")
            if G < 10:
                if tt == 0 and i == 0:
                    for s in gsetup(G): k(s)
                if tt == 1: ld(xload(G, i))
                if tt == 2: ld(wload(G, i)); done[G] = cnt[0]
    assert not wo
    k.stamp(3)
    RS = T0 + 8
    k(f"""
    v_permlane32_swap_b32 v{t}, v{SS}
    v_add_f32 v{SS}, v{t}, v{SS}
    v_mov_b32 v{t+1}, {hx(f2u(1e-5))}
    v_fmac_f32 v{t+1}, {hx(f2u(1/640))}, v{SS}
    v_mul_f32 v{t}, {hx(f2u(1/640))}, v{ACC+60}
    v_fma_f32 v{t+1}, -v{t}, v{t}, v{t+1}
    v_rsq_f32 v{RS}, v{t+1}
    """)
    P = WF
    def scale_pack(src, dst, n):
        for j in range(n):
            k(f"v_pk_mul_f32 v[{src+2*j}:{src+2*j+1}], v[{src+2*j}:{src+2*j+1}], v[{RS}:{RS+1}] op_sel_hi:[1,0]")
            if j: k(f"v_cvt_pk_bf16_f32 v{dst+j-1}, v{src+2*j-2}, v{src+2*j-1}")
        k(f"v_cvt_pk_bf16_f32 v{dst+n-1}, v{src+2*n-2}, v{src+2*n-1}")
    k(f"s_cmp_lg_u32 s63, 0\ns_cbranch_scc1 {L('epiA')}")
    if True:
        scale_pack(ACC+40, P+20, 10)
        for j in range(5): k(f"ds_write_b64 v{AVW}, v[{P+20+2*j}:{P+21+2*j}] offset:{8*j}")
        scale_pack(ACC+20, P+10, 10)
        k(f"""
        buffer_store_dwordx4 v[{P+10}:{P+13}], v{AK}, s[24:27], s30 offen sc1
        buffer_store_dwordx4 v[{P+14}:{P+17}], v{AK}, s[24:27], s30 offen offset:512 sc1
        buffer_store_dwordx2 v[{P+18}:{P+19}], v{AKT}, s[24:27], s31 offen offset:2048 sc1
        s_waitcnt lgkmcnt(0)
        """)
        for p in range(3):
            k(f"ds_read_b64_tr_b16 v[{P+32+4*p}:{P+33+4*p}], v{AVR+p}")
            k(f"ds_read_b64_tr_b16 v[{P+34+4*p}:{P+35+4*p}], v{AVR+p} offset:320")
        scale_pack(ACC, P, 10)
        for p in range(3):
            k(f"s_waitcnt lgkmcnt({4-2*p})")
            k(f"buffer_store_dwordx4 v[{P+32+4*p}:{P+35+4*p}], v{AVS+p}, s[24:27], s32 offen offset:2560 sc1")
        k(f"""
        buffer_store_dwordx4 v[{P}:{P+3}], v{AQ}, s[24:27], s28 offen sc1
        buffer_store_dwordx4 v[{P+4}:{P+7}], v{AQ}, s[24:27], s28 offen offset:512 sc1
        buffer_store_dwordx2 v[{P+8}:{P+9}], v{AQT}, s[24:27], s28 offen offset:1024 sc1
        s_lshl_b32 s6, s6, 4
        s_add_u32 s6, s6, s7
        """)
        k.stamp(6)
        publish(k, 6, T0, 7)
        k(f"s_branch {k.lab('atop')}\n{L('epiA')}:")
    if True:
        EPS = RS + 4
        TE = 120
        k(f"v_mul_f32 v{RS+2}, {hx(f2u(LOG2E))}, v{RS}\nv_mov_b32 v{EPS}, {hx(f2u(1e-6))}")
        def phi_pack(src, dst, n):
            for j in range(n + 1):
                a = src + 2*j; e = TE + 2*(j % 2)
                if j < n:
                    k(f"""
                    v_pk_mul_f32 v[{e}:{e+1}], v[{a}:{a+1}], v[{RS+2}:{RS+3}] op_sel_hi:[1,0]
                    v_max_f32 v{a}, 0, v{a}
                    v_exp_f32 v{e}, v{e} clamp
                    v_exp_f32 v{e+1}, v{e+1} clamp
                    v_max_f32 v{a+1}, 0, v{a+1}
                    """)
                if j: k(f"v_cvt_pk_bf16_f32 v{dst+j-1}, v{a-2}, v{a-1}")
                if j < n:
                    k(f"""
                    v_pk_fma_f32 v[{a}:{a+1}], v[{a}:{a+1}], v[{RS}:{RS+1}], v[{EPS}:{EPS+1}] op_sel_hi:[1,0,0]
                    v_pk_add_f32 v[{a}:{a+1}], v[{a}:{a+1}], v[{e}:{e+1}]
                    """)
        PK = P + 12
        scale_pack(ACC+40, PK+10, 10)
        k(f"""
        v_mov_b32 v{PK+20}, 0x3f803f80
        v_mov_b32 v{PK+21}, 0x3f803f80
        ds_write_b128 v{AW}, v[{PK+12}:{PK+15}] offset:{KVS+48}
        ds_write_b128 v{AW}, v[{PK+16}:{PK+19}] offset:{KVS+64}
        ds_write_b64 v{AW}, v[{PK+20}:{PK+21}] offset:{KVS+80}
        """)
        phi_pack(ACC+20, PK, 10)
        for j in range(3): k(f"ds_write_b128 v{AW}, v[{PK+4*j}:{PK+4*j+3}] offset:{KVS+16*j}")
        k(f"""
        s_waitcnt lgkmcnt(0)
        s_barrier
        s_cmp_ge_u32 s3, 2
        s_cbranch_scc1 {L('nokv')}
        """)
        FA = 76
        D = 24
        for c in range(8):
            for h in range(2):
                k(f"ds_read_b64_tr_b16 v[{FA+8*c+2*h}:{FA+8*c+2*h+1}], v{ATA} offset:{KVS + c*1536 + h*384}")
                k(f"ds_read_b64_tr_b16 v[{FA+8*c+4+2*h}:{FA+8*c+5+2*h}], v{ATB} offset:{KVS + 40 + c*1536 + h*384}")
            if c >= 3:
                cc = c - 3
                k(f"s_waitcnt lgkmcnt(12)")
                k(f"v_mfma_f32_32x32x16_bf16 v[{D}:{D+15}], v[{FA+8*cc}:{FA+8*cc+3}], v[{FA+8*cc+4}:{FA+8*cc+7}], {f'v[{D}:{D+15}]' if cc else 0}")
        for cc in range(5, 8):
            k(f"s_waitcnt lgkmcnt({4*(7-cc)})")
            k(f"v_mfma_f32_32x32x16_bf16 v[{D}:{D+15}], v[{FA+8*cc}:{FA+8*cc+3}], v[{FA+8*cc+4}:{FA+8*cc+7}], v[{D}:{D+15}]")
        for j in range(6): k(f"v_cvt_pk_bf16_f32 v{44+j}, v{D+2*j}, v{D+2*j+1}")
        for j in range(6): k(f"v_min_u32 v{44+j}, -2, v{44+j}")
        k(f"""
        buffer_store_dwordx4 v[44:47], v{APM}, s[24:27], s31 offen sc1
        buffer_store_dwordx2 v[48:49], v{APT}, s[24:27], s31 offen offset:1344 sc1
        {L('nokv')}:
        """)
        phi_pack(ACC, P, 10)
        k.stamp(4)
        GA = 80
        k(f"""
        s_mov_b32 s36, 0x40000
        s_mov_b32 s37, 0x3f80
        s_mov_b32 s38, 0x3f800000
        {L('poll')}:
        """)
        for j in range(16):
            k(f"buffer_load_dwordx2 v[{GA+2*j}:{GA+2*j+1}], v{AG}, s[24:27], s{40+j//2} offen offset:{(j%2)*2048} sc1")
        k(f"s_sub_u32 s36, s36, 1")
        for j in range(16):
            if j % 2 == 0: k(f"s_waitcnt vmcnt({14-j})")
            k(f"v_max3_u32 v{t}, v{GA+2*j}, v{GA+2*j+1}, {f'v{t}' if j else 0}")
        k(f"""
        v_cmp_eq_u32 vcc, -1, v{t}
        s_cmp_eq_u32 s36, 0
        s_cbranch_scc1 {L('got')}
        s_cbranch_vccnz {L('poll')}
        {L('got')}:
        """)
        k.stamp(5)
        for j in range(16):
            for q in range(4):
                c = 0 if j == 0 else f"v{t+q}"
                k(f"v_dot2_f32_bf16 v{t+q}, v{GA+2*j+q//2}, s{37+q%2}, {c}")
        for j in range(4): k(f"v_permlane32_swap_b32 v{P+j}, v{P+4+j}")
        k(f"""
        v_cvt_pk_bf16_f32 v{t+4}, v{t}, v{t+1}
        v_cvt_pk_bf16_f32 v{t+5}, v{t+2}, v{t+3}
        ds_write_b64 v{ARW}, v[{t+4}:{t+5}] offset:{RR}
        s_waitcnt lgkmcnt(0)
        s_barrier
        ds_read_b128 v[80:83], v{ARM} offset:{RR}
        ds_read_b128 v[84:87], v{ARM} offset:{RR+672}
        ds_read_b64 v[88:89], v{ART} offset:{RR+1344}
        s_waitcnt lgkmcnt(0)
        v_mfma_f32_32x32x4_2b_bf16 v[0:31], v[88:89], v[{P+8}:{P+9}], 0
        v_mfma_f32_32x32x16_bf16 v[0:15], v[80:83], v[{P}:{P+3}], v[0:15]
        v_mfma_f32_32x32x16_bf16 v[16:31], v[84:87], v[{P+4}:{P+7}], v[16:31]
        """)
        for H in range(2):
            d = 16*H
            k(f"v_add_f32 v{d+12}, v{EPS}, v{d+12}\nv_rcp_f32 v{RS}, v{d+12}")
            scale_pack(d, 40 + 6*H, 6)
            k(f"buffer_store_dwordx4 v[{40+6*H}:{43+6*H}], v{L16}, s[24:27], s32 offen offset:{1024*H} sc1")
        k(f"""
        v_mov_b32 v52, v44
        v_mov_b32 v53, v45
        v_mov_b32 v54, v50
        v_mov_b32 v55, v51
        buffer_store_dwordx4 v[52:55], v{AOT}, s[24:27], s33 offen sc1
        """)
    k("s_lshl_b32 s7, s7, 4\ns_add_u32 s6, s6, s7")
    k.stamp(6)
    publish(k, 6, T0, 7)
```

```python
from common import *
QSCALE = 20 ** -0.5 * 1.4426950408889634

def gen_prep():
    k = K("prep_kernel", 240, 512, 8*5120 + 1024, vgpr=64)
    L = k.lab
    RED = 8*5120
    k.stamp(0)
    k(f"""
    s_cmp_ge_u32 s2, 240
    s_cbranch_scc1 {L('end')}
    s_load_dwordx4 s[4:7], s[0:1], 0
    s_load_dwordx2 s[8:9], s[0:1], 16
    s_load_dwordx4 s[12:15], s[0:1], 32
    s_load_dwordx2 s[10:11], s[0:1], 64
    v_lshrrev_b32 v1, 6, v0
    v_and_b32 v0, 63, v0
    v_readfirstlane_b32 s3, v1
    s_mul_i32 s16, s3, 5120
    s_mul_i32 s17, s3, 5
    v_lshrrev_b32 v2, 5, v0
    s_waitcnt lgkmcnt(0)
    """)
    srd(k, 20, 10, 0, WSEND)
    k(f"""
    s_cmp_ge_u32 s2, 160
    s_cbranch_scc1 {L('xpart')}
    s_and_b32 s18, s2, 7
    s_lshr_b32 s19, s2, 4
    s_lshl_b32 s19, s19, 3
    s_add_u32 s18, s18, s19
    s_lshl_b32 s18, s18, 1
    s_bfe_u32 s19, s2, 0x10003
    s_add_u32 s18, s18, s19
    v_bfe_u32 v3, v0, 4, 1
    v_bfe_u32 v4, v0, 2, 2
    v_and_b32 v5, 3, v0
    v_lshlrev_b32 v6, 9, v2
    v_lshl_add_u32 v6, v4, 6, v6
    v_lshl_add_u32 v6, v3, 5, v6
    v_lshl_add_u32 v6, v5, 3, v6
    v_add_u32 v6, s16, v6
    s_cmp_ge_u32 s18, 120
    s_cbranch_scc1 {L('wo')}
    """)
    def fills():
        n = fills.n = getattr(fills, "n", 0) + 1
        k(f"""
        s_lshl_b32 s40, s2, 3
        s_add_u32 s40, s40, s3
        s_cmp_ge_u32 s40, 1664
        s_cbranch_scc1 {L(f'fdone{n}')}
        s_cmp_ge_u32 s40, 1344
        s_cbranch_scc1 {L(f'fpad{n}')}
        s_lshl_b32 s41, s40, 10
        s_add_u32 s41, s41, {hx(KVP0)}
        v_lshlrev_b32 v60, 4, v0
        v_mov_b32 v56, -1
        v_mov_b32 v57, -1
        v_mov_b32 v58, -1
        v_mov_b32 v59, -1
        buffer_store_dwordx4 v[56:59], v60, s[20:23], s41 offen sc1
        s_branch {L(f'fdone{n}')}
        {L(f'fpad{n}')}:
        s_sub_u32 s41, s40, 1344
        s_lshl_b32 s41, s41, 14
        v_lshrrev_b32 v60, 4, v0
        v_lshlrev_b32 v60, 12, v60
        v_bfe_u32 v61, v0, 3, 1
        v_lshl_add_u32 v60, v61, 9, v60
        v_and_b32 v61, 7, v0
        v_lshl_add_u32 v60, v61, 4, v60
        v_mov_b32 v56, 0x3f803f80
        v_mov_b32 v57, 0x3f803f80
        v_mov_b32 v58, 0x3f803f80
        v_mov_b32 v59, 0x3f803f80
        buffer_store_dwordx4 v[56:59], v60, s[20:23], s41 offen offset:{3*1024+24*16}
        {L(f'fdone{n}')}:
        """)
    def trreads():
        for i in range(5):
            k(f"ds_read_b64_tr_b16 v[{16+4*i}:{17+4*i}], v6 offset:{i*1024}")
            k(f"ds_read_b64_tr_b16 v[{18+4*i}:{19+4*i}], v6 offset:{i*1024+256}")
    k(f"""
    s_cmp_ge_u32 s18, 60
    s_cselect_b32 s24, s12, s6
    s_cselect_b32 s25, s13, s7
    s_cselect_b32 s30, {hx(WB)}, 0
    s_cselect_b32 s31, 60, 0
    s_cselect_b32 s33, {hx(f2u(QSCALE))}, 1.0
    s_mov_b32 s26, {640*3840}
    s_mov_b32 s27, 0x20000
    s_sub_u32 s31, s18, s31
    v_lshrrev_b32 v7, 2, v0
    v_mul_u32_u24 v7, 3840, v7
    v_lshl_add_u32 v7, v5, 4, v7
    s_lshl_b32 s32, s31, 6
    s_mul_i32 s34, s17, {16*3840}
    s_add_u32 s34, s34, s32
    """)
    for i in range(5):
        k(f"s_add_u32 m0, s16, {i*1024}")
        if i: k(f"s_add_u32 s34, s34, {16*3840}")
        k(f"buffer_load_dwordx4 v7, s[24:27], s34 offen lds")
    sdiv(k, 35, 31, 20, 60)
    k(f"""
    s_cmp_eq_u32 s35, 0
    s_cselect_b32 s33, s33, 1.0
    s_mul_i32 s36, s35, 20
    s_sub_u32 s36, s31, s36
    s_lshl_b32 s36, s36, 5
    s_mul_i32 s35, s35, 5
    v_and_b32 v8, 31, v0
    v_add_u32 v8, s36, v8
    """)
    vdiv(k, 9, 8, 20, 640)
    k(f"""
    v_mul_u32_u24 v10, 20, v9
    v_sub_u32 v10, v8, v10
    v_lshrrev_b32 v11, 2, v10
    v_add_u32 v11, s35, v11
    v_lshrrev_b32 v12, 1, v9
    v_mul_u32_u24 v12, {hx(163840)}, v12
    v_lshrrev_b32 v13, 2, v11
    v_lshl_add_u32 v12, v13, 10, v12
    v_and_b32 v13, 3, v11
    v_lshl_add_u32 v12, v13, 7, v12
    v_and_b32 v13, 1, v9
    v_lshl_add_u32 v12, v13, 6, v12
    v_and_b32 v13, 3, v10
    v_lshl_add_u32 v12, v13, 4, v12
    v_lshl_add_u32 v12, v2, 9, v12
    s_lshl_b32 s37, s17, 12
    s_add_u32 s37, s37, s30
    v_mov_b32 v14, 0
    v_mov_b32 v15, 0x3f803f80
    v_and_b32 v8, 31, v0
    v_lshlrev_b32 v9, 5, v8
    s_lshl_b32 s38, s3, 2
    v_add_u32 v10, s38, v9
    s_waitcnt vmcnt(0)
    """)
    trreads()
    k("s_waitcnt lgkmcnt(0)")
    for r in range(16, 36): k(f"v_dot2c_f32_bf16 v14, v{r}, v15")
    k(f"""
    v_mov_b32 v13, v14
    v_permlane32_swap_b32 v13, v14
    v_add_f32 v14, v13, v14
    ds_write_b32 v10, v14 offset:{RED}
    s_waitcnt lgkmcnt(0)
    s_barrier
    ds_read_b128 v[40:43], v9 offset:{RED}
    ds_read_b128 v[44:47], v9 offset:{RED+16}
    s_waitcnt lgkmcnt(0)
    v_add_f32 v40, v40, v41
    v_add_f32 v42, v42, v43
    v_add_f32 v44, v44, v45
    v_add_f32 v46, v46, v47
    v_add_f32 v40, v40, v42
    v_add_f32 v44, v44, v46
    v_add_f32 v40, v40, v44
    v_mul_f32 v40, {hx(f2u(-1.0/640))}, v40
    v_mul_f32 v40, s33, v40
    """)
    for i in range(5):
        for r in range(16+4*i, 20+4*i):
            k(f"""
            v_lshlrev_b32 v41, 16, v{r}
            v_and_b32 v42, 0xffff0000, v{r}
            v_fma_f32 v41, v41, s33, v40
            v_fma_f32 v42, v42, s33, v40
            v_cvt_pk_bf16_f32 v{r}, v41, v42
            """)
        if i: k(f"s_add_u32 s37, s37, 4096")
        k(f"buffer_store_dwordx4 v[{16+4*i}:{19+4*i}], v12, s[20:23], s37 offen")
    k(f"s_branch {L('fill')}")
    k(f"""
    {L('wo')}:
    s_cmp_ge_u32 s18, 140
    s_cselect_b32 s24, s14, s8
    s_cselect_b32 s25, s15, s9
    s_cselect_b32 s30, {hx(WOSZ)}, 0
    s_cselect_b32 s31, 20, 0
    s_add_u32 s30, s30, {hx(WOA)}
    s_mov_b32 s26, {640*1280}
    s_mov_b32 s27, 0x20000
    s_sub_u32 s31, s18, s31
    s_sub_u32 s31, s31, 120
    s_lshl_b32 s32, s31, 6
    v_lshlrev_b32 v7, 3, v3
    v_lshl_add_u32 v7, v2, 2, v7
    v_add_u32 v7, v7, v4
    v_mul_u32_u24 v7, 1280, v7
    v_lshl_add_u32 v7, v5, 4, v7
    v_mul_u32_u24 v8, 40, v2
    v_mad_u32_u24 v8, v3, 20, v8
    v_add3_u32 v8, v8, v4, 16
    v_mul_u32_u24 v8, 1280, v8
    v_lshl_add_u32 v8, v5, 4, v8
    """)
    for i in range(5):
        k(f"""
        s_add_u32 s34, s17, {i}
        s_mul_i32 s35, s34, {20*1280}
        s_sub_u32 s36, s34, 32
        s_mul_i32 s36, s36, {80*1280}
        s_cmp_lt_u32 s34, 32
        s_cselect_b32 s35, s35, s36
        s_cselect_b64 vcc, -1, 0
        s_add_u32 s35, s35, s32
        v_cndmask_b32 v9, v8, v7, vcc
        s_add_u32 m0, s16, {i*1024}
        s_nop 0
        buffer_load_dwordx4 v9, s[24:27], s35 offen lds
        """)
    k(f"""
    s_lshl_b32 s36, s31, 5
    v_and_b32 v8, 31, v0
    v_add_u32 v8, s36, v8
    """)
    vdiv(k, 9, 8, 80, 640)
    k(f"""
    v_mul_u32_u24 v10, 80, v9
    v_sub_u32 v10, v8, v10
    v_mul_u32_u24 v12, {hx(102400)}, v9
    v_lshl_add_u32 v12, v2, 9, v12
    v_and_b32 v13, 3, v10
    v_lshl_add_u32 v12, v13, 4, v12
    v_bfe_u32 v13, v10, 3, 1
    v_lshl_add_u32 v12, v13, 6, v12
    v_bfe_u32 v13, v10, 2, 1
    v_lshl_add_u32 v12, v13, 7, v12
    v_bfe_u32 v13, v10, 4, 1
    v_lshl_add_u32 v12, v13, 8, v12
    v_bfe_u32 v13, v10, 5, 1
    v_lshl_add_u32 v12, v13, 10, v12
    v_bfe_u32 v13, v10, 6, 1
    v_lshl_add_u32 v12, v13, 12, v12
    v_mul_u32_u24 v13, {2048-256}, v13
    v_sub_u32 v13, 2048, v13
    s_waitcnt vmcnt(0)
    """)
    trreads()
    for i in range(5):
        k(f"""
        s_add_u32 s34, s17, {i}
        s_lshr_b32 s35, s34, 1
        s_mul_i32 s35, s35, 5120
        s_add_u32 s35, s35, s30
        s_and_b32 s34, s34, 1
        v_mad_u32_u24 v14, v13, s34, v12
        s_waitcnt lgkmcnt({8-2*i})
        buffer_store_dwordx4 v[{16+4*i}:{19+4*i}], v14, s[20:23], s35 offen
        """)
    k(f"s_branch {L('fill')}")
    k(f"""
    {L('xpart')}:
    s_sub_u32 s18, s2, 160
    s_lshl_b32 s18, s18, 3
    s_add_u32 s18, s18, s3
    """)
    sdiv(k, 19, 18, 10, 640)
    srd(k, 24, 4, 0, 2048*1280)
    k(f"""
    s_mul_i32 s30, s19, 10
    s_sub_u32 s30, s18, s30
    s_mul_i32 s31, s19, {32*1280}
    s_lshl_b32 s32, s30, 7
    s_add_u32 s32, s32, s31
    v_lshrrev_b32 v3, 3, v0
    v_xor_b32 v4, v3, v0
    v_and_b32 v4, 7, v4
    v_mul_u32_u24 v7, 1280, v3
    v_lshl_add_u32 v7, v4, 4, v7
    """)
    for i in range(4):
        k(f"s_add_u32 m0, s16, {i*1024}")
        if i: k(f"s_add_u32 s32, s32, {8*1280}")
        k(f"buffer_load_dwordx4 v7, s[24:27], s32 offen lds")
    k(f"""
    v_and_b32 v8, 31, v0
    v_xor_b32 v9, v8, v2
    v_and_b32 v9, 7, v9
    v_lshlrev_b32 v9, 4, v9
    v_lshl_add_u32 v9, v8, 7, v9
    v_xor_b32 v10, 32, v9
    v_xor_b32 v11, 64, v9
    v_xor_b32 v12, 96, v9
    v_add_u32 v9, s16, v9
    v_add_u32 v10, s16, v10
    v_add_u32 v11, s16, v11
    v_add_u32 v12, s16, v12
    v_lshlrev_b32 v13, 4, v0
    s_mul_i32 s34, s19, {XT}
    s_add_u32 s34, s34, {hx(X0)}
    s_lshl_b32 s33, s30, 12
    s_add_u32 s33, s33, s34
    s_lshl_b32 s35, s30, 7
    s_add_u32 s34, s34, s35
    s_add_u32 s34, s34, 40960
    s_cmp_lt_u32 s30, 6
    s_cselect_b32 s35, {1280-128}, 0x40000000
    v_lshlrev_b32 v14, 2, v0
    v_mul_lo_u32 v15, v2, s35
    v_add_u32 v14, v14, v15
    v_mov_b32 v15, 0
    s_waitcnt vmcnt(0)
    """)
    for i in range(4): k(f"ds_read_b128 v[{16+4*i}:{19+4*i}], v{9+i}")
    for i in range(4):
        k(f"s_waitcnt lgkmcnt({3-i})")
        k(f"buffer_store_dwordx4 v[{16+4*i}:{19+4*i}], v13, s[20:23], s33 offen offset:{i*1024}")
    for r in range(16, 32): k(f"v_dot2c_f32_bf16 v15, v{r}, v{r}")
    k("""
    v_mov_b32 v32, 0
    v_permlane32_swap_b32 v15, v32
    v_add_f32 v15, v15, v32
    buffer_store_dword v15, v14, s[20:23], s34 offen
    """)
    k(f"{L('fill')}:")
    k.stamp(1)
    fills()
    k.prof_end(3, 2)
    k(f"{L('end')}:\ns_endpgm")
    return k
```

```python
import sys, os
sys.path.insert(0, os.path.dirname(os.path.abspath(__file__)))
from mcommon import *
from gen import emit, NAME
from prep import gen_prep
from mqkv import m_qkv
from mop import m_op
from matt import m_att
def gen_mega(name):
    k = K(name, 256, 256, 163840, vgpr=256, sgpr=102)
    k.lab = lambda n: "L_m_" + n
    k(f"""
    s_cmp_ge_u32 s2, 256
    s_cbranch_scc1 {k.lab('end')}
    s_load_dwordx2 s[4:5], s[0:1], 64
    s_load_dwordx2 s[{DO}:{DO+1}], s[0:1], 48
    v_lshrrev_b32 v1, 6, v0
    v_and_b32 v{LN}, 63, v0
    v_readfirstlane_b32 s3, v1
    v_lshlrev_b32 v{L16}, 4, v{LN}
    v_mov_b32 v174, {hx(OOB)}
    s_mov_b32 s{PH}, 1
    s_mov_b32 s{NL}, 0
    """)
    op_map(k, 6, 7, 16)
    k(f"""
    s_and_b32 s34, s3, 1
    s_lshl_b32 s16, s7, 1
    s_add_u32 s16, s16, s34
    s_mul_i32 s16, s16, {XT}
    s_mul_i32 s6, s6, 5120
    s_add_u32 s16, s16, s6
    s_add_u32 s16, s16, {hx(X0)}
    s_and_b32 s7, s3, 2
    s_lshl_b32 s7, s7, 10
    s_add_u32 s7, s7, s16
    s_add_u32 s16, s16, 4096
    s_waitcnt lgkmcnt(0)
    """)
    wpre_setup(k, False)
    for x, pre in wpre_loads():
        for s in pre: k(s)
        k(x)
    srd(k, 56, 4, 0, WSEND)
    k(f"""
    buffer_load_dwordx4 v[{RES}:{RES+3}], v{L16}, s[56:59], s7 offen
    buffer_load_dwordx4 v[{RES+4}:{RES+7}], v{L16}, s[56:59], s7 offen offset:1024
    buffer_load_dwordx4 v[{RES+8}:{RES+11}], v{L16}, s[56:59], s16 offen
    """)
    m_qkv(k)
    m_op(k)
    k(f"{k.lab('end')}:\ns_endpgm")
    m_att(k)
    return k
def build(verbose=False):
    prep = gen_prep(); m = gen_mega(NAME + "_kernel")
    return emit([(prep, prep.name), (m, m.name)], verbose)
if __name__ == "__main__":
    K.PROF = "-p" in sys.argv
    txt = build("-v" in sys.argv)
    dst = f"cdna_kernels/{NAME}.s"
    for a in sys.argv[1:]:
        if a.endswith(".s"): dst = a
    open(dst, "w").write(txt)
    print(dst, len(txt))
```

```python
from mcommon import *
NB = 4
QL, EX = 49152, 0
def att_init(k, t):
    k(f"v_and_b32 v{t}, 31, v{LN}\nv_cmp_eq_u32 vcc, 20, v{t}\nv_mov_b32 v{t}, 0x3f803f80\nv_cndmask_b32 v{t}, 0, v{t}, vcc")
    for b in range(NB):
        for r in range(16): k(f"v_accvgpr_write_b32 a{26*b+10+r}, v{t}")

def m_att(k, D=3, POS=(0, 5, 15, 24, 30, 36, 42)):
    L = lambda n: k.lab("a" + n)
    S, P, O, Q = (0, 32), (64, 80), (96, 112, 128, 144), 160
    L8, LV, AOT, AW, AR, t = 184, 185, 186, 187, 190, 194
    SM, SK = 204, 220
    k(f"{L('top')}:")
    k.stamp(0)
    k(f"""
    s_and_b32 s34, s3, 1
    s_lshr_b32 s35, s3, 1
    s_lshl_b32 s36, s6, 1
    s_add_u32 s37, s36, s35
    s_lshl_b32 s21, s37, 3
    s_add_u32 s36, s36, s34
    s_mul_i32 s17, s36, 163840
    s_mul_i32 s18, s35, 81920
    s_add_u32 s17, s17, s18
    s_add_u32 s17, s17, s62
    s_add_u32 s17, s17, {hx(QSZ)}
    s_mov_b32 s20, 0
    s_mov_b32 s44, 0xfffff
    s_mov_b32 s45, 0xfffff
    v_lshlrev_b32 v{L8}, 3, v{LN}
    v_and_b32 v{t}, 31, v{LN}
    v_lshrrev_b32 v{t+2}, 5, v{LN}
    v_mad_u32_u24 v{LV}, v{t+2}, 20, v{t}
    v_lshlrev_b32 v{LV}, 4, v{LV}
    v_add_u32 v{LV}, 2560, v{LV}
    """)
    srd(k, 8, 4, "s17", 81920)
    wait_setup(k, 21, 7, t+4)
    k(f"s_mul_i32 s38, s34, 5120\ns_add_u32 s38, s38, {QL}\nv_lshlrev_b32 v{t+1}, 3, v{t}")
    for i in range(4):
        k(f"""
        s_add_u32 s39, s3, {i+1}
        s_and_b32 s39, s39, 3
        s_mul_i32 s40, s39, 1280
        s_add_u32 s40, s40, s38
        v_add_u32 v{t+6}, s40, v{L16}
        v_add_u32 v{t+7}, s40, v{t+1}
        ds_read_b128 v[{Q+6*i}:{Q+6*i+3}], v{t+6}
        ds_read_b64 v[{Q+6*i+4}:{Q+6*i+5}], v{t+7} offset:1024
        """)
        if i < 3:
            k(f"""
            s_lshl_b32 s39, s39, 2
            s_add_u32 s39, s39, s3
            s_mul_i32 s39, s39, 3072
            v_add_u32 v{AW+i}, s39, v{L16}
            s_xor_b32 s39, s3, {(2, 1, 3)[i]}
            s_lshl_b32 s40, s3, 2
            s_add_u32 s39, s39, s40
            s_mul_i32 s39, s39, 3072
            v_add_u32 v{AR+i}, s39, v{L16}
            """)
    wait(k, t+4)
    k.stamp(1)
    def kload(b):
        return [f"buffer_load_dwordx4 a[{26*b}:{26*b+3}], v{L16}, s[8:11], s20 offen sc1",
                f"buffer_load_dwordx4 a[{26*b+4}:{26*b+7}], v{L16}, s[8:11], s20 offen offset:1024 sc1",
                f"buffer_load_dwordx2 a[{26*b+8}:{26*b+9}], v{L8}, s[8:11], s20 offen offset:2048 sc1"]
    def vload(b):
        return (["s_mov_b64 exec, s[44:45]"]
                + [f"buffer_load_dwordx4 a[{26*b+10+4*m}:{26*b+13+4*m}], v{LV}, s[8:11], s20 offen offset:{640*m} sc1" for m in range(4)]
                + ["s_mov_b64 exec, -1"])
    for b in range(NB):
        for x in kload(b): k(x)
        if b < NB-1:
            for x in vload(b): k(x)
            k("s_add_u32 s20, s20, 5120")
    k(f"""
    s_mul_i32 s28, s16, 40960
    s_mul_i32 s29, s{NL}, {OSZ}
    s_add_u32 s28, s28, s29
    s_add_u32 s28, s28, {hx(OS[0])}
    """)
    srd(k, 24, 4, "s28", 40960)
    k(f"""
    s_lshl_b32 s29, s36, 10
    s_xor_b32 s30, s29, 1024
    s_lshr_b32 s31, s6, 1
    s_add_u32 s31, s31, 32
    s_lshl_b32 s31, s31, 10
    s_and_b32 s32, s6, 1
    s_lshl_b32 s32, s32, 9
    s_add_u32 s31, s31, s32
    v_lshl_add_u32 v{AOT}, v{t+2}, 30, v{L16}
    """)
    for r in range(P[1], O[3]+16, 2): k(f"v_mov_b64 v[{r}:{r+1}], 0")
    def qk(s, kk, q, C=None, f="a"):
        c = 0 if C is None else f"v[{C}:{C+15}]"
        return [f"v_mfma_f32_32x32x16_bf16 v[{s}:{s+15}], {f}[{kk}:{kk+3}], v[{q}:{q+3}], {c}",
                f"v_mfma_f32_32x32x16_bf16 v[{s+16}:{s+31}], {f}[{kk+4}:{kk+7}], v[{q}:{q+3}], {c}",
                f"v_mfma_f32_32x32x4_2b_bf16 v[{s}:{s+31}], {f}[{kk+8}:{kk+9}], v[{q+4}:{q+5}], v[{s}:{s+31}]"]
    def pv(o, vv, p, f="a"):
        return [f"v_mfma_f32_32x32x16_bf16 v[{o}:{o+15}], {f}[{vv+4*m}:{vv+4*m+3}], v[{p+4*m}:{p+4*m+3}], v[{o}:{o+15}]" for m in range(4)]
    POS = list(POS)
    cv = lambda s, p, j: f"v_cvt_pk_bf16_f32 v{p+j}, v{s+2*j}, v{s+2*j+1}"
    NC = [j for j in range(16) if 2*j+1+D > 31]
    def phase(n, after={}, tail=False):
        s, p, s2, p2 = S[n % 2], P[n % 2], S[1 - n % 2], P[1 - n % 2]
        mfs = qk(s2, 26*((n+1)//4 % NB), Q + 6*((n+1) % 4)) + pv(O[(n-1) % 4], 26*((n-1)//4 % NB) + 10, p2)
        seq = []
        for i in range(32):
            seq.append(f"v_exp_f32 v{s+i}, v{s+i}")
            j2 = i - 1 - D
            if j2 % 2 == 0: seq.append(cv(s, p, j2//2) if j2 >= 0 else cv(s2, p2, 16 + j2//2))
        assert all(f"v{s2+31}" not in x for x in seq[POS[1]:])
        for i, x in enumerate(seq):
            if i in POS:
                j = POS.index(i)
                if not (tail and j < 3): k(mfs[j])
                for y in after.get(j, []): k(y)
            k(x)
    for j in NC: k(f"v_mov_b64 v[{S[1]+2*j}:{S[1]+2*j+1}], 0")
    k(f"s_waitcnt vmcnt({7*(NB-1)}) lgkmcnt(0)")
    k.stamp(2)
    for x in qk(S[0], 0, Q): k(x)
    k("s_nop 15\ns_nop 3")
    k(f".p2align 6\n{L('loop')}:")
    wr = lambda i: [f"ds_write_b128 v{AW+i}, v[{O[i]+4*c}:{O[i]+4*c+3}] offset:{EX + 1024*c}" for c in range(3)]
    for n in range(4*NB):
        b = n // 4; aft = {}
        if n % 4 == 1:
            aft[0] = vload((b-1) % NB); aft[1] = [f"s_waitcnt vmcnt({7*(NB-1)})"]; aft[3] = ["s_add_u32 s20, s20, 5120"]
            if n == 4*NB - 3: aft[4] = [f"s_cmp_eq_u32 s20, {(16+NB-1)*5120}"]
        if n % 4 == 2: aft[6] = [f"s_waitcnt vmcnt({7*(NB-1)-3})"]
        if n % 4 == 3:
            kl = kload(b); aft[0] = [kl[0]]; aft[1] = [kl[1]]; aft[3] = [kl[2]]
        phase(n, aft)
        if n == 4*NB - 3: k(f"s_cbranch_scc1 {L('tail')}")
    k(f"s_branch {L('loop')}\n.p2align 3\n{L('tail')}:")
    w = wr(0); phase(4*NB - 2, {2: [w[0]], 3: [w[1]], 4: [w[2]]})
    w = wr(1); phase(4*NB - 1, {2: [w[0]], 3: [w[1]], 4: [w[2]]}, tail=True)
    w = wr(2)
    for m, x in enumerate(pv(O[3], 26*(NB-1) + 10, P[1])):
        k(x)
        if m == 0:
            for j in NC: k(cv(S[1], P[1], j))
        else: k(w[m-1])
    k("s_waitcnt lgkmcnt(0)\ns_barrier")
    k.stamp(3)
    for i in range(3):
        for c in range(3): k(f"ds_read_b128 v[{O[i]+4*c}:{O[i]+4*c+3}], v{AR+i} offset:{EX + 1024*c}")
    k("s_mov_b32 s46, 0\ns_cmp_eq_u32 s34, 1\ns_cselect_b64 s[40:41], -1, 0")
    for a, b, w in ((O[3], O[0], 6), (O[1], O[2], 0)):
        k(f"s_waitcnt lgkmcnt({w})")
        for j in (4, 0, 1, 2, 3, 5): k(f"v_pk_add_f32 v[{a+2*j}:{a+2*j+1}], v[{a+2*j}:{a+2*j+1}], v[{b+2*j}:{b+2*j+1}]")
    k(f"{L('fin')}:")
    for h, (o, so) in enumerate(((O[3], 29), (O[1], 30))):
        u = t + 4*h; r = S[0] + 16*h; p = P[0] + 6*h
        k(f"""
        v_mov_b32 v{u}, v{o+8}
        v_mov_b32 v{u+1}, v{o+8}
        v_permlane32_swap_b32 v{u}, v{u+1}
        v_rcp_f32 v{u+2}, v{u+1}
        """)
        for j in range(6): k(f"v_pk_mul_f32 v[{r+2*j}:{r+2*j+1}], v[{o+2*j}:{o+2*j+1}], v[{u+2}:{u+3}] op_sel_hi:[1,0]")
        for j in range(6): k(f"v_cvt_pk_bf16_f32 v{p+j}, v{r+2*j}, v{r+2*j+1}")
        k(f"buffer_store_dwordx4 v[{p}:{p+3}], v{L16}, s[24:27], s{so} offen sc1")
    p = P[0]
    for j in range(2):
        k(f"v_cndmask_b32 v{p+12+j}, v{p+4+j}, v{p+10+j}, s[40:41]\nv_cndmask_b32 v{p+14+j}, v{p+10+j}, v{p+4+j}, s[40:41]")
    k(f"buffer_store_dwordx4 v[{p+12}:{p+15}], v{AOT}, s[24:27], s31 offen sc1")
    a, b = O[3], O[1]
    for j in range(6): k(f"v_pk_add_f32 v[{a+2*j}:{a+2*j+1}], v[{a+2*j}:{a+2*j+1}], v[{b+2*j}:{b+2*j+1}]")
    for j in range(3): k(f"v_pk_add_f32 v[{a+2*j}:{a+2*j+1}], v[{a+2*j}:{a+2*j+1}], v[{a+6+2*j}:{a+7+2*j}]")
    k(f"""
    v_min_f32 v{t}, v{t+1}, v{t+5}
    v_pk_add_f32 v[{a}:{a+1}], v[{a}:{a+1}], v[{a+2}:{a+3}]
    v_cmp_gt_f32 vcc, {hx(f2u(2.0**-90))}, v{t}
    v_pk_add_f32 v[{a}:{a+1}], v[{a}:{a+1}], v[{a+4}:{a+5}]
    v_mov_b32 v{t}, 0x207
    v_add_f32 v{a}, v{a}, v{a+1}
    v_cmp_class_f32 s[42:43], v{a}, v{t}
    s_lshl_b32 s47, s7, 4
    s_add_u32 s47, s47, s6
    s_cmp_lg_u32 s46, 0
    s_cbranch_scc1 {L('ok')}
    s_or_b64 vcc, vcc, s[42:43]
    s_cbranch_scc1 {L('slow')}
    {L('ok')}:
    """)
    k.stamp(4)
    publish(k, 47, t, 5)
    k(f"s_branch {k.lab('otop')}")
    VV = O[0]
    def gk():
        k(f"""
        buffer_load_dwordx4 v[{SK}:{SK+3}], v{L16}, s[12:15], s20 offen sc1
        buffer_load_dwordx4 v[{SK+4}:{SK+7}], v{L16}, s[12:15], s20 offen offset:1024 sc1
        buffer_load_dwordx2 v[{SK+8}:{SK+9}], v{L8}, s[12:15], s20 offen offset:2048 sc1
        """)
    k(f"{L('slow')}:\ns_waitcnt vmcnt(0)")
    for r in range(16): k(f"v_accvgpr_read_b32 v{VV+r}, a{10+r}")
    k(f"""
    {L('slow0')}:
    s_xor_b32 s36, s36, 1
    s_mul_i32 s17, s36, 163840
    s_add_u32 s17, s17, s62
    s_add_u32 s17, s17, {hx(QSZ)}
    """)
    srd(k, 12, 4, "s17", 163840)
    k(f"""
    s_and_b32 s39, s36, 1
    s_lshl_b32 s39, s39, 2
    s_add_u32 s39, s39, s3
    s_mul_i32 s39, s39, 1280
    s_add_u32 s39, s39, {QL}
    v_and_b32 v{t+1}, 255, v{L8}
    v_add_u32 v{t}, s39, v{L16}
    v_add_u32 v{t+1}, s39, v{t+1}
    ds_read_b128 v[{Q}:{Q+3}], v{t}
    ds_read_b64 v[{Q+4}:{Q+5}], v{t+1} offset:1024
    s_mov_b32 s20, 0
    s_waitcnt lgkmcnt(0)
    v_mov_b32 v{t}, 0xff800000
    {L('slow1')}:
    """)
    gk()
    k("s_waitcnt vmcnt(0)")
    for x in qk(S[0], SK, Q, None, "v"): k(x)
    for j in range(16): k(f"v_max3_f32 v{t}, v{S[0]+2*j}, v{S[0]+2*j+1}, v{t}")
    k(f"""
    s_add_u32 s20, s20, 5120
    s_cmp_lg_u32 s20, 163840
    s_cbranch_scc1 {L('slow1')}
    s_mov_b32 s20, 0
    v_mov_b32 v{t+1}, v{t}
    v_permlane32_swap_b32 v{t+1}, v{t}
    v_max_f32 v{t}, v{t}, v{t+1}
    """)
    for r in range(16): k(f"v_sub_f32 v{SM+r}, 0, v{t}\nv_mov_b32 v{O[1]+r}, v{O[3]+r}\nv_mov_b32 v{O[3]+r}, 0")
    k(f"{L('slow2')}:")
    gk()
    k("s_mov_b64 exec, s[44:45]")
    for m in range(4): k(f"buffer_load_dwordx4 v[{VV+4*m}:{VV+4*m+3}], v{LV}, s[12:15], s20 offen offset:{640*m} sc1")
    k("s_mov_b64 exec, -1\ns_waitcnt vmcnt(0)")
    for x in qk(S[0], SK, Q, SM, "v"): k(x)
    for i in range(32): k(f"v_exp_f32 v{S[0]+i}, v{S[0]+i}")
    for j in range(16): k(cv(S[0], P[0], j))
    for x in pv(O[3], VV, P[0], "v"): k(x)
    k(f"""
    s_add_u32 s20, s20, 5120
    s_cmp_lg_u32 s20, 163840
    s_nop 15
    s_cbranch_scc1 {L('slow2')}
    s_add_u32 s46, s46, 1
    s_cmp_eq_u32 s46, 1
    s_cbranch_scc1 {L('slow0')}
    s_branch {L('fin')}
    """)
```

```python
from mcommon import *
OOB = 0x40000000

def m_op(k):
    L = lambda n: k.lab("o" + n)
    X, Y, HA, HB, OF, WF, RF = 0, 16, 32, 48, 64, 144, RES
    AX, AY, AH, AS, AR, AO, AOH, ASQ, t = range(178, 187)
    k(f"{L('top')}:")
    k.stamp(0)
    op_map(k, 6, 7, 16)
    k(f"""
    s_and_b32 s34, s3, 1
    s_lshr_b32 s35, s3, 1
    s_lshl_b32 s16, s7, 1
    s_add_u32 s16, s16, s34
    s_mul_i32 s36, s16, 40960
    s_mul_i32 s18, s{NL}, {OSZ}
    s_add_u32 s18, s18, s36
    s_add_u32 s18, s18, {hx(OS[0])}
    s_mul_i32 s21, s35, 20480
    s_lshr_b32 s20, s7, 1
    s_lshl_b32 s20, s20, 4
    """)
    srd(k, 12, 4, "s18", 40960)
    wait_setup(k, 20, 15, t)
    wait(k, t)
    k.stamp(1)
    for c in range(5):
        for i in range(4):
            k(f"buffer_load_dwordx4 v[{OF+16*c+4*i}:{OF+16*c+4*i+3}], v{L16}, s[12:15], s21 offen offset:{i*1024} sc1")
        if c < 4: k("s_add_u32 s21, s21, 4096")
        if c == 0:
            k(f"""
            s_mul_i32 s22, s35, 51200
            s_add_u32 s22, s22, {WOL}
            v_add_u32 v{AH}, s22, v{L16}
            s_lshl_b32 s22, s35, 10
            v_add_u32 v{AY}, s22, v{AH}
            s_xor_b32 s22, s22, 1024
            v_add_u32 v{AX}, s22, v{AH}
            """)
    loads = wpre_loads()
    n = [20]
    def issue():
        if loads:
            x, pre = loads.pop(0)
            for s in pre: k(s)
            k(x); n[0] += 1
    k(f"s_bitcmp0_b32 s{NL}, 0")
    wpre_setup(k, None)
    k(f"""
    s_mul_i32 s37, s6, 5
    s_lshl_b32 s38, s35, 1
    s_add_u32 s38, s38, s37
    s_add_u32 s37, s37, 4
    s_mul_i32 s22, s3, 6144
    s_add_u32 s22, s22, {WOL}
    v_add_u32 v{AS}, s22, v{L16}
    s_xor_b32 s22, s3, 2
    s_mul_i32 s22, s22, 6144
    s_add_u32 s22, s22, {WOL}
    v_add_u32 v{AR}, s22, v{L16}
    s_mov_b32 s42, 0x3f80
    s_mov_b32 s43, 0x3f800000
    s_lshl_b32 s41, s35, 30
    s_cmp_eq_u32 s35, 0
    s_cselect_b32 s45, s43, 0
    v_and_b32 v{t}, 31, v{LN}
    s_mov_b32 s31, 0x20000
    s_cmp_eq_u32 s{NL}, 3
    s_cbranch_scc1 {L('fin')}
    s_mul_i32 s33, s16, {XT}
    s_mul_i32 s20, s{NL}, {XSZ}
    s_add_u32 s20, s20, s33
    s_add_u32 s20, s20, {hx(XS[1])}
    s_add_u32 s28, s4, s20
    s_addc_u32 s29, s5, 0
    s_mov_b32 s30, {XT}
    v_mov_b32 v{AO}, v{L16}
    v_lshlrev_b32 v{ASQ}, 2, v{t}
    s_lshl_b32 s39, s38, 10
    s_add_u32 s44, s39, 1024
    s_lshl_b32 s40, s37, 10
    s_lshl_b32 s32, s6, 1
    s_add_u32 s32, s32, s35
    s_lshl_b32 s32, s32, 7
    s_add_u32 s32, s32, 40960
    s_branch {L('go')}
    {L('fin')}:
    s_mov_b64 s[28:29], s[{DO}:{DO+1}]
    s_mov_b32 s30, {2048*1280}
    v_mul_u32_u24 v{AO}, 1280, v{t}
    v_lshrrev_b32 v{t}, 5, v{LN}
    v_lshl_add_u32 v{AO}, v{t}, 4, v{AO}
    v_mov_b32 v{ASQ}, {hx(OOB)}
    s_lshl_b32 s39, s38, 5
    s_add_u32 s39, s39, s36
    s_add_u32 s44, s39, 32
    s_lshl_b32 s40, s37, 5
    s_add_u32 s40, s40, s36
    s_mov_b32 s32, 0
    {L('go')}:
    v_add_u32 v{AOH}, s41, v{AO}
    """)
    def rd(p, j):
        a, o = [(AH, 4096), (AX, 0), (AY, 0), (AX, 2048), (AY, 2048)][j]
        return f"ds_read_b128 v[{WF+4*j}:{WF+4*j+3}], v{a} offset:{p*5120 + o}"
    def mf(d, j, ks, first):
        a = f"v[{d}:{d+15}]"
        return f"v_mfma_f32_32x32x16_bf16 {a}, v[{WF+4*j}:{WF+4*j+3}], v[{OF+4*ks}:{OF+4*ks+3}], {0 if first else a}"
    for j in range(5): k(rd(0, j))
    for p in range(10):
        last = p == 9
        k(f"s_waitcnt vmcnt({n[0] - 2*p - 2}) lgkmcnt(4)")
        if p == 0: k.stamp(2)
        if p == 6: k("s_barrier")
        k(mf(HA, 0, 2*p, p == 0))
        k(mf(HB, 0, 2*p+1, p == 0))
        if not last: k(rd(p+1, 0))
        for j in range(1, 5):
            k(f"s_waitcnt lgkmcnt({4 - j if last else 4})")
            k(mf(X if j % 2 else Y, j, 2*p + (j-1)//2, p == 0 and j < 3))
            if not last: k(rd(p+1, j))
            if j in (1, 3): issue()
            if last and j == 3:
                for i in range(4): k(f"v_pk_add_f32 v[{HA+2*i}:{HA+2*i+1}], v[{HA+2*i}:{HA+2*i+1}], v[{HB+8+2*i}:{HB+9+2*i}]")
    assert not loads
    k.stamp(3)
    for i in range(2): k(f"ds_write_b128 v{AS}, v[{HA+4*i}:{HA+4*i+3}] offset:{4096 + i*1024}")
    for i in range(8): k(f"v_dot2_f32_bf16 v{HB+i}, v{RF+8+i//2}, s{42+i%2}, v{HA+i}")
    for i in range(4): k(f"ds_write_b128 v{AS}, v[{X+4*i}:{X+4*i+3}] offset:{i*1024}")
    for i in range(16): k(f"v_dot2_f32_bf16 v{Y+i}, v{RF+i//2}, s{42+i%2}, v{Y+i}")
    k("s_waitcnt lgkmcnt(0)\ns_barrier")
    for i in range(6): k(f"ds_read_b128 v[{OF+4*i}:{OF+4*i+3}], v{AR} offset:{i*1024}")
    k(f"s_cmp_eq_u32 s{NL}, 3\ns_cbranch_scc1 {L('last')}")
    def outs(m):
      for f in range(3):
        own = Y + 8*f if f < 2 else HB
        k(f"s_waitcnt lgkmcnt({4-2*f})")
        for i in range(4): k(f"v_pk_add_f32 v[{own+2*i}:{own+2*i+1}], v[{own+2*i}:{own+2*i+1}], v[{OF+8*f+2*i}:{OF+8*f+2*i+1}]")
        for i in range(4): k(f"v_cvt_pk_bf16_f32 v{RF+4*f+i}, v{own+2*i}, v{own+2*i+1}")
        k(f"buffer_store_dwordx4 v[{RF+4*f}:{RF+4*f+3}], v{AOH if f == 2 else AO}, s[28:31], s{(39, 44, 40)[f]} offen{m}")
    outs(' sc1')
    for i in range(4):
        for f in range(3): k(f"v_dot2_f32_bf16 v{t+f}, v{RF+4*f+i}, v{RF+4*f+i}, {f'v{t+f}' if i else 0}")
    k(f"""
    v_add_f32 v{t}, v{t}, v{t+1}
    v_fma_f32 v{t}, v{t+2}, s45, v{t}
    v_mov_b32 v{t+1}, v{t}
    v_permlane32_swap_b32 v{t+1}, v{t}
    v_add_f32 v{t}, v{t}, v{t+1}
    buffer_store_dword v{t}, v{ASQ}, s[28:31], s32 offen sc1
    s_lshl_b32 s7, s7, 3
    s_add_u32 s6, s6, s7
    """)
    k.stamp(4)
    publish(k, 6, t, 5)
    k(f"s_add_u32 s{NL}, s{NL}, 1\ns_branch {k.lab('qtop')}\n{L('last')}:")
    outs('')
    k.stamp(4)
    k("s_waitcnt vmcnt(0)")
    k.prof_end(3, 5, PH)
```

```python
from mcommon import *
from matt2 import QL
LOG2E = 1.4426950408889634
OOB = 0x40000000

def m_qkv(k):
    SQ, ASQ = 180, 163
    L = lambda n: k.lab("q" + n)
    ACC, WF, XR = 0, 64, 80
    LW, SS, T0 = 146, 147, 148
    TID, HH, TOK = 160, 161, 162
    E0 = 164
    k(f"{L('top')}:")
    k.stamp(0)
    qkv_map(k, 6, 7, 16)
    k(f"""
    s_lshl_b32 s16, s7, 2
    s_add_u32 s16, s16, s3
    s_mul_i32 s18, s16, {XT}
    s_mul_i32 s19, s{NL}, {XSZ}
    s_add_u32 s18, s18, s19
    s_add_u32 s18, s18, {hx(X0)}
    s_lshr_b32 s20, s16, 1
    s_lshl_b32 s20, s20, 3
    """)
    srd(k, 12, 4, "s18", XT)
    wait_setup(k, 20, 7, T0)
    k(f"s_cmp_eq_u32 s{NL}, 0\ns_cbranch_scc1 {L('go')}")
    wait(k, T0)
    k(f"{L('go')}:")
    k.stamp(1)
    def xload(G, i):
        ks = 4*G + i
        return f"buffer_load_dwordx4 v[{XR+4*(ks%16)}:{XR+4*(ks%16)+3}], v{L16}, s[12:15], s21 offen offset:{i*1024} sc1"
    def wload(G, i):
        return f"buffer_load_dwordx4 v{LW}, s[8:11], s20 offen offset:{i*1024} sc1 lds"
    def gsetup(G):
        r = [f"s_add_u32 m0, s19, {(G%4)*16384}"]
        if G: r += [f"s_mov_b32 s20, {G*16384}", f"s_mov_b32 s21, {G*4096}"]
        return r
    for G in range(3):
        k(f"s_mov_b32 s21, {G*4096}")
        for i in range(4): k(xload(G, i))
    srd(k, 24, 4, 0, WSEND)
    op_map(k, 52, 53, 54)
    k(f"""
    s_lshl_b32 s19, s3, 12
    v_add_u32 v{LW}, s19, v{L16}
    s_lshl_b32 s53, s3, 6
    v_add_u32 v{TID}, s53, v{LN}
    s_lshr_b32 s53, s{NL}, 1
    s_mul_i32 s62, s{NL}, {OSZ}
    s_add_u32 s62, s62, {hx(OS[0])}
    s_mul_i32 s61, s53, {QSZ+KVSZ}
    s_add_u32 s61, s61, {hx(QS[0])}
    s_mul_i32 s63, s53, {KVPSZ}
    s_add_u32 s63, s63, {hx(KVP0)}
    s_mul_i32 s52, s52, 102400
    s_bitcmp1_b32 s{NL}, 0
    s_cselect_b32 s62, s61, s62
    s_cselect_b32 s63, 0, s63
    s_cselect_b32 s53, {WOSZ}, 0
    s_add_u32 s52, s52, s53
    s_add_u32 s52, s52, {hx(WOA)}
    s_mul_i32 s53, s3, 25600
    s_add_u32 s53, s53, {6*4096}
    """)
    srd(k, 48, 4, "s52", 102400)
    k(f"""
    v_lshrrev_b32 v{HH}, 5, v{LN}
    v_and_b32 v{TOK}, 31, v{LN}
    v_lshlrev_b32 v{ASQ}, 10, v{HH}
    v_lshl_add_u32 v{ASQ}, v{TOK}, 2, v{ASQ}
    s_cmp_lg_u32 s63, 0
    s_cbranch_scc1 {L('proA')}
    """)
    t = T0
    if True:
        AQ, AQT, AK, AKT, AVW, AVR, AVS = E0, E0+1, E0+2, E0+3, E0+4, E0+5, E0+8
        k(f"""
        s_mul_i32 s28, s3, 1280
        v_mul_u32_u24 v{t}, 5120, v{HH}
        v_add_u32 v{t}, s28, v{t}
        v_lshl_add_u32 v{AQ}, v{TOK}, 4, v{t}
        v_lshl_add_u32 v{AQT}, v{TOK}, 3, v{t}
        v_mul_u32_u24 v{t}, {hx(163840)}, v{HH}
        v_lshl_add_u32 v{AK}, v{TOK}, 4, v{t}
        v_lshl_add_u32 v{AKT}, v{TOK}, 3, v{t}
        s_mul_i32 s29, s6, {2*163840}
        s_lshr_b32 s30, s16, 1
        s_mul_i32 s30, s30, 5120
        s_add_u32 s29, s29, s30
        s_add_u32 s29, s29, s62
        s_add_u32 s29, s29, {hx(QSZ)}
        s_and_b32 s33, s16, 1
        s_lshl_b32 s30, s33, 10
        s_add_u32 s30, s30, s29
        s_lshl_b32 s31, s33, 8
        s_add_u32 s31, s31, s29
        s_mul_i32 s32, s33, 1280
        s_add_u32 s32, s32, s29
        v_mul_u32_u24 v{AVW}, 40, v{LN}
        v_add_u32 v{AVW}, s19, v{AVW}
        v_lshrrev_b32 v{t}, 4, v{LN}
        v_and_b32 v{t+1}, 3, v{LN}
        v_lshl_add_u32 v{t}, v{t}, 2, v{t+1}
        v_bfe_u32 v{t+1}, v{LN}, 2, 2
        """)
        for p in range(3):
            k(f"v_add_u32 v{t+2}, {16*p}, v{t}")
            vdiv(k, t+3, t+2, 5, 48)
            k(f"""
            v_mul_u32_u24 v{t+4}, 5, v{t+3}
            v_sub_u32 v{t+4}, v{t+2}, v{t+4}
            v_lshrrev_b32 v{t+5}, 1, v{t+3}
            v_lshl_add_u32 v{t+5}, v{t+5}, 4, v{t+1}
            v_and_b32 v{t+3}, 1, v{t+3}
            v_lshl_add_u32 v{t+5}, v{t+3}, 2, v{t+5}
            v_mul_u32_u24 v{t+5}, 40, v{t+5}
            v_lshl_add_u32 v{t+5}, v{t+4}, 3, v{t+5}
            v_add_u32 v{AVR+p}, s19, v{t+5}
            """)
        k(f"""
        v_mov_b32 v{AVS}, v{L16}
        v_cmp_gt_u32 vcc, 16, v{LN}
        v_add_u32 v{t}, 1024, v{L16}
        v_add_u32 v{t+1}, {hx(163840 - 256)}, v{L16}
        v_cndmask_b32 v{AVS+1}, v{t+1}, v{t}, vcc
        v_cmp_gt_u32 vcc, 32, v{LN}
        v_add_u32 v{t}, {hx(163840 + 768)}, v{L16}
        v_mov_b32 v{t+1}, {hx(OOB)}
        v_cndmask_b32 v{AVS+2}, v{t+1}, v{t}, vcc
        s_branch {L('main')}
        {L('proA')}:
        """)
    if True:
        KVS, RR = 32768, 57344
        AW, ATA, ATB, APM, APT, AG, ARW, ARM, ART, AOT = range(E0, E0+10)
        k(f"""
        s_lshl_b32 s28, s3, 5
        v_lshl_add_u32 v{t}, v{HH}, 7, v{TOK}
        v_add_u32 v{t}, s28, v{t}
        v_mul_u32_u24 v{AW}, 96, v{t}
        v_bfe_u32 v{t}, v{LN}, 2, 2
        v_lshl_add_u32 v{t}, v{HH}, 3, v{t}
        s_lshl_b32 s28, s3, 7
        v_add_u32 v{t}, s28, v{t}
        v_mul_u32_u24 v{t}, 96, v{t}
        v_bfe_u32 v{t+1}, v{LN}, 4, 1
        v_and_b32 v{t+2}, 1, v{LN}
        v_bfe_u32 v{t+3}, v{LN}, 1, 1
        v_lshl_add_u32 v{t+2}, v{t+2}, 1, v{t+3}
        v_lshl_add_u32 v{t+2}, v{t+1}, 2, v{t+2}
        v_min_u32 v{t+2}, 4, v{t+2}
        v_lshl_add_u32 v{ATA}, v{t+2}, 3, v{t}
        v_and_b32 v{t+2}, 3, v{LN}
        v_lshl_add_u32 v{t+2}, v{t+1}, 2, v{t+2}
        v_min_u32 v{t+2}, 5, v{t+2}
        v_lshl_add_u32 v{ATB}, v{t+2}, 3, v{t}
        v_min_u32 v{t}, 20, v{TOK}
        v_mad_u32_u24 v{t+1}, v{HH}, 21, v{t}
        v_lshlrev_b32 v{ARM}, 4, v{t+1}
        v_lshlrev_b32 v{ART}, 3, v{t+1}
        v_mov_b32 v{t+2}, {hx(OOB)}
        s_mul_i32 s28, s3, 672
        s_mul_i32 s29, s3, 168
        v_add_u32 v{t}, s28, v{ARM}
        v_cmp_gt_u32 vcc, 21, v{TOK}
        v_add_u32 v{t+1}, s29, v{ART}
        v_cndmask_b32 v{APM}, v{t+2}, v{t}, vcc
        v_cmp_gt_u32 vcc, 21, v{LN}
        v_lshlrev_b32 v{ARW}, 3, v{TID}
        v_cndmask_b32 v{APT}, v{t+2}, v{t+1}, vcc
        v_cmp_gt_u32 vcc, 210, v{TID}
        s_lshl_b32 s30, s6, 15
        s_add_u32 s30, s30, s63
        v_cndmask_b32 v{AG}, v{t+2}, v{ARW}, vcc
        s_lshl_b32 s31, s7, 11
        s_add_u32 s31, s31, s30
        s_and_b32 s32, s6, 1
        s_lshl_b32 s32, s32, 9
        v_cmp_gt_u32 vcc, 32, v{LN}
        v_add_u32 v{t}, s32, v{L16}
        s_mul_i32 s32, s16, 40960
        s_add_u32 s32, s32, s62
        v_cndmask_b32 v{AOT}, v{t+2}, v{t}, vcc
        s_lshr_b32 s33, s6, 1
        s_add_u32 s33, s33, 32
        s_lshl_b32 s33, s33, 10
        s_add_u32 s33, s33, s32
        s_lshl_b32 s34, s6, 11
        s_add_u32 s32, s32, s34
        """)
        for j in range(8): k(f"s_add_u32 s{40+j}, s30, {j*4096}")
    def rd(ks, tt): return f"ds_read_b128 v[{WF+4*tt}:{WF+4*tt+3}], v{L16} offset:{(ks%16)*4096 + tt*1024}"
    k(f"{L('main')}:\ns_mov_b32 s22, 40960\ns_waitcnt vmcnt(8)\ns_barrier")
    k.stamp(2)
    wo = []
    for i in range(24, -1, -1):
        pre = []
        if i == 24 or i % 4 == 3: pre = ([] if i == 24 else ["s_sub_u32 s53, s53, 4096"]) + [f"s_add_u32 m0, s53, {WOL}"]
        wo.append((f"buffer_load_dwordx4 v{L16}, s[48:51], s53 offen offset:{(i%4)*1024} sc1 lds", pre))
    cnt = [12]; done = {0: 4, 1: 8, 2: 12}
    def ld(x): k(x); cnt[0] += 1
    for tt in range(4): k(rd(0, tt))
    for s in gsetup(3): k(s)
    ld(xload(3, 0)); ld(wload(3, 0))
    for ks in range(40):
        G = (ks + 13) // 4; i = (ks + 13) % 4
        x = XR + 4*(ks % 16)
        for tt in range(4):
            lg = 3 if ks < 39 else 3 - tt
            if tt == 0 and ks % 4 == 3 and ks < 39:
                g = (ks + 1) // 4
                k(f"s_waitcnt vmcnt({cnt[0] - done[g]}) lgkmcnt({lg})\ns_barrier")
            else:
                k(f"s_waitcnt lgkmcnt({lg})")
            a = f"v[{ACC+16*tt}:{ACC+16*tt+15}]"
            k(f"v_mfma_f32_32x32x16_bf16 {a}, v[{WF+4*tt}:{WF+4*tt+3}], v[{x}:{x+3}], {a if ks else 0}")
            if ks < 39: k(rd(ks+1, tt))
            if G == 10 and tt in (0, 3):
                j = 2*i + tt//3
                ld(f"buffer_load_dword v{SQ+j}, v{ASQ}, s[12:15], s22 offen offset:{128*j} sc1")
                done[10] = cnt[0]
            if G >= 10 and tt in (1, 2) and wo:
                x_, pre = wo.pop(0)
                for s in pre: k(s)
                ld(x_)
            if ks == 38 and tt == 0: k(f"s_waitcnt vmcnt({cnt[0] - done[10]})")
            if ks == 38 and tt < 4: k(f"v_add_f32 v{SQ+tt}, v{SQ+tt}, v{SQ+4+tt}")
            if ks == 39 and tt < 2: k(f"v_add_f32 v{SQ+tt}, v{SQ+tt}, v{SQ+2+tt}")
            if ks == 39 and tt == 2: k(f"v_add_f32 v{SS}, v{SQ}, v{SQ+1}\nv_add_f32 v{T0}, v{SQ}, v{SQ+1}")
            if G < 10:
                if tt == 0 and i == 0:
                    for s in gsetup(G): k(s)
                if tt == 1: ld(xload(G, i))
                if tt == 2: ld(wload(G, i)); done[G] = cnt[0]
    assert not wo
    k.stamp(3)
    RS = T0 + 8
    k(f"""
    v_permlane32_swap_b32 v{t}, v{SS}
    v_add_f32 v{SS}, v{t}, v{SS}
    v_mov_b32 v{t+1}, {hx(f2u(1e-5))}
    v_fmac_f32 v{t+1}, {hx(f2u(1/640))}, v{SS}
    v_mul_f32 v{t}, {hx(f2u(1/640))}, v{ACC+60}
    v_fma_f32 v{t+1}, -v{t}, v{t}, v{t+1}
    v_rsq_f32 v{RS}, v{t+1}
    """)
    P = WF
    def scale_pack(src, dst, n):
        for j in range(n):
            k(f"v_pk_mul_f32 v[{src+2*j}:{src+2*j+1}], v[{src+2*j}:{src+2*j+1}], v[{RS}:{RS+1}] op_sel_hi:[1,0]")
            if j: k(f"v_cvt_pk_bf16_f32 v{dst+j-1}, v{src+2*j-2}, v{src+2*j-1}")
        k(f"v_cvt_pk_bf16_f32 v{dst+n-1}, v{src+2*n-2}, v{src+2*n-1}")
    k(f"s_cmp_lg_u32 s63, 0\ns_cbranch_scc1 {L('epiA')}")
    if True:
        scale_pack(ACC+40, P+20, 10)
        for j in range(5): k(f"ds_write_b64 v{AVW}, v[{P+20+2*j}:{P+21+2*j}] offset:{8*j}")
        scale_pack(ACC+20, P+10, 10)
        k(f"""
        buffer_store_dwordx4 v[{P+10}:{P+13}], v{AK}, s[24:27], s30 offen sc1
        buffer_store_dwordx4 v[{P+14}:{P+17}], v{AK}, s[24:27], s30 offen offset:512 sc1
        buffer_store_dwordx2 v[{P+18}:{P+19}], v{AKT}, s[24:27], s31 offen offset:2048 sc1
        s_waitcnt lgkmcnt(0)
        """)
        for p in range(3):
            k(f"ds_read_b64_tr_b16 v[{P+32+4*p}:{P+33+4*p}], v{AVR+p}")
            k(f"ds_read_b64_tr_b16 v[{P+34+4*p}:{P+35+4*p}], v{AVR+p} offset:320")
        for p in range(3):
            k(f"s_waitcnt lgkmcnt({4-2*p})")
            k(f"buffer_store_dwordx4 v[{P+32+4*p}:{P+35+4*p}], v{AVS+p}, s[24:27], s32 offen offset:2560 sc1")
        scale_pack(ACC, P, 10)
        k(f"""
        ds_write_b128 v{AQ}, v[{P}:{P+3}] offset:{QL}
        ds_write_b128 v{AQ}, v[{P+4}:{P+7}] offset:{QL+512}
        ds_write_b64 v{AQT}, v[{P+8}:{P+9}] offset:{QL+1024}
        s_lshl_b32 s28, s6, 4
        s_add_u32 s28, s28, s7
        s_waitcnt lgkmcnt(0)
        """)
        k.stamp(6)
        publish(k, 28, T0, 7)
        k(f"s_branch {k.lab('atop')}\n{L('epiA')}:")
    if True:
        EPS = RS + 4
        TE = 120
        k(f"v_mul_f32 v{RS+2}, {hx(f2u(LOG2E))}, v{RS}\nv_mov_b32 v{EPS}, {hx(f2u(1e-6))}")
        def phi_pack(src, dst, n):
            for j in range(n + 1):
                a = src + 2*j; e = TE + 2*(j % 2)
                if j < n:
                    k(f"""
                    v_pk_mul_f32 v[{e}:{e+1}], v[{a}:{a+1}], v[{RS+2}:{RS+3}] op_sel_hi:[1,0]
                    v_max_f32 v{a}, 0, v{a}
                    v_exp_f32 v{e}, v{e} clamp
                    v_exp_f32 v{e+1}, v{e+1} clamp
                    v_max_f32 v{a+1}, 0, v{a+1}
                    """)
                if j: k(f"v_cvt_pk_bf16_f32 v{dst+j-1}, v{a-2}, v{a-1}")
                if j < n:
                    k(f"""
                    v_pk_fma_f32 v[{a}:{a+1}], v[{a}:{a+1}], v[{RS}:{RS+1}], v[{EPS}:{EPS+1}] op_sel_hi:[1,0,0]
                    v_pk_add_f32 v[{a}:{a+1}], v[{a}:{a+1}], v[{e}:{e+1}]
                    """)
        PK = P + 12
        scale_pack(ACC+40, PK+10, 10)
        k(f"""
        v_mov_b32 v{PK+20}, 0x3f803f80
        v_mov_b32 v{PK+21}, 0x3f803f80
        ds_write_b128 v{AW}, v[{PK+12}:{PK+15}] offset:{KVS+48}
        ds_write_b128 v{AW}, v[{PK+16}:{PK+19}] offset:{KVS+64}
        ds_write_b64 v{AW}, v[{PK+20}:{PK+21}] offset:{KVS+80}
        """)
        phi_pack(ACC+20, PK, 10)
        for j in range(3): k(f"ds_write_b128 v{AW}, v[{PK+4*j}:{PK+4*j+3}] offset:{KVS+16*j}")
        k(f"""
        s_waitcnt lgkmcnt(0)
        s_barrier
        s_cmp_ge_u32 s3, 2
        s_cbranch_scc1 {L('nokv')}
        """)
        FA = 76
        D = 24
        for c in range(8):
            for h in range(2):
                k(f"ds_read_b64_tr_b16 v[{FA+8*c+2*h}:{FA+8*c+2*h+1}], v{ATA} offset:{KVS + c*1536 + h*384}")
                k(f"ds_read_b64_tr_b16 v[{FA+8*c+4+2*h}:{FA+8*c+5+2*h}], v{ATB} offset:{KVS + 40 + c*1536 + h*384}")
            if c >= 3:
                cc = c - 3
                k(f"s_waitcnt lgkmcnt(12)")
                k(f"v_mfma_f32_32x32x16_bf16 v[{D}:{D+15}], v[{FA+8*cc}:{FA+8*cc+3}], v[{FA+8*cc+4}:{FA+8*cc+7}], {f'v[{D}:{D+15}]' if cc else 0}")
        for cc in range(5, 8):
            k(f"s_waitcnt lgkmcnt({4*(7-cc)})")
            k(f"v_mfma_f32_32x32x16_bf16 v[{D}:{D+15}], v[{FA+8*cc}:{FA+8*cc+3}], v[{FA+8*cc+4}:{FA+8*cc+7}], v[{D}:{D+15}]")
        for j in range(6): k(f"v_cvt_pk_bf16_f32 v{44+j}, v{D+2*j}, v{D+2*j+1}")
        for j in range(6): k(f"v_min_u32 v{44+j}, -2, v{44+j}")
        k(f"""
        buffer_store_dwordx4 v[44:47], v{APM}, s[24:27], s31 offen sc1
        buffer_store_dwordx2 v[48:49], v{APT}, s[24:27], s31 offen offset:1344 sc1
        {L('nokv')}:
        """)
        phi_pack(ACC, P, 10)
        k.stamp(4)
        GA = 80
        k(f"""
        s_mov_b32 s36, 0x40000
        s_mov_b32 s37, 0x3f80
        s_mov_b32 s38, 0x3f800000
        {L('poll')}:
        """)
        for j in range(16):
            k(f"buffer_load_dwordx2 v[{GA+2*j}:{GA+2*j+1}], v{AG}, s[24:27], s{40+j//2} offen offset:{(j%2)*2048} sc1")
        k(f"s_sub_u32 s36, s36, 1")
        for j in range(16):
            if j % 2 == 0: k(f"s_waitcnt vmcnt({14-j})")
            k(f"v_max3_u32 v{t}, v{GA+2*j}, v{GA+2*j+1}, {f'v{t}' if j else 0}")
        k(f"""
        v_cmp_eq_u32 vcc, -1, v{t}
        s_cmp_eq_u32 s36, 0
        s_cbranch_scc1 {L('got')}
        s_cbranch_vccnz {L('poll')}
        {L('got')}:
        """)
        k.stamp(5)
        for j in range(16):
            for q in range(4):
                c = 0 if j == 0 else f"v{t+q}"
                k(f"v_dot2_f32_bf16 v{t+q}, v{GA+2*j+q//2}, s{37+q%2}, {c}")
        for j in range(4): k(f"v_permlane32_swap_b32 v{P+j}, v{P+4+j}")
        k(f"""
        v_cvt_pk_bf16_f32 v{t+4}, v{t}, v{t+1}
        v_cvt_pk_bf16_f32 v{t+5}, v{t+2}, v{t+3}
        ds_write_b64 v{ARW}, v[{t+4}:{t+5}] offset:{RR}
        s_waitcnt lgkmcnt(0)
        s_barrier
        ds_read_b128 v[80:83], v{ARM} offset:{RR}
        ds_read_b128 v[84:87], v{ARM} offset:{RR+672}
        ds_read_b64 v[88:89], v{ART} offset:{RR+1344}
        s_waitcnt lgkmcnt(0)
        v_mfma_f32_32x32x4_2b_bf16 v[0:31], v[88:89], v[{P+8}:{P+9}], 0
        v_mfma_f32_32x32x16_bf16 v[0:15], v[80:83], v[{P}:{P+3}], v[0:15]
        v_mfma_f32_32x32x16_bf16 v[16:31], v[84:87], v[{P+4}:{P+7}], v[16:31]
        """)
        for H in range(2):
            d = 16*H
            k(f"v_add_f32 v{d+12}, v{EPS}, v{d+12}\nv_rcp_f32 v{RS}, v{d+12}")
            scale_pack(d, 40 + 6*H, 6)
            k(f"buffer_store_dwordx4 v[{40+6*H}:{43+6*H}], v{L16}, s[24:27], s32 offen offset:{1024*H} sc1")
        k(f"""
        v_mov_b32 v52, v44
        v_mov_b32 v53, v45
        v_mov_b32 v54, v50
        v_mov_b32 v55, v51
        buffer_store_dwordx4 v[52:55], v{AOT}, s[24:27], s33 offen sc1
        """)
    k("s_lshl_b32 s7, s7, 4\ns_add_u32 s6, s6, s7")
    k.stamp(6)
    publish(k, 6, T0, 7)
```

```python
import sys, os
sys.path.insert(0, os.path.dirname(os.path.abspath(__file__)))
from mcommon import *
from gen import emit, NAME
from prep import gen_prep
from mqkv import m_qkv
from mop import m_op
from matt2 import m_att, att_init, NB
def gen_mega(name):
    k = K(name, 256, 256, 163840, vgpr=256, sgpr=102, agpr=26*NB)
    k.lab = lambda n: "L_m_" + n
    k(f"""
    s_cmp_ge_u32 s2, 256
    s_cbranch_scc1 {k.lab('end')}
    s_load_dwordx2 s[4:5], s[0:1], 64
    s_load_dwordx2 s[{DO}:{DO+1}], s[0:1], 48
    v_lshrrev_b32 v1, 6, v0
    v_and_b32 v{LN}, 63, v0
    v_readfirstlane_b32 s3, v1
    v_lshlrev_b32 v{L16}, 4, v{LN}
    v_mov_b32 v174, {hx(OOB)}
    s_mov_b32 s{PH}, 1
    s_mov_b32 s{NL}, 0
    """)
    op_map(k, 6, 7, 16)
    k(f"""
    s_and_b32 s34, s3, 1
    s_lshl_b32 s16, s7, 1
    s_add_u32 s16, s16, s34
    s_mul_i32 s16, s16, {XT}
    s_mul_i32 s6, s6, 5120
    s_add_u32 s16, s16, s6
    s_add_u32 s16, s16, {hx(X0)}
    s_and_b32 s7, s3, 2
    s_lshl_b32 s7, s7, 10
    s_add_u32 s7, s7, s16
    s_add_u32 s16, s16, 4096
    s_waitcnt lgkmcnt(0)
    """)
    wpre_setup(k, False)
    for x, pre in wpre_loads():
        for s in pre: k(s)
        k(x)
    srd(k, 56, 4, 0, WSEND)
    k(f"""
    buffer_load_dwordx4 v[{RES}:{RES+3}], v{L16}, s[56:59], s7 offen
    buffer_load_dwordx4 v[{RES+4}:{RES+7}], v{L16}, s[56:59], s7 offen offset:1024
    buffer_load_dwordx4 v[{RES+8}:{RES+11}], v{L16}, s[56:59], s16 offen
    """)
    att_init(k, 1)
    m_qkv(k)
    m_op(k)
    k(f"{k.lab('end')}:\ns_endpgm")
    m_att(k)
    return k
def build(verbose=False):
    prep = gen_prep(); m = gen_mega(NAME + "_kernel")
    return emit([(prep, prep.name), (m, m.name)], verbose)
if __name__ == "__main__":
    K.PROF = "-p" in sys.argv
    txt = build("-v" in sys.argv)
    dst = f"cdna_kernels/{NAME}.s"
    for a in sys.argv[1:]:
        if a.endswith(".s"): dst = a
    open(dst, "w").write(txt)
    print(dst, len(txt))
```

```python
from mcommon import *
OOB = 0x40000000

def m_op(k):
    L = lambda n: k.lab("o" + n)
    X, Y, HA, HB, OF, WF, RF = 0, 16, 32, 48, 64, 144, RES
    AX, AY, AH, AS, AR, AO, AOH, ASQ, t = range(178, 187)
    k(f"{L('top')}:")
    k.stamp(0)
    op_map(k, 6, 7, 16)
    k(f"""
    s_and_b32 s34, s3, 1
    s_lshr_b32 s35, s3, 1
    s_lshl_b32 s16, s7, 1
    s_add_u32 s16, s16, s34
    s_mul_i32 s36, s16, 40960
    s_mul_i32 s18, s{NL}, {OSZ}
    s_add_u32 s18, s18, s36
    s_add_u32 s18, s18, {hx(OS[0])}
    s_mul_i32 s21, s35, 20480
    s_lshr_b32 s20, s7, 1
    s_lshl_b32 s20, s20, 4
    """)
    srd(k, 12, 4, "s18", 40960)
    wait_setup(k, 20, 15, t)
    wait(k, t)
    k.stamp(1)
    for c in range(5):
        for i in range(4):
            k(f"buffer_load_dwordx4 v[{OF+16*c+4*i}:{OF+16*c+4*i+3}], v{L16}, s[12:15], s21 offen offset:{i*1024} sc1")
        if c < 4: k("s_add_u32 s21, s21, 4096")
        if c == 0:
            k(f"""
            s_mul_i32 s22, s35, 51200
            s_add_u32 s22, s22, {WOL}
            v_add_u32 v{AH}, s22, v{L16}
            s_lshl_b32 s22, s35, 10
            v_add_u32 v{AY}, s22, v{AH}
            s_xor_b32 s22, s22, 1024
            v_add_u32 v{AX}, s22, v{AH}
            """)
    loads = wpre_loads()
    n = [20]
    def issue():
        if loads:
            x, pre = loads.pop(0)
            for s in pre: k(s)
            k(x); n[0] += 1
    k(f"s_bitcmp0_b32 s{NL}, 0")
    wpre_setup(k, None)
    k(f"""
    s_mul_i32 s37, s6, 5
    s_lshl_b32 s38, s35, 1
    s_add_u32 s38, s38, s37
    s_add_u32 s37, s37, 4
    s_mul_i32 s22, s3, 6144
    s_add_u32 s22, s22, {WOL}
    v_add_u32 v{AS}, s22, v{L16}
    s_xor_b32 s22, s3, 2
    s_mul_i32 s22, s22, 6144
    s_add_u32 s22, s22, {WOL}
    v_add_u32 v{AR}, s22, v{L16}
    s_mov_b32 s42, 0x3f80
    s_mov_b32 s43, 0x3f800000
    s_lshl_b32 s41, s35, 30
    s_cmp_eq_u32 s35, 0
    s_cselect_b32 s45, s43, 0
    v_and_b32 v{t}, 31, v{LN}
    s_mov_b32 s31, 0x20000
    s_cmp_eq_u32 s{NL}, 3
    s_cbranch_scc1 {L('fin')}
    s_mul_i32 s33, s16, {XT}
    s_mul_i32 s20, s{NL}, {XSZ}
    s_add_u32 s20, s20, s33
    s_add_u32 s20, s20, {hx(XS[1])}
    s_add_u32 s28, s4, s20
    s_addc_u32 s29, s5, 0
    s_mov_b32 s30, {XT}
    v_mov_b32 v{AO}, v{L16}
    v_lshlrev_b32 v{ASQ}, 2, v{t}
    s_lshl_b32 s39, s38, 10
    s_add_u32 s44, s39, 1024
    s_lshl_b32 s40, s37, 10
    s_lshl_b32 s32, s6, 1
    s_add_u32 s32, s32, s35
    s_lshl_b32 s32, s32, 7
    s_add_u32 s32, s32, 40960
    s_branch {L('go')}
    {L('fin')}:
    s_mov_b64 s[28:29], s[{DO}:{DO+1}]
    s_mov_b32 s30, {2048*1280}
    v_mul_u32_u24 v{AO}, 1280, v{t}
    v_lshrrev_b32 v{t}, 5, v{LN}
    v_lshl_add_u32 v{AO}, v{t}, 4, v{AO}
    v_mov_b32 v{ASQ}, {hx(OOB)}
    s_lshl_b32 s39, s38, 5
    s_add_u32 s39, s39, s36
    s_add_u32 s44, s39, 32
    s_lshl_b32 s40, s37, 5
    s_add_u32 s40, s40, s36
    s_mov_b32 s32, 0
    {L('go')}:
    v_add_u32 v{AOH}, s41, v{AO}
    """)
    def rd(p, j):
        a, o = [(AH, 4096), (AX, 0), (AY, 0), (AX, 2048), (AY, 2048)][j]
        return f"ds_read_b128 v[{WF+4*j}:{WF+4*j+3}], v{a} offset:{p*5120 + o}"
    def mf(d, j, ks, first):
        a = f"v[{d}:{d+15}]"
        return f"v_mfma_f32_32x32x16_bf16 {a}, v[{WF+4*j}:{WF+4*j+3}], v[{OF+4*ks}:{OF+4*ks+3}], {0 if first else a}"
    for j in range(5): k(rd(0, j))
    for p in range(10):
        last = p == 9
        k(f"s_waitcnt vmcnt({n[0] - 2*p - 2}) lgkmcnt(4)")
        if p == 0: k.stamp(2)
        if p == 6: k("s_barrier")
        k(mf(HA, 0, 2*p, p == 0))
        k(mf(HB, 0, 2*p+1, p == 0))
        if not last: k(rd(p+1, 0))
        for j in range(1, 5):
            k(f"s_waitcnt lgkmcnt({4 - j if last else 4})")
            k(mf(X if j % 2 else Y, j, 2*p + (j-1)//2, p == 0 and j < 3))
            if not last: k(rd(p+1, j))
            if j in (1, 3): issue()
            if last and j == 3:
                for i in range(4): k(f"v_pk_add_f32 v[{HA+2*i}:{HA+2*i+1}], v[{HA+2*i}:{HA+2*i+1}], v[{HB+8+2*i}:{HB+9+2*i}]")
    assert not loads
    k.stamp(3)
    for i in range(2): k(f"ds_write_b128 v{AS}, v[{HA+4*i}:{HA+4*i+3}] offset:{4096 + i*1024}")
    for i in range(8): k(f"v_dot2_f32_bf16 v{HB+i}, v{RF+8+i//2}, s{42+i%2}, v{HA+i}")
    for i in range(4): k(f"ds_write_b128 v{AS}, v[{X+4*i}:{X+4*i+3}] offset:{i*1024}")
    for i in range(16): k(f"v_dot2_f32_bf16 v{Y+i}, v{RF+i//2}, s{42+i%2}, v{Y+i}")
    k("s_waitcnt lgkmcnt(0)\ns_barrier")
    for i in range(6): k(f"ds_read_b128 v[{OF+4*i}:{OF+4*i+3}], v{AR} offset:{i*1024}")
    k(f"s_cmp_eq_u32 s{NL}, 3\ns_cbranch_scc1 {L('last')}")
    def outs(m):
      for f in range(3):
        own = Y + 8*f if f < 2 else HB
        k(f"s_waitcnt lgkmcnt({4-2*f})")
        for i in range(4): k(f"v_pk_add_f32 v[{own+2*i}:{own+2*i+1}], v[{own+2*i}:{own+2*i+1}], v[{OF+8*f+2*i}:{OF+8*f+2*i+1}]")
        for i in range(4): k(f"v_cvt_pk_bf16_f32 v{RF+4*f+i}, v{own+2*i}, v{own+2*i+1}")
        k(f"buffer_store_dwordx4 v[{RF+4*f}:{RF+4*f+3}], v{AOH if f == 2 else AO}, s[28:31], s{(39, 44, 40)[f]} offen{m}")
    outs(' sc1')
    for i in range(4):
        for f in range(3): k(f"v_dot2_f32_bf16 v{t+f}, v{RF+4*f+i}, v{RF+4*f+i}, {f'v{t+f}' if i else 0}")
    k(f"""
    v_add_f32 v{t}, v{t}, v{t+1}
    v_fma_f32 v{t}, v{t+2}, s45, v{t}
    v_mov_b32 v{t+1}, v{t}
    v_permlane32_swap_b32 v{t+1}, v{t}
    v_add_f32 v{t}, v{t}, v{t+1}
    buffer_store_dword v{t}, v{ASQ}, s[28:31], s32 offen sc1
    s_lshl_b32 s7, s7, 3
    s_add_u32 s6, s6, s7
    """)
    k.stamp(4)
    publish(k, 6, t, 5)
    k(f"s_add_u32 s{NL}, s{NL}, 1\ns_branch {k.lab('qtop')}\n{L('last')}:")
    outs('')
    k(f"""
    s_or_b32 s6, s2, s3
    s_cbranch_scc1 {L('done')}
    v_mov_b32 v0, s{EP}
    v_mov_b32 v1, s{EP+1}
    v_mov_b32 v2, {hx(EPO)}
    s_mov_b64 exec, 1
    buffer_store_dwordx2 v[0:1], v2, s[56:59], 0 offen
    {L('done')}:
    """)
    k.stamp(4)
    k("s_waitcnt vmcnt(0)")
    k.prof_end(3, 5, PH)
```

```python
import os
from mcommon import *
QSCALE = 20 ** -0.5 * 1.4426950408889634
def m_prep(k, ATOM=False):
    L = lambda n: k.lab("p" + n)
    RED = 4*7168
    W, WO = 16, 40
    k.stamp(0)
    k(f"""
    s_load_dwordx16 s[36:51], s[0:1], 0
    s_load_dwordx2 s[4:5], s[0:1], 64
    v_lshrrev_b32 v1, 6, v0
    v_and_b32 v{LN}, 63, v0
    v_readfirstlane_b32 s3, v1
    v_lshlrev_b32 v{L16}, 4, v{LN}
    s_mov_b32 s{PH}, 1
    s_mov_b32 s{NL}, 0
    s_lshr_b32 s18, s2, 5
    s_lshl_b32 s18, s18, 3
    s_and_b32 s19, s2, 7
    s_add_u32 s18, s18, s19
    s_lshl_b32 s18, s18, 2
    s_bfe_u32 s19, s2, 0x20003
    s_add_u32 s18, s18, s19
    s_mul_i32 s16, s3, 7168
    v_lshrrev_b32 v7, 1, v{LN}
    v_mul_u32_u24 v7, 3840, v7
    v_and_b32 v5, 1, v{LN}
    v_lshl_add_u32 v7, v5, 4, v7
    s_cmp_ge_u32 s18, 120
    s_cselect_b32 s31, 120, 0
    s_cselect_b32 s30, {hx(WB)}, 0
    s_cselect_b32 s33, {hx(f2u(QSCALE))}, 1.0
    s_sub_u32 s31, s18, s31
    s_lshl_b32 s34, s31, 5
    s_mul_i32 s17, s3, {160*3840}
    s_add_u32 s34, s34, s17
    s_cmp_ge_u32 s18, 240
    s_cselect_b32 s26, 0, {640*3840}
    s_mov_b32 s27, 0x20000
    s_mov_b32 m0, s16
    v_lshrrev_b32 v2, 5, v{LN}
    v_bfe_u32 v3, v{LN}, 4, 1
    v_bfe_u32 v4, v{LN}, 2, 2
    v_and_b32 v5, 3, v{LN}
    """)
    sdiv(k, 61, 2, 10, 256)
    k(f"""
    s_mul_i32 s63, s61, 10
    s_sub_u32 s63, s2, s63
    s_lshl_b32 s63, s63, 1
    s_lshr_b32 s62, s3, 1
    s_add_u32 s63, s63, s62
    s_cmp_ge_u32 s61, 10
    s_cselect_b32 s62, 10, 0
    s_sub_u32 s62, s61, s62
    s_lshl_b32 s62, s62, 1
    s_and_b32 s60, s3, 1
    s_add_u32 s62, s62, s60
    v_lshlrev_b32 v8, 3, v3
    v_lshl_add_u32 v8, v2, 2, v8
    v_mul_u32_u24 v9, 40, v2
    v_mad_u32_u24 v9, v3, 20, v9
    v_add_u32 v9, 16, v9
    s_mul_i32 s20, s63, {40*1280}
    s_mul_i32 s21, s63, {160*1280}
    s_sub_u32 s21, s21, {16*160*1280}
    s_cmp_lt_u32 s63, 16
    s_cselect_b32 s20, s20, s21
    s_cselect_b64 vcc, -1, 0
    s_cselect_b32 s21, 20, 80
    v_cndmask_b32 v8, v9, v8, vcc
    v_add_u32 v8, v8, v4
    v_mul_u32_u24 v8, 1280, v8
    v_lshl_add_u32 v8, v5, 4, v8
    s_lshl_b32 s22, s62, 6
    s_add_u32 s20, s20, s22
    s_mul_i32 s21, s21, 1280
    s_add_u32 s21, s21, s20
    s_cmp_ge_u32 s18, 120
    s_waitcnt lgkmcnt(0)
    s_cselect_b32 s24, s44, s38
    s_cselect_b32 s25, s45, s39
    """)
    k.stamp(1)
    k(f"s_add_u32 s52, s4, {hx(EPO)}\ns_addc_u32 s53, s5, 0\ns_load_dwordx2 s[{EP}:{EP+1}], s[52:53], 0")
    for i in range(5):
        if i == 4: k(f"s_add_u32 m0, s16, 4096")
        k(f"buffer_load_dwordx4 v7, s[24:27], s34 offen offset:{(i%4)*1024} lds")
        if i < 4: k(f"s_add_u32 s34, s34, {32*3840 - (1024 if i < 3 else -3072)}")
    k(f"""
    s_cmp_ge_u32 s61, 10
    s_cselect_b32 s12, s46, s40
    s_cselect_b32 s13, s47, s41
    s_cselect_b32 s28, {hx(WOSZ)}, 0
    s_cmp_ge_u32 s2, 200
    s_cselect_b32 s14, 0, {640*1280}
    s_mov_b32 s15, 0x20000
    s_add_u32 m0, s16, 5120
    s_sub_u32 s21, s21, 1024
    buffer_load_dwordx4 v8, s[12:15], s20 offen lds
    buffer_load_dwordx4 v8, s[12:15], s21 offen offset:1024 lds
    """)
    op_map(k, 6, 7, 17)
    srd(k, 8, 36, 0, 2048*1280)
    k(f"""
    s_and_b32 s34, s3, 1
    s_lshr_b32 s35, s3, 1
    s_lshl_b32 s17, s7, 1
    s_add_u32 s17, s17, s34
    s_mul_i32 s19, s17, 40960
    s_mul_i32 s20, s6, 160
    s_add_u32 s19, s19, s20
    s_lshl_b32 s20, s35, 6
    s_add_u32 s20, s20, s19
    v_and_b32 v1, 31, v{LN}
    v_mul_u32_u24 v9, 1280, v1
    v_lshl_add_u32 v9, v2, 4, v9
    buffer_load_dwordx4 v[{RES}:{RES+3}], v9, s[8:11], s20 offen
    buffer_load_dwordx4 v[{RES+4}:{RES+7}], v9, s[8:11], s20 offen offset:32
    buffer_load_dwordx4 v[{RES+8}:{RES+11}], v9, s[8:11], s19 offen offset:128
    """)
    srd(k, 56, 4, 0, WSEND)
    k(f"""
    s_mov_b64 s[{DO}:{DO+1}], s[48:49]
    v_mov_b32 v56, -1
    v_mov_b32 v57, -1
    v_mov_b32 v58, -1
    v_mov_b32 v59, -1
    v_lshlrev_b32 v9, {8+FS}, v0
    v_cmp_gt_u32 vcc, 10, v0
    v_mov_b32 v10, {hx(OOB)}
    v_cndmask_b32 v9, v10, v9, vcc
    s_lshl_b32 s19, s2, {FS}
    s_add_u32 s19, s19, {hx(FLG)}
    buffer_store_dword v56, v9, s[56:59], s19 offen sc1
    """)
    k(f"""
    s_lshl_b32 s19, s62, 5
    v_add_u32 v8, s19, v1
    """)
    vdiv(k, 9, 8, 80, 640)
    k(f"""
    v_mul_u32_u24 v10, 80, v9
    v_sub_u32 v10, v8, v10
    v_mul_u32_u24 v14, {hx(102400)}, v9
    v_lshl_add_u32 v14, v2, 9, v14
    v_lshl_add_u32 v14, v5, 4, v14
    """)
    for b, s in ((3, 6), (2, 7), (4, 8), (5, 10), (6, 12)): k(f"v_bfe_u32 v13, v10, {b}, 1\nv_lshl_add_u32 v14, v13, {s}, v14")
    k(f"""
    v_mul_u32_u24 v13, {2048-256}, v13
    v_sub_u32 v13, 2048, v13
    v_add_u32 v15, v13, v14
    s_mul_i32 s29, s63, 5120
    s_add_u32 s28, s28, s29
    s_add_u32 s28, s28, {hx(WOA)}
    s_cmp_ge_u32 s2, 200
    s_cselect_b32 s29, {hx(OOB)}, 0
    v_add_u32 v14, s29, v14
    v_add_u32 v15, s29, v15
    v_lshlrev_b32 v6, 9, v2
    v_lshl_add_u32 v6, v4, 6, v6
    v_lshl_add_u32 v6, v3, 5, v6
    v_lshl_add_u32 v6, v5, 3, v6
    v_add_u32 v6, s16, v6
    s_mul_i32 s19, s17, {XT}
    s_add_u32 s19, s19, {hx(X0)}
    s_mul_i32 s20, s6, 5120
    s_add_u32 s20, s20, s19
    s_lshl_b32 s21, s35, 11
    s_add_u32 s21, s21, s20
    s_add_u32 s20, s20, 4096
    s_lshl_b32 s22, s6, 1
    s_add_u32 s22, s22, s35
    s_lshl_b32 s22, s22, 7
    s_add_u32 s22, s22, s19
    s_add_u32 s22, s22, 40960
    s_lshl_b32 s23, s35, 30
    v_add_u32 v60, s23, v{L16}
    v_lshlrev_b32 v61, 2, v1
    s_cmp_eq_u32 s35, 0
    s_cselect_b32 s23, 1.0, 0
    s_cmp_ge_u32 s18, 240
    s_cbranch_scc1 {L('pad')}
    """)
    sdiv(k, 35, 31, 40, 120)
    k(f"""
    s_cmp_eq_u32 s35, 0
    s_cselect_b32 s33, s33, 1.0
    s_mul_i32 s32, s35, 40
    s_sub_u32 s32, s31, s32
    s_lshl_b32 s32, s32, 4
    s_mul_i32 s35, s35, 5
    v_and_b32 v7, 15, v{LN}
    v_add_u32 v8, s32, v7
    """)
    vdiv(k, 9, 8, 20, 640)
    k(f"""
    v_mul_u32_u24 v10, 20, v9
    v_sub_u32 v10, v8, v10
    v_lshrrev_b32 v11, 2, v10
    v_add_u32 v11, s35, v11
    v_lshrrev_b32 v12, 1, v9
    v_mul_u32_u24 v12, {hx(163840)}, v12
    v_lshrrev_b32 v13, 2, v11
    v_lshl_add_u32 v12, v13, 10, v12
    v_and_b32 v13, 3, v11
    v_lshl_add_u32 v12, v13, 7, v12
    v_and_b32 v13, 1, v9
    v_lshl_add_u32 v12, v13, 6, v12
    v_lshl_add_u32 v12, v5, 4, v12
    v_lshl_add_u32 v12, v3, 9, v12
    v_lshl_add_u32 v12, v2, 12, v12
    s_mul_i32 s32, s3, 40960
    s_add_u32 s30, s30, s32
    v_lshrrev_b32 v8, 4, v{LN}
    v_lshlrev_b32 v8, 8, v8
    v_lshl_add_u32 v8, v7, 3, v8
    v_add_u32 v8, s16, v8
    v_lshlrev_b32 v9, 4, v7
    s_lshl_b32 s32, s3, 2
    v_add_u32 v10, s32, v9
    s_mov_b32 s32, 0x3f803f80
    s_waitcnt vmcnt(6) lgkmcnt(0)
    """)
    k.stamp(2)
    for i in range(5):
        k(f"ds_read_b64_tr_b16 v[{W+4*i}:{W+4*i+1}], v8 offset:{i*1024}")
        k(f"ds_read_b64_tr_b16 v[{W+4*i+2}:{W+4*i+3}], v8 offset:{i*1024+128}")
    for i in range(5):
        k(f"s_waitcnt lgkmcnt({8-2*i})")
        for j in range(4): k(f"v_dot2_f32_bf16 v{36+j}, v{W+4*i+j}, s32, {f'v{36+j}' if i else 0}")
    k(f"""
    v_add_f32 v36, v36, v37
    v_add_f32 v38, v38, v39
    v_add_f32 v36, v36, v38
    v_mov_b32 v37, v36
    v_permlane32_swap_b32 v36, v37
    v_add_f32 v36, v36, v37
    v_mov_b32 v37, v36
    v_permlane16_swap_b32 v36, v37
    v_add_f32 v36, v36, v37
    ds_write_b32 v10, v36 offset:{RED}
    s_waitcnt lgkmcnt(0)
    s_barrier
    ds_read_b128 v[36:39], v9 offset:{RED}
    v_mov_b32 v48, s33
    s_waitcnt lgkmcnt(0)
    v_add_f32 v36, v36, v37
    v_add_f32 v38, v38, v39
    v_add_f32 v36, v36, v38
    v_mul_f32 v36, {hx(f2u(-1.0/640))}, v36
    v_mul_f32 v36, s33, v36
    """)
    for i in range(5):
        for j in range(4):
            r = W+4*i+j; u = 64 + 2*j
            k(f"v_lshlrev_b32 v{u}, 16, v{r}\nv_and_b32 v{u+1}, 0xffff0000, v{r}")
        for j in range(4): u = 64 + 2*j; k(f"v_pk_fma_f32 v[{u}:{u+1}], v[{u}:{u+1}], v[48:49], v[36:37] op_sel_hi:[1,0,0]")
        for j in range(4): u = 64 + 2*j; k(f"v_cvt_pk_bf16_f32 v{W+4*i+j}, v{u}, v{u+1}")
        k(f"buffer_store_dwordx4 v[{W+4*i}:{W+4*i+3}], v12, s[56:59], s30 offen sc1")
        if i < 4: k("s_add_u32 s30, s30, 8192")
    k(f"""
    s_branch {L('rest')}
    {L('pad')}:
    s_sub_u32 s30, s18, 240
    s_lshl_b32 s30, s30, 2
    s_add_u32 s30, s30, s3
    s_lshl_b32 s31, s30, 14
    s_add_u32 s31, s31, {hx(KVP0)}
    s_mul_i32 s30, s30, {5*16384}
    v_lshrrev_b32 v8, 4, v{LN}
    v_lshlrev_b32 v8, 12, v8
    v_bfe_u32 v9, v{LN}, 3, 1
    v_lshl_add_u32 v8, v9, 9, v8
    v_and_b32 v9, 7, v{LN}
    v_lshl_add_u32 v8, v9, 4, v8
    """)
    for j in range(4): k(f"v_mov_b32 v{W+j}, 0x3f803f80")
    for i in range(16):
        k(f"buffer_store_dwordx4 v[56:59], v{L16}, s[56:59], s31 offen offset:{(i%4)*1024} sc1")
        if i % 4 == 3: k("s_add_u32 s31, s31, 4096")
    for i in range(5):
        k(f"buffer_store_dwordx4 v[{W}:{W+3}], v8, s[56:59], s30 offen offset:{3*1024+24*16} sc1")
        if i < 4: k("s_add_u32 s30, s30, 16384")
    k(f"{L('rest')}:\ns_waitcnt vmcnt(6)")
    for i in range(2):
        k(f"ds_read_b64_tr_b16 v[{WO+4*i}:{WO+4*i+1}], v6 offset:{5120+i*1024}")
        k(f"ds_read_b64_tr_b16 v[{WO+4*i+2}:{WO+4*i+3}], v6 offset:{5120+i*1024+256}")
    k(f"""
    buffer_store_dwordx4 v[{RES}:{RES+3}], v{L16}, s[56:59], s21 offen sc1
    buffer_store_dwordx4 v[{RES+4}:{RES+7}], v{L16}, s[56:59], s21 offen offset:1024 sc1
    buffer_store_dwordx4 v[{RES+8}:{RES+11}], v60, s[56:59], s20 offen sc1
    s_waitcnt lgkmcnt(0)
    buffer_store_dwordx4 v[{WO}:{WO+3}], v14, s[56:59], s28 offen sc1
    buffer_store_dwordx4 v[{WO+4}:{WO+7}], v15, s[56:59], s28 offen sc1
    """)
    t = 64
    for i in range(4):
        for f in range(3): k(f"v_dot2_f32_bf16 v{t+f}, v{RES+4*f+i}, v{RES+4*f+i}, {f'v{t+f}' if i else 0}")
    k(f"""
    v_add_f32 v{t}, v{t}, v{t+1}
    v_fma_f32 v{t}, v{t+2}, s23, v{t}
    v_mov_b32 v{t+1}, v{t}
    v_permlane32_swap_b32 v{t+1}, v{t}
    v_add_f32 v{t}, v{t}, v{t+1}
    buffer_store_dword v{t}, v61, s[56:59], s22 offen sc1
    """)
    k.stamp(3)
    return L
def m_prep_sync(k, L):
    qkv_map(k, 48, 49, 50)
    k(f"""
    s_lshl_b32 s7, s7, 3
    s_add_u32 s7, s7, s6
    s_add_u32 s18, s18, 256
    s_min_u32 s19, s2, 200
    s_add_u32 s19, s19, 512
    v_mov_b32 v2, s7
    v_writelane_b32 v2, s18, 1
    v_writelane_b32 v2, s19, 2
    v_lshlrev_b32 v2, 7, v2
    s_add_u32 s{EP}, s{EP}, 1
    s_add_u32 s{EP+1}, s{EP+1}, 1
    v_mov_b32 v4, s{EP}
    v_mov_b32 v5, s{EP+1}
    s_lshl_b32 s49, s49, 4
    v_and_b32 v3, 15, v{LN}
    v_add_u32 v3, s49, v3
    s_mul_i32 s6, s6, 5
    s_lshr_b32 s6, s6, 2
    s_mul_i32 s6, s6, 10
    s_add_u32 s6, s6, {512-44}
    v_add_u32 v6, s6, v{LN}
    v_cmp_le_u32 vcc, 44, v{LN}
    v_cndmask_b32 v3, v3, v6, vcc
    s_mul_i32 s6, s48, 5
    s_lshr_b32 s6, s6, 1
    """)
    for j in range(9): k(f"s_add_u32 s7, s6, {256 + 40*(j//3) + j%3}\nv_writelane_b32 v3, s7, {16+j}")
    k(f"""
    s_lshr_b32 s7, s48, 1
    s_add_u32 s7, s7, {256+240}
    v_writelane_b32 v3, s7, 25
    v_lshlrev_b32 v3, 7, v3
    s_mov_b32 s22, {hx(PFL)}
    s_mov_b32 s23, 0x40000
    s_waitcnt vmcnt(0)
    s_barrier
    """)
    k.stamp(4)
    k(f"""
    s_cmp_lg_u32 s3, 0
    s_cbranch_scc1 {L('poll')}
    s_mov_b64 exec, 7
    buffer_store_dwordx2 v[4:5], v2, s[56:59], s22 offen sc1
    s_mov_b64 exec, -1
    {L('poll')}:
    buffer_load_dwordx2 v[6:7], v3, s[56:59], s22 offen sc1
    s_sub_u32 s23, s23, 1
    s_cbranch_scc1 {L('got')}
    s_waitcnt vmcnt(0)
    v_cmp_ne_u64 vcc, s[{EP}:{EP+1}], v[6:7]
    s_cbranch_vccnz {L('poll')}
    {L('got')}:
    """)
    k.prof_end(3, 5, NL)
    if K.PROF: srd(k, 56, 4, 0, WSEND)
```

```python
import sys, os
sys.path.insert(0, os.path.dirname(os.path.abspath(__file__)))
from mcommon import *
from gen import emit, NAME
from mprep import m_prep, m_prep_sync
from mqkv import m_qkv
from mop import m_op
from matt2 import m_att, att_init, NB
def gen_mega(name):
    k = K(name, 256, 256, 163840, vgpr=256, sgpr=102, agpr=26*NB)
    k.lab = lambda n: "L_m_" + n
    k(f"s_cmp_ge_u32 s2, 256\ns_cbranch_scc1 {k.lab('end')}")
    L = m_prep(k)
    att_init(k, 1)
    k(f"v_mov_b32 v174, {hx(OOB)}")
    wpre_setup(k, False)
    m_prep_sync(k, L)
    k("s_lshl_b32 s49, s3, 12")
    for x, pre in wpre_loads():
        for s in pre: k(s)
        k(x)
    m_qkv(k)
    m_op(k)
    k(f"{k.lab('end')}:\ns_endpgm")
    m_att(k)
    return k
def build(verbose=False):
    m = gen_mega(NAME + "_kernel")
    return emit([(m, m.name)], verbose)
if __name__ == "__main__":
    K.PROF = "-p" in sys.argv
    txt = build("-v" in sys.argv)
    dst = f"cdna_kernels/{NAME}.s"
    for a in sys.argv[1:]:
        if a.endswith(".s"): dst = a
    open(dst, "w").write(txt)
    print(dst, len(txt))
```

```python
import re

def vr(a, n=1):
    return f"v{a}" if n == 1 else f"v[{a}:{a+n-1}]"
def sr(a, n=1):
    return f"s{a}" if n == 1 else f"s[{a}:{a+n-1}]"

_reg = re.compile(r"^(-|\|)?([vsa])(?:(\d+)|\[(\d+):(\d+)\])\|?$")
def regs_of(op):
    op = op.strip()
    if op in ("vcc",): return {("s", 106), ("s", 107)}
    if op == "vcc_lo": return {("s", 106)}
    if op == "vcc_hi": return {("s", 107)}
    if op == "exec": return {("s", 126), ("s", 127)}
    if op == "exec_lo": return {("s", 126)}
    if op == "exec_hi": return {("s", 127)}
    if op == "m0": return {("s", 124)}
    m = _reg.match(op)
    if not m: return set()
    k = m.group(2)
    if m.group(3) is not None: return {(k, int(m.group(3)))}
    return {(k, i) for i in range(int(m.group(4)), int(m.group(5)) + 1)}

TRANS = ("v_exp_f32", "v_log_f32", "v_rcp_f32", "v_rsq_f32", "v_sqrt_f32")
PASSES = {"v_mfma_f32_32x32x16_bf16": 8, "v_mfma_f32_16x16x32_bf16": 4,
          "v_mfma_f32_32x32x4_2b_bf16": 16, "v_mfma_f32_32x32x8_bf16": 8,
          "v_mfma_f32_32x32x4_2b_bf16_1k": 16, "v_mfma_f32_32x32x8_bf16_1k": 8}

class Ins:
    def __init__(self, text):
        self.text = text
        t = text.split(";")[0].strip()
        self.label = t[:-1] if t.endswith(":") else None
        self.op = None; self.dst = set(); self.src = set(); self.states = 0
        self.kind = None; self.target = None
        if self.label or not t or t.startswith("."): return
        parts = t.split(None, 1)
        op = parts[0]; self.op = op
        rest = parts[1] if len(parts) > 1 else ""
        ops = [x.strip() for x in re.split(r",(?![^\[]*\])", rest)] if rest else []
        mods = ""
        if ops:
            sp = ops[-1].split(None, 1)
            ops[-1] = sp[0]
            if len(sp) > 1: mods = sp[1]
        self.ops = ops; self.mods = mods
        self.states = 1
        base = op.replace("_e32", "").replace("_e64", "")
        self.base = base
        R = [regs_of(o) for o in ops]
        allr = lambda xs: set().union(*xs) if xs else set()
        if op == "s_nop":
            self.kind = "nop"; self.states = int(ops[0]) + 1
        elif op.startswith("s_cbranch") or op == "s_branch":
            self.kind = "branch"; self.target = ops[0]
        elif op == "s_endpgm":
            self.kind = "end"
        elif op.startswith("v_mfma"):
            self.kind = "mfma"; self.dst = R[0]; self.ab = R[1] | R[2]; self.c = R[3]
            self.src = self.ab | self.c; self.passes = PASSES[op]
        elif op.startswith("v_"):
            self.kind = "valu"
            if base.startswith("v_permlane") and "swap" in base:
                self.dst = R[0] | R[1]; self.src = R[0] | R[1]
            elif base.startswith("v_cmp"):
                self.dst = R[0]; self.src = allr(R[1:])
            elif base in ("v_add_co_u32", "v_sub_co_u32"):
                self.dst = R[0] | R[1]; self.src = allr(R[2:])
            elif base in ("v_addc_co_u32",):
                self.dst = R[0] | R[1]; self.src = allr(R[2:])
            else:
                self.dst = R[0]; self.src = allr(R[1:])
                if base in ("v_fmac_f32", "v_dot2c_f32_bf16", "v_writelane_b32"): self.src |= R[0]
                if base == "v_cndmask_b32" and len(ops) == 3: self.src |= regs_of("vcc")
        elif op.startswith("buffer_") or op.startswith("global_"):
            self.kind = "vmem"
            self.lds = " lds" in (" " + mods)
            if "load" in op and not self.lds:
                self.dst = R[0]; self.src = allr(R[1:])
            else:
                self.src = allr(R)
            self.wide_store = ("store" in op) and (op.endswith("x4") or op.endswith("x3"))
            self.data = R[0] if "store" in op else set()
        elif op.startswith("ds_"):
            self.kind = "ds"
            if "read" in op or "permute" in op or "swizzle" in op or "rtn" in op:
                self.dst = R[0]; self.src = allr(R[1:])
            else:
                self.src = allr(R)
        elif op.startswith("s_"):
            self.kind = "salu"
            if op.startswith("s_cmp") or op in ("s_waitcnt", "s_barrier", "s_setprio", "s_sleep", "s_bitcmp1_b32", "s_bitcmp0_b32"):
                self.src = allr(R)
            else:
                self.dst = R[0] if R else set(); self.src = allr(R[1:])
                if "saveexec" in op: self.dst = self.dst | regs_of("exec")
        else:
            raise ValueError("unknown instruction: " + text)

def V(s): return {r for r in s if r[0] in "va"}
def S(s): return {r for r in s if r[0] == "s"}

def need(p, c):
    n = 0
    if p.kind == "valu":
        pd = V(p.dst); ps = S(p.dst)
        if c.kind == "mfma" and pd & c.src: n = max(n, 2)
        if c.kind == "valu":
            if p.base in TRANS and c.base not in TRANS and pd & c.src: n = max(n, 1)
            if ps & c.src: n = max(n, 4 if c.base in ("v_readlane_b32", "v_writelane_b32") else 2)
            if c.base in ("v_readfirstlane_b32", "v_readlane_b32") and pd & c.src: n = max(n, 1)
            if (c.base.startswith("v_permlane") or "dpp" in c.op or "row_" in c.mods or "quad_perm" in c.mods) and pd & c.src: n = max(n, 2)
            if ("sdwa" in p.op or ("op_sel" in p.mods and not p.base.startswith("v_pk_"))) and pd & (c.src | c.dst): n = max(n, 1)
        if p.base.startswith("v_dot"):
            if c.kind in ("valu", "vmem", "ds", "mfma") and pd & (c.src | c.dst):
                same = c.kind == "valu" and c.base == p.base and not (pd & (regs_of(c.ops[1]) | regs_of(c.ops[2])))
                if not same: n = max(n, 3)
        if c.kind == "vmem" and ps & c.src: n = max(n, 5)
    if p.kind == "mfma":
        if c.kind == "mfma":
            if p.dst & c.ab: n = max(n, p.passes + 4)
            if p.dst & c.c:
                if not (p.dst == c.c and p.op == c.op): n = max(n, p.passes + 2)
            elif p.dst & c.dst: n = max(n, p.passes + 2)
        elif c.kind in ("valu", "vmem", "ds"):
            if p.dst & (c.src | c.dst): n = max(n, p.passes + 4)
            if c.kind == "valu" and V(p.c) & c.dst: n = max(n, p.passes - 1)
    if p.kind == "salu" and ("s", 124) in p.dst and c.kind == "vmem" and c.lds: n = max(n, 1)
    if p.kind == "vmem" and p.wide_store and p.data & c.dst:
        n = max(n, 2 if c.kind == "valu" else 1)
    return n

def pad(lines, verbose=False):
    ins = [Ins(l) for l in lines]
    total = 0; start = 0
    while True:
        labels = {x.label: i for i, x in enumerate(ins) if x.label}
        br = {}
        for i, x in enumerate(ins):
            if x.kind == "branch": br.setdefault(x.target, []).append(i)
        fix = None
        for i in range(start, len(ins)):
            c = ins[i]
            if c.kind in (None, "nop", "branch", "end"): continue
            worst = 0
            stack = [(i - 1, 0)]; seen = set()
            while stack:
                j, d = stack.pop()
                while j >= 0 and d < 21:
                    if (j, d) in seen: break
                    seen.add((j, d))
                    p = ins[j]
                    if p.label:
                        for b in br.get(p.label, []): stack.append((b, d))
                        if j > 0 and (ins[j-1].kind == "end" or ins[j-1].op == "s_branch"): break
                    elif p.kind == "end": break
                    elif p.kind is not None:
                        k = need(p, c)
                        if k - d > worst: worst = k - d; why = p.text
                        d += p.states
                    j -= 1
            if worst > 0:
                fix = (i, worst, why); break
        if not fix: break
        i, w, why = fix
        if verbose: print(f"pad {w} before [{ins[i].text.strip()}] after [{why.strip()}]")
        total += w
        new = []
        while w > 0:
            k = min(w, 16); new.append(Ins(f"    s_nop {k-1}")); w -= k
        ins[i:i] = new; start = i
    return [x.text for x in ins], total

import subprocess, tempfile, os
def sizes(lines):
    src = '.amdgcn_target "amdgcn-amd-amdhsa--gfx950"\n.text\n' + "\n".join(lines) + "\n"
    r = subprocess.run(["llvm-mc", "-triple=amdgcn-amd-amdhsa", "-mcpu=gfx950", "-show-encoding"],
                       input=src, capture_output=True, text=True)
    assert r.returncode == 0, r.stderr[:500]
    enc = [l.split("encoding: [")[1].count(",") + 1 for l in r.stdout.split("\n") if "encoding: [" in l]
    out = []; j = 0
    for l in lines:
        if Ins(l).op is None: out.append(0)
        else: out.append(enc[j]); j += 1
    assert j == len(enc)
    return out
NO64 = ("v_readfirstlane", "v_dot2c", "v_permlane", "v_fmac", "v_cndmask", "v_cmp")
def align8(lines):
    sz = sizes(lines); off = 0; cand = None; miss = 0
    lines = list(lines)
    for i, l in enumerate(lines):
        x = Ins(l)
        if l.strip().startswith(".p2align"): off = 0; cand = None; continue
        if sz[i] == 4:
            if x.kind == "valu" and not x.op.startswith(NO64) and not x.op.endswith("_e32"): cand = i
            off += 4
        elif sz[i] >= 8:
            if off % 8:
                if cand is not None:
                    lines[cand] = lines[cand].replace(Ins(lines[cand]).op, Ins(lines[cand]).op + "_e64", 1); off += 4
                else: miss += 1
            off += sz[i]; cand = None
    return lines, miss

class K:
    def __init__(self, name, grid, block, lds, vgpr, sgpr=96, agpr=0):
        self.name = name; self.grid = grid; self.block = block; self.lds = lds
        self.vgpr = vgpr; self.sgpr = sgpr; self.agpr = agpr
        self.L = []; self.align = True
        self.entries = []
    def __call__(self, s):
        for l in s.strip("\n").split("\n"):
            l = l.strip()
            if not l: continue
            self.L.append(l if l.endswith(":") else "    " + l)
    PROF = False
    def stamp(self, j):
        if K.PROF: self(f"s_memrealtime s[{64+4*j}:{65+4*j}]\ns_memtime s[{66+4*j}:{67+4*j}]")
    def prof_end(self, wave, j, ph):
        if not K.PROF: return
        self.stamp(j)
        self(f"""
        s_mov_b64 exec, -1
        v_mov_b32 v238, 0
        s_waitcnt lgkmcnt(0)
        """)
        for i in range(2*(j+1)): self(f"v_writelane_b32 v238, s{64+2*i}, {i}")
        self(f"""
        s_lshl_b32 vcc_lo, s{ph}, 8
        s_add_u32 vcc_lo, vcc_lo, s2
        s_lshl_b32 vcc_lo, vcc_lo, 3
        s_add_u32 vcc_lo, vcc_lo, s{wave}
        s_lshl_b32 vcc_lo, vcc_lo, 6
        s_add_u32 vcc_lo, vcc_lo, 0x4000000
        v_mbcnt_lo_u32_b32 v239, -1, 0
        v_lshl_add_u32 v239, v239, 2, vcc_lo
        s_mov_b64 exec, 0xffff
        global_store_dword v239, v238, s[4:5]
        s_mov_b64 exec, -1
        """)
    def lab(self, n): return f"L_{self.name}_{n}"
    def text(self, verbose=False):
        body, n = pad(self.L, verbose)
        if self.align:
            body, miss = align8(body)
            if verbose: print(self.name, "misaligned left:", miss)
        hi = 0
        for l in body:
            x = Ins(l)
            for r in (x.dst | x.src):
                if r[0] == "v": hi = max(hi, r[1])
        assert hi < self.vgpr, (self.name, hi, self.vgpr)
        head = lambda n: f".globl {n}\n.p2align 8\n.type {n},@function\n{n}:\n"
        if not self.entries: return head(self.name) + "\n".join(body) + "\n"
        out = ""
        sets = lambda ps: "".join(f"    s_mov_b32 s{r}, 0x{v & 0xffffffff:x}\n" for r, v in ps)
        n, ps = self.entries[0]
        out += head(n) + sets(ps) + f".p2align 3\n{self.lab('body')}:\n" + "\n".join(body) + "\n"
        for n, ps in self.entries[1:]:
            out += head(n) + sets(ps) + f"    s_branch {self.lab('body')}\n"
        return out
    def entry(self, name, **ps):
        self.entries.append((name, [(self.params[a], b) for a, b in ps.items()]))
        assert set(ps) == set(self.params)
        return (self, name)
    def descs(self):
        return "".join(".p2align 6\n" + self.desc(n) for n in ([e[0] for e in self.entries] or [self.name]))
    def desc(self, name):
        acc = (self.vgpr + 3) // 4 * 4
        return f""".amdhsa_kernel {name}
  .amdhsa_next_free_vgpr {acc + self.agpr}
  .amdhsa_next_free_sgpr {self.sgpr}
  .amdhsa_accum_offset {acc}
  .amdhsa_group_segment_fixed_size 0
  .amdhsa_kernarg_size 72
  .amdhsa_user_sgpr_count 2
  .amdhsa_user_sgpr_kernarg_segment_ptr 1
  .amdhsa_system_sgpr_workgroup_id_x 1
.end_amdhsa_kernel
"""
```

```python
from mcommon import *
NB = int(os.environ.get('NB', 2))
QL, EX = 49152, 0
def att_init(k, t):
    k(f"v_and_b32 v{t}, 31, v{LN}\nv_cmp_eq_u32 vcc, 20, v{t}\nv_mov_b32 v{t}, 0x3f803f80\nv_cndmask_b32 v{t}, 0, v{t}, vcc")
    for b in range(NB):
        for r in range(16): k(f"v_accvgpr_write_b32 a{26*b+10+r}, v{t}")

FP = int(os.environ.get('FP', 1))
def m_att(k, D=3, POS=(0, 5, 15, 24, 30, 36, 42)):
    L = lambda n: k.lab("a" + n)
    S, P, O, Q = (0, 32), (64, 80), (96, 112, 128, 144), 160
    L8, LV, AOT, AW, AR, t = 184, 185, 186, 187, 190, 194
    SM, SK = 204, 220
    k(f"{L('top')}:")
    k(f"""
    s_and_b32 s34, s3, 1
    s_lshr_b32 s35, s3, 1
    s_lshl_b32 s36, s6, 1
    s_add_u32 s36, s36, s34
    s_mul_i32 s17, s36, 163840
    s_mul_i32 s18, s35, 81920
    s_add_u32 s17, s17, s18
    s_add_u32 s17, s17, s62
    s_add_u32 s17, s17, {hx(QSZ)}
    s_mov_b32 s20, 0
    s_mov_b32 s44, 0xfffff
    s_mov_b32 s45, 0xfffff
    v_lshlrev_b32 v{L8}, 3, v{LN}
    v_and_b32 v{t}, 31, v{LN}
    v_lshrrev_b32 v{t+2}, 5, v{LN}
    v_mad_u32_u24 v{LV}, v{t+2}, 20, v{t}
    v_lshlrev_b32 v{LV}, 4, v{LV}
    v_add_u32 v{LV}, 2560, v{LV}
    """)
    srd(k, 8, 4, "s17", 81920)
    if FP == 0: fire(k, 6, t+3)
    k(f"s_mul_i32 s38, s34, 5120\ns_add_u32 s38, s38, {QL}\nv_lshlrev_b32 v{t+1}, 3, v{t}")
    for i in range(4):
        k(f"""
        s_add_u32 s39, s3, {i+1}
        s_and_b32 s39, s39, 3
        s_mul_i32 s40, s39, 1280
        s_add_u32 s40, s40, s38
        v_add_u32 v{SM+2*i}, s40, v{L16}
        v_add_u32 v{SM+2*i+1}, s40, v{t+1}
        """)
        if i < 3:
            k(f"""
            s_lshl_b32 s39, s39, 2
            s_add_u32 s39, s39, s3
            s_mul_i32 s39, s39, 3072
            v_add_u32 v{AW+i}, s39, v{L16}
            s_xor_b32 s39, s3, {(2, 1, 3)[i]}
            s_lshl_b32 s40, s3, 2
            s_add_u32 s39, s39, s40
            s_mul_i32 s39, s39, 3072
            v_add_u32 v{AR+i}, s39, v{L16}
            """)
    if FP == 1: fire(k, 6, t+3)
    k(f"""
    s_mul_i32 s28, s16, 40960
    s_mul_i32 s29, s{NL}, {OSZ}
    s_add_u32 s28, s28, s29
    s_add_u32 s28, s28, {hx(OS[0])}
    """)
    srd(k, 24, 4, "s28", 40960)
    k(f"""
    s_lshl_b32 s29, s36, 10
    s_xor_b32 s30, s29, 1024
    s_lshr_b32 s31, s6, 1
    s_add_u32 s31, s31, 32
    s_lshl_b32 s31, s31, 10
    s_and_b32 s32, s6, 1
    s_lshl_b32 s32, s32, 9
    s_add_u32 s31, s31, s32
    v_lshl_add_u32 v{AOT}, v{t+2}, 30, v{L16}
    """)
    for r in range(P[1], O[3]+16, 2): k(f"v_mov_b64 v[{r}:{r+1}], 0")
    NC = [j for j in range(16) if 2*j+1+D > 31]
    for j in NC: k(f"v_mov_b64 v[{S[1]+2*j}:{S[1]+2*j+1}], 0")
    for i in range(4): k(f"ds_read_b128 v[{Q+6*i}:{Q+6*i+3}], v{SM+2*i}\nds_read_b64 v[{Q+6*i+4}:{Q+6*i+5}], v{SM+2*i+1} offset:1024")
    wait(k, t+3, t+4)
    k.stamp(1)
    def kload(b):
        return [f"buffer_load_dwordx4 a[{26*b}:{26*b+3}], v{L16}, s[8:11], s20 offen sc1",
                f"buffer_load_dwordx4 a[{26*b+4}:{26*b+7}], v{L16}, s[8:11], s20 offen offset:1024 sc1",
                f"buffer_load_dwordx2 a[{26*b+8}:{26*b+9}], v{L8}, s[8:11], s20 offen offset:2048 sc1"]
    def vload(b):
        return (["s_mov_b64 exec, s[44:45]"]
                + [f"buffer_load_dwordx4 a[{26*b+10+4*m}:{26*b+13+4*m}], v{LV}, s[8:11], s20 offen offset:{640*m} sc1" for m in range(4)]
                + ["s_mov_b64 exec, -1"])
    for b in range(NB):
        for x in kload(b): k(x)
        if b < NB-1:
            for x in vload(b): k(x)
            k("s_add_u32 s20, s20, 5120")
    def qk(s, kk, q, C=None, f="a"):
        c = 0 if C is None else f"v[{C}:{C+15}]"
        return [f"v_mfma_f32_32x32x16_bf16 v[{s}:{s+15}], {f}[{kk}:{kk+3}], v[{q}:{q+3}], {c}",
                f"v_mfma_f32_32x32x16_bf16 v[{s+16}:{s+31}], {f}[{kk+4}:{kk+7}], v[{q}:{q+3}], {c}",
                f"v_mfma_f32_32x32x4_2b_bf16 v[{s}:{s+31}], {f}[{kk+8}:{kk+9}], v[{q+4}:{q+5}], v[{s}:{s+31}]"]
    def pv(o, vv, p, f="a"):
        return [f"v_mfma_f32_32x32x16_bf16 v[{o}:{o+15}], {f}[{vv+4*m}:{vv+4*m+3}], v[{p+4*m}:{p+4*m+3}], v[{o}:{o+15}]" for m in range(4)]
    POS = list(POS)
    cv = lambda s, p, j: f"v_cvt_pk_bf16_f32 v{p+j}, v{s+2*j}, v{s+2*j+1}"
    def phase(n, after={}, tail=False):
        s, p, s2, p2 = S[n % 2], P[n % 2], S[1 - n % 2], P[1 - n % 2]
        mfs = qk(s2, 26*((n+1)//4 % NB), Q + 6*((n+1) % 4)) + pv(O[(n-1) % 4], 26*((n-1)//4 % NB) + 10, p2)
        seq = []
        for i in range(32):
            seq.append(f"v_exp_f32 v{s+i}, v{s+i}")
            j2 = i - 1 - D
            if j2 % 2 == 0: seq.append(cv(s, p, j2//2) if j2 >= 0 else cv(s2, p2, 16 + j2//2))
        assert all(f"v{s2+31}" not in x for x in seq[POS[1]:])
        for i, x in enumerate(seq):
            if i in POS:
                j = POS.index(i)
                if not (tail and j < 3): k(mfs[j])
                for y in after.get(j, []): k(y)
            k(x)
    k(f"s_waitcnt vmcnt({7*(NB-1)}) lgkmcnt(0)")
    k.stamp(2)
    for x in qk(S[0], 0, Q): k(x)
    k("s_nop 15\ns_nop 3")
    k(f".p2align 6\n{L('loop')}:")
    wr = lambda i: [f"ds_write_b128 v{AW+i}, v[{O[i]+4*c}:{O[i]+4*c+3}] offset:{EX + 1024*c}" for c in range(3)]
    for n in range(4*NB):
        b = n // 4; aft = {}
        if n % 4 == 1:
            aft[0] = vload((b-1) % NB); aft[1] = [f"s_waitcnt vmcnt({7*(NB-1)})"]; aft[3] = ["s_add_u32 s20, s20, 5120"]
            if n == 4*NB - 3: aft[4] = [f"s_cmp_eq_u32 s20, {(16+NB-1)*5120}"]
        if n % 4 == 2: aft[6] = [f"s_waitcnt vmcnt({7*(NB-1)-3})"]
        if n % 4 == 3:
            kl = kload(b); aft[0] = [kl[0]]; aft[1] = [kl[1]]; aft[3] = [kl[2]]
        phase(n, aft)
        if n == 4*NB - 3: k(f"s_cbranch_scc1 {L('tail')}")
    k(f"s_branch {L('loop')}\n.p2align 3\n{L('tail')}:")
    w = wr(0); phase(4*NB - 2, {2: [w[0]], 3: [w[1]], 4: [w[2]]})
    w = wr(1); phase(4*NB - 1, {2: [w[0]], 3: [w[1]], 4: [w[2]]}, tail=True)
    w = wr(2)
    for m, x in enumerate(pv(O[3], 26*(NB-1) + 10, P[1])):
        k(x)
        if m == 0:
            for j in NC: k(cv(S[1], P[1], j))
        else: k(w[m-1])
    k("s_waitcnt lgkmcnt(0)\ns_barrier")
    k.stamp(3)
    for i in range(3):
        for c in range(3): k(f"ds_read_b128 v[{O[i]+4*c}:{O[i]+4*c+3}], v{AR+i} offset:{EX + 1024*c}")
    k("s_mov_b32 s46, 0\ns_cmp_eq_u32 s34, 1\ns_cselect_b64 s[40:41], -1, 0")
    for a, b, w in ((O[3], O[0], 6), (O[1], O[2], 0)):
        k(f"s_waitcnt lgkmcnt({w})")
        for j in (4, 0, 1, 2, 3, 5): k(f"v_pk_add_f32 v[{a+2*j}:{a+2*j+1}], v[{a+2*j}:{a+2*j+1}], v[{b+2*j}:{b+2*j+1}]")
    k(f"{L('fin')}:")
    for h, (o, so) in enumerate(((O[3], 29), (O[1], 30))):
        u = t + 4*h; r = S[0] + 16*h; p = P[0] + 6*h
        k(f"""
        v_mov_b32 v{u}, v{o+8}
        v_mov_b32 v{u+1}, v{o+8}
        v_permlane32_swap_b32 v{u}, v{u+1}
        v_rcp_f32 v{u+2}, v{u+1}
        """)
        for j in range(6): k(f"v_pk_mul_f32 v[{r+2*j}:{r+2*j+1}], v[{o+2*j}:{o+2*j+1}], v[{u+2}:{u+3}] op_sel_hi:[1,0]")
        for j in range(6): k(f"v_cvt_pk_bf16_f32 v{p+j}, v{r+2*j}, v{r+2*j+1}")
        k(f"buffer_store_dwordx4 v[{p}:{p+3}], v{L16}, s[24:27], s{so} offen sc1")
    p = P[0]
    for j in range(2):
        k(f"v_cndmask_b32 v{p+12+j}, v{p+4+j}, v{p+10+j}, s[40:41]\nv_cndmask_b32 v{p+14+j}, v{p+10+j}, v{p+4+j}, s[40:41]")
    k(f"buffer_store_dwordx4 v[{p+12}:{p+15}], v{AOT}, s[24:27], s31 offen sc1")
    a, b = O[3], O[1]
    for j in range(6): k(f"v_pk_add_f32 v[{a+2*j}:{a+2*j+1}], v[{a+2*j}:{a+2*j+1}], v[{b+2*j}:{b+2*j+1}]")
    for j in range(3): k(f"v_pk_add_f32 v[{a+2*j}:{a+2*j+1}], v[{a+2*j}:{a+2*j+1}], v[{a+6+2*j}:{a+7+2*j}]")
    k(f"""
    v_min_f32 v{t}, v{t+1}, v{t+5}
    v_pk_add_f32 v[{a}:{a+1}], v[{a}:{a+1}], v[{a+2}:{a+3}]
    v_cmp_gt_f32 vcc, {hx(f2u(2.0**-90))}, v{t}
    v_pk_add_f32 v[{a}:{a+1}], v[{a}:{a+1}], v[{a+4}:{a+5}]
    v_mov_b32 v{t}, 0x207
    v_add_f32 v{a}, v{a}, v{a+1}
    v_cmp_class_f32 s[42:43], v{a}, v{t}
    s_cmp_lg_u32 s46, 0
    s_cbranch_scc1 {L('ok')}
    s_or_b64 vcc, vcc, s[42:43]
    s_cbranch_scc1 {L('slow')}
    {L('ok')}:
    """)
    k.stamp(4)
    publish(k, 7, 6)
    k(f"s_branch {k.lab('otop')}")
    VV = O[0]
    def gk():
        k(f"""
        buffer_load_dwordx4 v[{SK}:{SK+3}], v{L16}, s[12:15], s20 offen sc1
        buffer_load_dwordx4 v[{SK+4}:{SK+7}], v{L16}, s[12:15], s20 offen offset:1024 sc1
        buffer_load_dwordx2 v[{SK+8}:{SK+9}], v{L8}, s[12:15], s20 offen offset:2048 sc1
        """)
    k(f"{L('slow')}:\ns_waitcnt vmcnt(0)")
    for r in range(16): k(f"v_accvgpr_read_b32 v{VV+r}, a{10+r}")
    k(f"""
    {L('slow0')}:
    s_xor_b32 s36, s36, 1
    s_mul_i32 s17, s36, 163840
    s_add_u32 s17, s17, s62
    s_add_u32 s17, s17, {hx(QSZ)}
    """)
    srd(k, 12, 4, "s17", 163840)
    k(f"""
    s_and_b32 s39, s36, 1
    s_lshl_b32 s39, s39, 2
    s_add_u32 s39, s39, s3
    s_mul_i32 s39, s39, 1280
    s_add_u32 s39, s39, {QL}
    v_and_b32 v{t+1}, 255, v{L8}
    v_add_u32 v{t}, s39, v{L16}
    v_add_u32 v{t+1}, s39, v{t+1}
    ds_read_b128 v[{Q}:{Q+3}], v{t}
    ds_read_b64 v[{Q+4}:{Q+5}], v{t+1} offset:1024
    s_mov_b32 s20, 0
    s_waitcnt lgkmcnt(0)
    v_mov_b32 v{t}, 0xff800000
    {L('slow1')}:
    """)
    gk()
    k("s_waitcnt vmcnt(0)")
    for x in qk(S[0], SK, Q, None, "v"): k(x)
    for j in range(16): k(f"v_max3_f32 v{t}, v{S[0]+2*j}, v{S[0]+2*j+1}, v{t}")
    k(f"""
    s_add_u32 s20, s20, 5120
    s_cmp_lg_u32 s20, 163840
    s_cbranch_scc1 {L('slow1')}
    s_mov_b32 s20, 0
    v_mov_b32 v{t+1}, v{t}
    v_permlane32_swap_b32 v{t+1}, v{t}
    v_max_f32 v{t}, v{t}, v{t+1}
    """)
    for r in range(16): k(f"v_sub_f32 v{SM+r}, 0, v{t}\nv_mov_b32 v{O[1]+r}, v{O[3]+r}\nv_mov_b32 v{O[3]+r}, 0")
    k(f"{L('slow2')}:")
    gk()
    k("s_mov_b64 exec, s[44:45]")
    for m in range(4): k(f"buffer_load_dwordx4 v[{VV+4*m}:{VV+4*m+3}], v{LV}, s[12:15], s20 offen offset:{640*m} sc1")
    k("s_mov_b64 exec, -1\ns_waitcnt vmcnt(0)")
    for x in qk(S[0], SK, Q, SM, "v"): k(x)
    for i in range(32): k(f"v_exp_f32 v{S[0]+i}, v{S[0]+i}")
    for j in range(16): k(cv(S[0], P[0], j))
    for x in pv(O[3], VV, P[0], "v"): k(x)
    k(f"""
    s_add_u32 s20, s20, 5120
    s_cmp_lg_u32 s20, 163840
    s_nop 15
    s_cbranch_scc1 {L('slow2')}
    s_add_u32 s46, s46, 1
    s_cmp_eq_u32 s46, 1
    s_cbranch_scc1 {L('slow0')}
    s_branch {L('fin')}
    """)
```

```python
from common import *
OOB = 0x40000000
LN, L16, RES = 252, 253, 240
EP = 100
PH, NL, DO = 96, 97, 98
WOL = 61440
import os
FS = int(os.environ.get('FS', 5))
WARM = int(os.environ.get('WARM', 1))
EPV, FA = 254, 60
def publish(k, grp, prod):
    k(f"""
    s_lshl_b32 s{FA}, s{PH}, 4
    s_add_u32 s{FA}, s{FA}, s{grp}
    s_lshl_b32 s{FA}, s{FA}, 4
    s_add_u32 s{FA}, s{FA}, s{prod}
    s_lshl_b32 s{FA}, s{FA}, {FS}
    s_add_u32 s{FA}, s{FA}, {hx(FLG - (256 << FS))}
    """)
def fire(k, grp, t, later=0):
    n = f"pub{len(k.L)}"
    k(f"""
    s_lshl_b32 s22, s{PH}, 4
    s_add_u32 s22, s22, s{grp}
    s_lshl_b32 s22, s22, 2
    s_add_u32 s22, s22, s3
    s_lshl_b32 s22, s22, {FS+2}
    s_add_u32 s22, s22, {hx(FLG - (256 << FS))}
    v_lshlrev_b32 v{t}, {FS}, v{LN}
    s_cmp_lg_u32 s3, 0
    s_waitcnt vmcnt({later})
    s_barrier
    s_cbranch_scc1 {k.lab(n)}
    s_mov_b64 exec, 1
    buffer_store_dwordx2 v[{EPV}:{EPV+1}], off, s[56:59], s{FA} sc1
    s_mov_b64 exec, -1
    {k.lab(n)}:
    """)
    k.prof_end(3, 7, PH)
    k(f"s_add_u32 s{PH}, s{PH}, 1")
    k.stamp(0)
def wait(k, t, u, d=22, mask=15):
    n = f"poll{len(k.L)}"
    assert u % 2 == 0
    k(f"""
    s_mov_b32 s23, 0x40000
    s_mov_b64 exec, {mask}
    {k.lab(n)}:
    buffer_load_dwordx2 v[{u}:{u+1}], v{t}, s[56:59], s{d} offen sc1
    s_sub_u32 s23, s23, 1
    s_cbranch_scc1 {k.lab(n+'x')}
    s_waitcnt vmcnt(0)
    v_cmp_ne_u64 vcc, s[{EP}:{EP+1}], v[{u}:{u+1}]
    s_and_b64 exec, vcc, vcc
    s_cbranch_scc1 {k.lab(n)}
    {k.lab(n+'x')}:
    s_mov_b64 exec, -1
    s_barrier
    """)
def qkv_map(k, cg, rb, t):
    k(f"""
    s_and_b32 s{cg}, s2, 3
    s_lshl_b32 s{cg}, s{cg}, 2
    s_bfe_u32 s{rb}, s2, 0x20003
    s_add_u32 s{cg}, s{cg}, s{rb}
    s_bfe_u32 s{rb}, s2, 0x10002
    s_lshl_b32 s{rb}, s{rb}, 3
    s_lshr_b32 s{t}, s2, 5
    s_add_u32 s{rb}, s{rb}, s{t}
    """)
def op_map(k, cg, rb, t):
    k(f"""
    s_and_b32 s{cg}, s2, 1
    s_lshl_b32 s{cg}, s{cg}, 2
    s_bfe_u32 s{rb}, s2, 0x20003
    s_add_u32 s{cg}, s{cg}, s{rb}
    s_bfe_u32 s{rb}, s2, 0x20001
    s_lshl_b32 s{rb}, s{rb}, 3
    s_lshr_b32 s{t}, s2, 5
    s_add_u32 s{rb}, s{rb}, s{t}
    """)
def wpre_setup(k, odd):
    k(f"s_cselect_b32 s17, {hx(WB)}, {hx(WA)}" if odd is None else f"s_mov_b32 s17, {hx(WB if odd else WA)}")
    qkv_map(k, 48, 49, 50)
    k("s_mul_i32 s48, s48, 163840\ns_add_u32 s17, s17, s48\ns_lshl_b32 s49, s3, 12")
    srd(k, 8, 4, "s17", 163840)
def wpre_loads(w=49, t=50):
    r = []
    for G in range(3):
        for i in range(4):
            pre = [f"s_add_u32 s{t}, s{w}, {G*16384}", f"s_mov_b32 m0, s{t}"] if i == 0 else []
            r.append((f"buffer_load_dwordx4 v{L16}, s[8:11], s{t} offen offset:{i*1024} sc1 lds", pre))
    return r
```

```python
from mcommon import *
OOB = 0x40000000

OI = int(os.environ.get('OI', 12))
WE = int(os.environ.get('WE', 8))
def m_op(k):
    L = lambda n: k.lab("o" + n)
    X, Y, HA, HB, OF, WF, RF = 0, 16, 32, 48, 64, 144, RES
    AX, AY, AH, AS, AR, AO, AOH, ASQ, t = range(178, 187)
    k(f"{L('top')}:")
    k(f"s_bitcmp0_b32 s{NL}, 0")
    wpre_setup(k, None)
    wl = wpre_loads()
    op_map(k, 6, 7, 16)
    k(f"""
    s_and_b32 s34, s3, 1
    s_lshr_b32 s35, s3, 1
    s_lshl_b32 s16, s7, 1
    s_add_u32 s16, s16, s34
    s_mul_i32 s36, s16, 40960
    s_mul_i32 s18, s{NL}, {OSZ}
    s_add_u32 s18, s18, s36
    s_add_u32 s18, s18, {hx(OS[0])}
    s_mul_i32 s21, s35, 20480
    s_lshr_b32 s46, s7, 1
    s_and_b32 s47, s7, 1
    s_lshl_b32 s47, s47, 3
    s_add_u32 s47, s47, s6
    """)
    srd(k, 12, 4, "s18", 40960)
    fire(k, 46, t+1)
    k(f"s_cmp_eq_u32 s{NL}, 3\ns_cbranch_scc1 {L('nopre')}")
    for x, pre in wl[:WE]:
        for s in pre: k(s)
        k(x)
    k(f"{L('nopre')}:")
    k(f"""
    s_mul_i32 s23, s35, 51200
    s_add_u32 s23, s23, {WOL}
    v_add_u32 v{AH}, s23, v{L16}
    s_lshl_b32 s23, s35, 10
    v_add_u32 v{AY}, s23, v{AH}
    s_xor_b32 s23, s23, 1024
    v_add_u32 v{AX}, s23, v{AH}
    """)
    loads = [(f"buffer_load_dwordx4 v[{OF+4*i}:{OF+4*i+3}], v{L16}, s[12:15], s21 offen offset:{i%4*1024} sc1",
              ["s_add_u32 s21, s21, 4096"] if i and i % 4 == 0 else []) for i in range(20)] + wl[WE:]
    n = [0]
    def issue():
        if loads:
            x, pre = loads.pop(0)
            for s in pre: k(s)
            k(x); n[0] += 1
    k(f"""
    s_mul_i32 s37, s6, 5
    s_lshl_b32 s38, s35, 1
    s_add_u32 s38, s38, s37
    s_add_u32 s37, s37, 4
    s_mul_i32 s23, s3, 6144
    s_add_u32 s23, s23, {WOL}
    v_add_u32 v{AS}, s23, v{L16}
    s_xor_b32 s23, s3, 2
    s_mul_i32 s23, s23, 6144
    s_add_u32 s23, s23, {WOL}
    v_add_u32 v{AR}, s23, v{L16}
    s_mov_b32 s42, 0x3f80
    s_mov_b32 s43, 0x3f800000
    s_lshl_b32 s41, s35, 30
    s_cmp_eq_u32 s35, 0
    s_cselect_b32 s45, s43, 0
    v_and_b32 v{t}, 31, v{LN}
    s_mov_b32 s31, 0x20000
    s_cmp_eq_u32 s{NL}, 3
    s_cbranch_scc1 {L('fin')}
    s_mul_i32 s33, s16, {XT}
    s_mul_i32 s20, s{NL}, {XSZ}
    s_add_u32 s20, s20, s33
    s_add_u32 s20, s20, {hx(XS[1])}
    s_add_u32 s28, s4, s20
    s_addc_u32 s29, s5, 0
    s_mov_b32 s30, {XT}
    v_mov_b32 v{AO}, v{L16}
    v_lshlrev_b32 v{ASQ}, 2, v{t}
    s_lshl_b32 s39, s38, 10
    s_add_u32 s44, s39, 1024
    s_lshl_b32 s40, s37, 10
    s_lshl_b32 s32, s6, 1
    s_add_u32 s32, s32, s35
    s_lshl_b32 s32, s32, 7
    s_add_u32 s32, s32, 40960
    s_branch {L('go')}
    {L('fin')}:
    s_mov_b64 s[28:29], s[{DO}:{DO+1}]
    s_mov_b32 s30, {2048*1280}
    v_mul_u32_u24 v{AO}, 1280, v{t}
    v_lshrrev_b32 v{t}, 5, v{LN}
    v_lshl_add_u32 v{AO}, v{t}, 4, v{AO}
    v_mov_b32 v{ASQ}, {hx(OOB)}
    s_lshl_b32 s39, s38, 5
    s_add_u32 s39, s39, s36
    s_add_u32 s44, s39, 32
    s_lshl_b32 s40, s37, 5
    s_add_u32 s40, s40, s36
    s_mov_b32 s32, 0
    {L('go')}:
    v_add_u32 v{AOH}, s41, v{AO}
    """)
    def rd(p, j):
        a, o = [(AH, 4096), (AX, 0), (AY, 0), (AX, 2048), (AY, 2048)][j]
        return f"ds_read_b128 v[{WF+4*j}:{WF+4*j+3}], v{a} offset:{p*5120 + o}"
    def mf(d, j, ks, first):
        a = f"v[{d}:{d+15}]"
        return f"v_mfma_f32_32x32x16_bf16 {a}, v[{WF+4*j}:{WF+4*j+3}], v[{OF+4*ks}:{OF+4*ks+3}], {0 if first else a}"
    for j in range(5): k(rd(0, j))
    wait(k, t+1, t+2)
    k.stamp(1)
    for i in range(OI): issue()
    for p in range(10):
        last = p == 9
        k(f"s_waitcnt vmcnt({n[0] - 2*p - 2}) lgkmcnt(4)")
        if p == 0: k.stamp(2)
        if p == 6: k("s_barrier")
        k(mf(HA, 0, 2*p, p == 0))
        k(mf(HB, 0, 2*p+1, p == 0))
        if not last: k(rd(p+1, 0))
        for j in range(1, 5):
            k(f"s_waitcnt lgkmcnt({4 - j if last else 4})")
            k(mf(X if j % 2 else Y, j, 2*p + (j-1)//2, p == 0 and j < 3))
            if not last: k(rd(p+1, j))
            if j in (1, 3) or (j == 2 and len(loads) > 19 - 2*p and n[0] >= 20): issue()
            if last and j == 3:
                for i in range(4): k(f"v_pk_add_f32 v[{HA+2*i}:{HA+2*i+1}], v[{HA+2*i}:{HA+2*i+1}], v[{HB+8+2*i}:{HB+9+2*i}]")
    assert not loads
    k.stamp(3)
    for i in range(2): k(f"ds_write_b128 v{AS}, v[{HA+4*i}:{HA+4*i+3}] offset:{4096 + i*1024}")
    for i in range(8): k(f"v_dot2_f32_bf16 v{HB+i}, v{RF+8+i//2}, s{42+i%2}, v{HA+i}")
    for i in range(4): k(f"ds_write_b128 v{AS}, v[{X+4*i}:{X+4*i+3}] offset:{i*1024}")
    for i in range(16): k(f"v_dot2_f32_bf16 v{Y+i}, v{RF+i//2}, s{42+i%2}, v{Y+i}")
    k("s_waitcnt lgkmcnt(0)\ns_barrier")
    for i in range(6): k(f"ds_read_b128 v[{OF+4*i}:{OF+4*i+3}], v{AR} offset:{i*1024}")
    k(f"s_cmp_eq_u32 s{NL}, 3\ns_cbranch_scc1 {L('last')}")
    def outs(m):
      for f in range(3):
        own = Y + 8*f if f < 2 else HB
        k(f"s_waitcnt lgkmcnt({4-2*f})")
        for i in range(4): k(f"v_pk_add_f32 v[{own+2*i}:{own+2*i+1}], v[{own+2*i}:{own+2*i+1}], v[{OF+8*f+2*i}:{OF+8*f+2*i+1}]")
        for i in range(4): k(f"v_cvt_pk_bf16_f32 v{RF+4*f+i}, v{own+2*i}, v{own+2*i+1}")
        k(f"buffer_store_dwordx4 v[{RF+4*f}:{RF+4*f+3}], v{AOH if f == 2 else AO}, s[28:31], s{(39, 44, 40)[f]} offen{m}")
    outs(' sc1')
    for i in range(4):
        for f in range(3): k(f"v_dot2_f32_bf16 v{t+f}, v{RF+4*f+i}, v{RF+4*f+i}, {f'v{t+f}' if i else 0}")
    k(f"""
    v_add_f32 v{t}, v{t}, v{t+1}
    v_fma_f32 v{t}, v{t+2}, s45, v{t}
    v_mov_b32 v{t+1}, v{t}
    v_permlane32_swap_b32 v{t+1}, v{t}
    v_add_f32 v{t}, v{t}, v{t+1}
    buffer_store_dword v{t}, v{ASQ}, s[28:31], s32 offen sc1
    """)
    k.stamp(4)
    publish(k, 46, 47)
    k(f"s_add_u32 s{NL}, s{NL}, 1\ns_branch {k.lab('qtop')}\n{L('last')}:")
    outs(os.environ.get('OM', ''))
    k(f"""
    s_or_b32 s6, s2, s3
    s_cbranch_scc1 {L('done')}
    v_mov_b32 v0, s{EP}
    v_mov_b32 v1, s{EP+1}
    v_mov_b32 v2, {hx(EPO)}
    s_mov_b64 exec, 1
    buffer_store_dwordx2 v[0:1], v2, s[56:59], 0 offen
    {L('done')}:
    """)
    k.stamp(4)
    if K.PROF or int(os.environ.get('EW', 1)): k("s_waitcnt vmcnt(0)")
    k.prof_end(3, 7, PH)
```

```python
import os
from mcommon import *
QSCALE = 20 ** -0.5 * 1.4426950408889634
def m_prep(k, ATOM=False):
    L = lambda n: k.lab("p" + n)
    RED = 4*7168
    W, WO = 16, 40
    k.stamp(0)
    k(f"""
    s_load_dwordx16 s[36:51], s[0:1], 0
    s_load_dwordx2 s[4:5], s[0:1], 64
    v_lshrrev_b32 v1, 6, v0
    v_and_b32 v{LN}, 63, v0
    v_readfirstlane_b32 s3, v1
    v_lshlrev_b32 v{L16}, 4, v{LN}
    s_mov_b32 s{PH}, 1
    s_mov_b32 s{NL}, 0
    s_lshr_b32 s18, s2, 5
    s_lshl_b32 s18, s18, 3
    s_and_b32 s19, s2, 7
    s_add_u32 s18, s18, s19
    s_lshl_b32 s18, s18, 2
    s_bfe_u32 s19, s2, 0x20003
    s_add_u32 s18, s18, s19
    s_mul_i32 s16, s3, 7168
    v_lshrrev_b32 v7, 1, v{LN}
    v_mul_u32_u24 v7, 3840, v7
    v_and_b32 v5, 1, v{LN}
    v_lshl_add_u32 v7, v5, 4, v7
    s_cmp_ge_u32 s18, 120
    s_cselect_b32 s31, 120, 0
    s_cselect_b32 s30, {hx(WB)}, 0
    s_cselect_b32 s33, {hx(f2u(QSCALE))}, 1.0
    s_sub_u32 s31, s18, s31
    s_lshl_b32 s34, s31, 5
    s_mul_i32 s17, s3, {160*3840}
    s_add_u32 s34, s34, s17
    s_cmp_ge_u32 s18, 240
    s_cselect_b32 s26, 0, {640*3840}
    s_mov_b32 s27, 0x20000
    s_mov_b32 m0, s16
    v_lshrrev_b32 v2, 5, v{LN}
    v_bfe_u32 v3, v{LN}, 4, 1
    v_bfe_u32 v4, v{LN}, 2, 2
    v_and_b32 v5, 3, v{LN}
    """)
    sdiv(k, 61, 2, 10, 256)
    k(f"""
    s_mul_i32 s63, s61, 10
    s_sub_u32 s63, s2, s63
    s_lshl_b32 s63, s63, 1
    s_lshr_b32 s62, s3, 1
    s_add_u32 s63, s63, s62
    s_cmp_ge_u32 s61, 10
    s_cselect_b32 s62, 10, 0
    s_sub_u32 s62, s61, s62
    s_lshl_b32 s62, s62, 1
    s_and_b32 s60, s3, 1
    s_add_u32 s62, s62, s60
    v_lshlrev_b32 v8, 3, v3
    v_lshl_add_u32 v8, v2, 2, v8
    v_mul_u32_u24 v9, 40, v2
    v_mad_u32_u24 v9, v3, 20, v9
    v_add_u32 v9, 16, v9
    s_mul_i32 s20, s63, {40*1280}
    s_mul_i32 s21, s63, {160*1280}
    s_sub_u32 s21, s21, {16*160*1280}
    s_cmp_lt_u32 s63, 16
    s_cselect_b32 s20, s20, s21
    s_cselect_b64 vcc, -1, 0
    s_cselect_b32 s21, 20, 80
    v_cndmask_b32 v8, v9, v8, vcc
    v_add_u32 v8, v8, v4
    v_mul_u32_u24 v8, 1280, v8
    v_lshl_add_u32 v8, v5, 4, v8
    s_lshl_b32 s22, s62, 6
    s_add_u32 s20, s20, s22
    s_mul_i32 s21, s21, 1280
    s_add_u32 s21, s21, s20
    s_cmp_ge_u32 s18, 120
    s_waitcnt lgkmcnt(0)
    s_cselect_b32 s24, s44, s38
    s_cselect_b32 s25, s45, s39
    """)
    k.stamp(1)
    k(f"s_add_u32 s52, s4, {hx(EPO)}\ns_addc_u32 s53, s5, 0\ns_load_dwordx2 s[{EP}:{EP+1}], s[52:53], 0")
    for i in range(5):
        if i == 4: k(f"s_add_u32 m0, s16, 4096")
        k(f"buffer_load_dwordx4 v7, s[24:27], s34 offen offset:{(i%4)*1024} lds")
        if i < 4: k(f"s_add_u32 s34, s34, {32*3840 - (1024 if i < 3 else -3072)}")
    k(f"""
    s_cmp_ge_u32 s61, 10
    s_cselect_b32 s12, s46, s40
    s_cselect_b32 s13, s47, s41
    s_cselect_b32 s28, {hx(WOSZ)}, 0
    s_cmp_ge_u32 s2, 200
    s_cselect_b32 s14, 0, {640*1280}
    s_mov_b32 s15, 0x20000
    s_add_u32 m0, s16, 5120
    s_sub_u32 s21, s21, 1024
    buffer_load_dwordx4 v8, s[12:15], s20 offen lds
    buffer_load_dwordx4 v8, s[12:15], s21 offen offset:1024 lds
    """)
    op_map(k, 6, 7, 17)
    srd(k, 8, 36, 0, 2048*1280)
    k(f"""
    s_and_b32 s34, s3, 1
    s_lshr_b32 s35, s3, 1
    s_lshl_b32 s17, s7, 1
    s_add_u32 s17, s17, s34
    s_mul_i32 s19, s17, 40960
    s_mul_i32 s20, s6, 160
    s_add_u32 s19, s19, s20
    s_lshl_b32 s20, s35, 6
    s_add_u32 s20, s20, s19
    v_and_b32 v1, 31, v{LN}
    v_mul_u32_u24 v9, 1280, v1
    v_lshl_add_u32 v9, v2, 4, v9
    buffer_load_dwordx4 v[{RES}:{RES+3}], v9, s[8:11], s20 offen
    buffer_load_dwordx4 v[{RES+4}:{RES+7}], v9, s[8:11], s20 offen offset:32
    buffer_load_dwordx4 v[{RES+8}:{RES+11}], v9, s[8:11], s19 offen offset:128
    """)
    srd(k, 56, 4, 0, WSEND)
    k(f"""
    s_mov_b64 s[{DO}:{DO+1}], s[48:49]
    v_mov_b32 v56, -1
    v_mov_b32 v57, -1
    v_mov_b32 v58, -1
    v_mov_b32 v59, -1
    """)
    if WARM: k(f"""
    v_lshl_add_u32 v9, s2, 8, v0
    v_lshlrev_b32 v9, 4, v9
    v_cmp_gt_u32 vcc, {hx(10*(256 << FS))}, v9
    v_mov_b32 v10, {hx(OOB)}
    v_cndmask_b32 v9, v10, v9, vcc
    s_mov_b32 s19, {hx(FLG)}
    buffer_store_dwordx4 v[56:59], v9, s[56:59], s19 offen sc1
    """)
    k(f"""
    s_lshl_b32 s19, s62, 5
    v_add_u32 v8, s19, v1
    """)
    vdiv(k, 9, 8, 80, 640)
    k(f"""
    v_mul_u32_u24 v10, 80, v9
    v_sub_u32 v10, v8, v10
    v_mul_u32_u24 v14, {hx(102400)}, v9
    v_lshl_add_u32 v14, v2, 9, v14
    v_lshl_add_u32 v14, v5, 4, v14
    """)
    for b, s in ((3, 6), (2, 7), (4, 8), (5, 10), (6, 12)): k(f"v_bfe_u32 v13, v10, {b}, 1\nv_lshl_add_u32 v14, v13, {s}, v14")
    k(f"""
    v_mul_u32_u24 v13, {2048-256}, v13
    v_sub_u32 v13, 2048, v13
    v_add_u32 v15, v13, v14
    s_mul_i32 s29, s63, 5120
    s_add_u32 s28, s28, s29
    s_add_u32 s28, s28, {hx(WOA)}
    s_cmp_ge_u32 s2, 200
    s_cselect_b32 s29, {hx(OOB)}, 0
    v_add_u32 v14, s29, v14
    v_add_u32 v15, s29, v15
    v_lshlrev_b32 v6, 9, v2
    v_lshl_add_u32 v6, v4, 6, v6
    v_lshl_add_u32 v6, v3, 5, v6
    v_lshl_add_u32 v6, v5, 3, v6
    v_add_u32 v6, s16, v6
    s_mul_i32 s19, s17, {XT}
    s_add_u32 s19, s19, {hx(X0)}
    s_mul_i32 s20, s6, 5120
    s_add_u32 s20, s20, s19
    s_lshl_b32 s21, s35, 11
    s_add_u32 s21, s21, s20
    s_add_u32 s20, s20, 4096
    s_lshl_b32 s22, s6, 1
    s_add_u32 s22, s22, s35
    s_lshl_b32 s22, s22, 7
    s_add_u32 s22, s22, s19
    s_add_u32 s22, s22, 40960
    s_lshl_b32 s23, s35, 30
    v_add_u32 v60, s23, v{L16}
    v_lshlrev_b32 v61, 2, v1
    s_cmp_eq_u32 s35, 0
    s_cselect_b32 s23, 1.0, 0
    s_cmp_ge_u32 s18, 240
    s_cbranch_scc1 {L('pad')}
    """)
    sdiv(k, 35, 31, 40, 120)
    k(f"""
    s_cmp_eq_u32 s35, 0
    s_cselect_b32 s33, s33, 1.0
    s_mul_i32 s32, s35, 40
    s_sub_u32 s32, s31, s32
    s_lshl_b32 s32, s32, 4
    s_mul_i32 s35, s35, 5
    v_and_b32 v7, 15, v{LN}
    v_add_u32 v8, s32, v7
    """)
    vdiv(k, 9, 8, 20, 640)
    k(f"""
    v_mul_u32_u24 v10, 20, v9
    v_sub_u32 v10, v8, v10
    v_lshrrev_b32 v11, 2, v10
    v_add_u32 v11, s35, v11
    v_lshrrev_b32 v12, 1, v9
    v_mul_u32_u24 v12, {hx(163840)}, v12
    v_lshrrev_b32 v13, 2, v11
    v_lshl_add_u32 v12, v13, 10, v12
    v_and_b32 v13, 3, v11
    v_lshl_add_u32 v12, v13, 7, v12
    v_and_b32 v13, 1, v9
    v_lshl_add_u32 v12, v13, 6, v12
    v_lshl_add_u32 v12, v5, 4, v12
    v_lshl_add_u32 v12, v3, 9, v12
    v_lshl_add_u32 v12, v2, 12, v12
    s_mul_i32 s32, s3, 40960
    s_add_u32 s30, s30, s32
    v_lshrrev_b32 v8, 4, v{LN}
    v_lshlrev_b32 v8, 8, v8
    v_lshl_add_u32 v8, v7, 3, v8
    v_add_u32 v8, s16, v8
    v_lshlrev_b32 v9, 4, v7
    s_lshl_b32 s32, s3, 2
    v_add_u32 v10, s32, v9
    s_mov_b32 s32, 0x3f803f80
    s_waitcnt vmcnt({5+WARM}) lgkmcnt(0)
    """)
    k.stamp(2)
    for i in range(5):
        k(f"ds_read_b64_tr_b16 v[{W+4*i}:{W+4*i+1}], v8 offset:{i*1024}")
        k(f"ds_read_b64_tr_b16 v[{W+4*i+2}:{W+4*i+3}], v8 offset:{i*1024+128}")
    for i in range(5):
        k(f"s_waitcnt lgkmcnt({8-2*i})")
        for j in range(4): k(f"v_dot2_f32_bf16 v{36+j}, v{W+4*i+j}, s32, {f'v{36+j}' if i else 0}")
    k(f"""
    v_add_f32 v36, v36, v37
    v_add_f32 v38, v38, v39
    v_add_f32 v36, v36, v38
    v_mov_b32 v37, v36
    v_permlane32_swap_b32 v36, v37
    v_add_f32 v36, v36, v37
    v_mov_b32 v37, v36
    v_permlane16_swap_b32 v36, v37
    v_add_f32 v36, v36, v37
    ds_write_b32 v10, v36 offset:{RED}
    s_waitcnt lgkmcnt(0)
    s_barrier
    ds_read_b128 v[36:39], v9 offset:{RED}
    v_mov_b32 v48, s33
    s_waitcnt lgkmcnt(0)
    v_add_f32 v36, v36, v37
    v_add_f32 v38, v38, v39
    v_add_f32 v36, v36, v38
    v_mul_f32 v36, {hx(f2u(-1.0/640))}, v36
    v_mul_f32 v36, s33, v36
    """)
    k.stamp(3)
    for i in range(5):
        for j in range(4):
            r = W+4*i+j; u = 64 + 2*j
            k(f"v_lshlrev_b32 v{u}, 16, v{r}\nv_and_b32 v{u+1}, 0xffff0000, v{r}")
        for j in range(4): u = 64 + 2*j; k(f"v_pk_fma_f32 v[{u}:{u+1}], v[{u}:{u+1}], v[48:49], v[36:37] op_sel_hi:[1,0,0]")
        for j in range(4): u = 64 + 2*j; k(f"v_cvt_pk_bf16_f32 v{W+4*i+j}, v{u}, v{u+1}")
        k(f"buffer_store_dwordx4 v[{W+4*i}:{W+4*i+3}], v12, s[56:59], s30 offen sc1")
        if i < 4: k("s_add_u32 s30, s30, 8192")
    k(f"""
    s_branch {L('rest')}
    {L('pad')}:
    s_sub_u32 s30, s18, 240
    s_lshl_b32 s30, s30, 2
    s_add_u32 s30, s30, s3
    s_lshl_b32 s31, s30, 14
    s_add_u32 s31, s31, {hx(KVP0)}
    s_mul_i32 s30, s30, {5*16384}
    v_lshrrev_b32 v8, 4, v{LN}
    v_lshlrev_b32 v8, 12, v8
    v_bfe_u32 v9, v{LN}, 3, 1
    v_lshl_add_u32 v8, v9, 9, v8
    v_and_b32 v9, 7, v{LN}
    v_lshl_add_u32 v8, v9, 4, v8
    """)
    for j in range(4): k(f"v_mov_b32 v{W+j}, 0x3f803f80")
    for i in range(16):
        k(f"buffer_store_dwordx4 v[56:59], v{L16}, s[56:59], s31 offen offset:{(i%4)*1024} sc1")
        if i % 4 == 3: k("s_add_u32 s31, s31, 4096")
    for i in range(5):
        k(f"buffer_store_dwordx4 v[{W}:{W+3}], v8, s[56:59], s30 offen offset:{3*1024+24*16} sc1")
        if i < 4: k("s_add_u32 s30, s30, 16384")
    k(f"{L('rest')}:")
    k.stamp(4)
    k(f"s_waitcnt vmcnt({5+WARM})")
    k.stamp(5)
    for i in range(2):
        k(f"ds_read_b64_tr_b16 v[{WO+4*i}:{WO+4*i+1}], v6 offset:{5120+i*1024}")
        k(f"ds_read_b64_tr_b16 v[{WO+4*i+2}:{WO+4*i+3}], v6 offset:{5120+i*1024+256}")
    k(f"""
    buffer_store_dwordx4 v[{RES}:{RES+3}], v{L16}, s[56:59], s21 offen sc1
    buffer_store_dwordx4 v[{RES+4}:{RES+7}], v{L16}, s[56:59], s21 offen offset:1024 sc1
    buffer_store_dwordx4 v[{RES+8}:{RES+11}], v60, s[56:59], s20 offen sc1
    s_waitcnt lgkmcnt(0)
    buffer_store_dwordx4 v[{WO}:{WO+3}], v14, s[56:59], s28 offen sc1
    buffer_store_dwordx4 v[{WO+4}:{WO+7}], v15, s[56:59], s28 offen sc1
    """)
    t = 64
    for i in range(4):
        for f in range(3): k(f"v_dot2_f32_bf16 v{t+f}, v{RES+4*f+i}, v{RES+4*f+i}, {f'v{t+f}' if i else 0}")
    k(f"""
    v_add_f32 v{t}, v{t}, v{t+1}
    v_fma_f32 v{t}, v{t+2}, s23, v{t}
    v_mov_b32 v{t+1}, v{t}
    v_permlane32_swap_b32 v{t+1}, v{t}
    v_add_f32 v{t}, v{t}, v{t+1}
    buffer_store_dword v{t}, v61, s[56:59], s22 offen sc1
    """)
    return L
def m_prep_flags(k, L):
    qkv_map(k, 48, 49, 50)
    k(f"""
    s_lshl_b32 s7, s7, 3
    s_add_u32 s7, s7, s6
    s_add_u32 s18, s18, 256
    s_min_u32 s19, s2, 200
    s_add_u32 s19, s19, 512
    v_mov_b32 v2, s7
    v_writelane_b32 v2, s18, 1
    v_writelane_b32 v2, s19, 2
    v_lshlrev_b32 v2, 7, v2
    s_add_u32 s{EP}, s{EP}, 1
    s_add_u32 s{EP+1}, s{EP+1}, 1
    v_mov_b32 v{EPV}, s{EP}
    v_mov_b32 v{EPV+1}, s{EP+1}
    s_lshl_b32 s49, s49, 4
    v_and_b32 v3, 15, v{LN}
    v_add_u32 v3, s49, v3
    s_mul_i32 s6, s6, 5
    s_lshr_b32 s6, s6, 2
    s_mul_i32 s6, s6, 10
    s_add_u32 s6, s6, {512-44}
    v_add_u32 v6, s6, v{LN}
    v_cmp_le_u32 vcc, 44, v{LN}
    v_cndmask_b32 v3, v3, v6, vcc
    s_mul_i32 s6, s48, 5
    s_lshr_b32 s6, s6, 1
    """)
    for j in range(9): k(f"s_add_u32 s7, s6, {256 + 40*(j//3) + j%3}\nv_writelane_b32 v3, s7, {16+j}")
    k(f"""
    s_lshr_b32 s7, s48, 1
    s_add_u32 s7, s7, {256+240}
    v_writelane_b32 v3, s7, 25
    v_lshlrev_b32 v3, 7, v3
    """)
def m_prep_sync(k, L):
    k(f"""
    {L('sync')}:
    s_mov_b32 s22, {hx(PFL)}
    s_mov_b32 s23, 0x40000
    s_waitcnt vmcnt(0)
    s_barrier
    """)
    k.stamp(6)
    k(f"""
    s_cmp_lg_u32 s3, 0
    s_cbranch_scc1 {L('pol0')}
    s_cmp_ge_u32 s2, 200
    s_cselect_b64 exec, 3, 7
    buffer_store_dwordx2 v[{EPV}:{EPV+1}], v2, s[56:59], s22 offen sc1
    {L('pol0')}:
    s_lshl_b32 exec_lo, 0x01111111, s3
    s_and_b32 exec_lo, exec_lo, 0x03ffffff
    s_lshl_b32 exec_hi, 0x11111000, s3
    {L('poll')}:
    buffer_load_dwordx2 v[6:7], v3, s[56:59], s22 offen sc1
    s_sub_u32 s23, s23, 1
    s_cbranch_scc1 {L('got')}
    s_waitcnt vmcnt(0)
    v_cmp_ne_u64 vcc, s[{EP}:{EP+1}], v[6:7]
    s_and_b64 exec, vcc, vcc
    s_cbranch_scc1 {L('poll')}
    {L('got')}:
    s_mov_b64 exec, -1
    s_barrier
    """)
    k.prof_end(3, 7, NL)
    k.stamp(0)
    for x, pre in wpre_loads(19, 20):
        for s in pre: k(s)
        k(x)
    k(f"s_branch {k.lab('qgo')}")
```

```python
from mcommon import *
from matt2 import QL
LOG2E = 1.4426950408889634
OOB = 0x40000000
HINT = int(os.environ.get('HINT', 1))

def m_qkv(k):
    SQ, ASQ = 180, 163
    L = lambda n: k.lab("q" + n)
    ACC, WF, XR = 0, 64, 80
    LW, SS, T0 = 146, 147, 148
    TID, HH, TOK = 160, 161, 162
    E0 = 164
    k(f"{L('top')}:")
    qkv_map(k, 6, 7, 16)
    k(f"""
    s_lshl_b32 s16, s7, 2
    s_add_u32 s16, s16, s3
    s_mul_i32 s18, s16, {XT}
    s_mul_i32 s19, s{NL}, {XSZ}
    s_add_u32 s18, s18, s19
    s_add_u32 s18, s18, {hx(X0)}
    """)
    srd(k, 12, 4, "s18", XT)
    def xload(G, i):
        ks = 4*G + i
        return f"buffer_load_dwordx4 v[{XR+4*(ks%16)}:{XR+4*(ks%16)+3}], v{L16}, s[12:15], s21 offen offset:{i*1024} sc1"
    def wload(G, i):
        return f"buffer_load_dwordx4 v{LW}, s[8:11], s20 offen offset:{i*1024} sc1 lds"
    def gsetup(G):
        r = [f"s_add_u32 m0, s19, {(G%4)*16384}"]
        if G: r += [f"s_mov_b32 s20, {G*16384}", f"s_mov_b32 s21, {G*4096}"]
        return r
    srd(k, 24, 4, 0, WSEND)
    op_map(k, 52, 53, 54)
    k(f"""
    s_lshl_b32 s19, s3, 12
    v_add_u32 v{LW}, s19, v{L16}
    s_lshl_b32 s53, s3, 6
    v_add_u32 v{TID}, s53, v{LN}
    s_lshr_b32 s53, s{NL}, 1
    s_mul_i32 s62, s{NL}, {OSZ}
    s_add_u32 s62, s62, {hx(OS[0])}
    s_mul_i32 s61, s53, {QSZ+KVSZ}
    s_add_u32 s61, s61, {hx(QS[0])}
    s_mul_i32 s63, s53, {KVPSZ}
    s_add_u32 s63, s63, {hx(KVP0)}
    s_mul_i32 s52, s52, 102400
    s_bitcmp1_b32 s{NL}, 0
    s_cselect_b32 s62, s61, s62
    s_cselect_b32 s63, 0, s63
    s_cselect_b32 s53, {WOSZ}, 0
    s_add_u32 s52, s52, s53
    s_add_u32 s52, s52, {hx(WOA)}
    s_mul_i32 s53, s3, 25600
    s_add_u32 s53, s53, {6*4096}
    """)
    srd(k, 48, 4, "s52", 102400)
    k(f"""
    v_lshrrev_b32 v{HH}, 5, v{LN}
    v_and_b32 v{TOK}, 31, v{LN}
    v_lshlrev_b32 v{ASQ}, 10, v{HH}
    v_lshl_add_u32 v{ASQ}, v{TOK}, 2, v{ASQ}
    s_cmp_eq_u32 s{NL}, 0
    s_cbranch_scc1 {L('proA')}
    """)
    fire(k, 7, T0+6)
    k(f"s_cmp_lg_u32 s63, 0\ns_cbranch_scc1 {L('proA')}")
    t = T0
    if True:
        AQ, AQT, AK, AKT, AVW, AVR, AVS = E0, E0+1, E0+2, E0+3, E0+4, E0+5, E0+8
        k(f"""
        s_mul_i32 s28, s3, 1280
        v_mul_u32_u24 v{t}, 5120, v{HH}
        v_add_u32 v{t}, s28, v{t}
        v_lshl_add_u32 v{AQ}, v{TOK}, 4, v{t}
        v_lshl_add_u32 v{AQT}, v{TOK}, 3, v{t}
        v_mul_u32_u24 v{t}, {hx(163840)}, v{HH}
        v_lshl_add_u32 v{AK}, v{TOK}, 4, v{t}
        v_lshl_add_u32 v{AKT}, v{TOK}, 3, v{t}
        s_mul_i32 s29, s6, {2*163840}
        s_lshr_b32 s30, s16, 1
        s_mul_i32 s30, s30, 5120
        s_add_u32 s29, s29, s30
        s_add_u32 s29, s29, s62
        s_add_u32 s29, s29, {hx(QSZ)}
        s_and_b32 s33, s16, 1
        s_lshl_b32 s30, s33, 10
        s_add_u32 s30, s30, s29
        s_lshl_b32 s31, s33, 8
        s_add_u32 s31, s31, s29
        s_mul_i32 s32, s33, 1280
        s_add_u32 s32, s32, s29
        v_mul_u32_u24 v{AVW}, 40, v{LN}
        v_add_u32 v{AVW}, s19, v{AVW}
        v_lshrrev_b32 v{t}, 4, v{LN}
        v_and_b32 v{t+1}, 3, v{LN}
        v_lshl_add_u32 v{t}, v{t}, 2, v{t+1}
        v_bfe_u32 v{t+1}, v{LN}, 2, 2
        """)
        for p in range(3):
            k(f"v_add_u32 v{t+2}, {16*p}, v{t}")
            vdiv(k, t+3, t+2, 5, 48)
            k(f"""
            v_mul_u32_u24 v{t+4}, 5, v{t+3}
            v_sub_u32 v{t+4}, v{t+2}, v{t+4}
            v_lshrrev_b32 v{t+5}, 1, v{t+3}
            v_lshl_add_u32 v{t+5}, v{t+5}, 4, v{t+1}
            v_and_b32 v{t+3}, 1, v{t+3}
            v_lshl_add_u32 v{t+5}, v{t+3}, 2, v{t+5}
            v_mul_u32_u24 v{t+5}, 40, v{t+5}
            v_lshl_add_u32 v{t+5}, v{t+4}, 3, v{t+5}
            v_add_u32 v{AVR+p}, s19, v{t+5}
            """)
        k(f"""
        v_mov_b32 v{AVS}, v{L16}
        v_cmp_gt_u32 vcc, 16, v{LN}
        v_add_u32 v{t}, 1024, v{L16}
        v_add_u32 v{t+1}, {hx(163840 - 256)}, v{L16}
        v_cndmask_b32 v{AVS+1}, v{t+1}, v{t}, vcc
        v_cmp_gt_u32 vcc, 32, v{LN}
        v_add_u32 v{t}, {hx(163840 + 768)}, v{L16}
        v_mov_b32 v{t+1}, {hx(OOB)}
        v_cndmask_b32 v{AVS+2}, v{t+1}, v{t}, vcc
        s_branch {L('main')}
        {L('proA')}:
        """)
    if True:
        KVS, RR = 32768, 57344
        AW, ATA, ATB, APM, APT, AG, ARW, ARM, ART, AOT = range(E0, E0+10)
        k(f"""
        s_lshl_b32 s28, s3, 5
        v_lshl_add_u32 v{t}, v{HH}, 7, v{TOK}
        v_add_u32 v{t}, s28, v{t}
        v_mul_u32_u24 v{AW}, 96, v{t}
        v_bfe_u32 v{t}, v{LN}, 2, 2
        v_lshl_add_u32 v{t}, v{HH}, 3, v{t}
        s_lshl_b32 s28, s3, 7
        v_add_u32 v{t}, s28, v{t}
        v_mul_u32_u24 v{t}, 96, v{t}
        v_bfe_u32 v{t+1}, v{LN}, 4, 1
        v_and_b32 v{t+2}, 1, v{LN}
        v_bfe_u32 v{t+3}, v{LN}, 1, 1
        v_lshl_add_u32 v{t+2}, v{t+2}, 1, v{t+3}
        v_lshl_add_u32 v{t+2}, v{t+1}, 2, v{t+2}
        v_min_u32 v{t+2}, 4, v{t+2}
        v_lshl_add_u32 v{ATA}, v{t+2}, 3, v{t}
        v_and_b32 v{t+2}, 3, v{LN}
        v_lshl_add_u32 v{t+2}, v{t+1}, 2, v{t+2}
        v_min_u32 v{t+2}, 5, v{t+2}
        v_lshl_add_u32 v{ATB}, v{t+2}, 3, v{t}
        v_min_u32 v{t}, 20, v{TOK}
        v_mad_u32_u24 v{t+1}, v{HH}, 21, v{t}
        v_lshlrev_b32 v{ARM}, 4, v{t+1}
        v_lshlrev_b32 v{ART}, 3, v{t+1}
        v_mov_b32 v{t+2}, {hx(OOB)}
        s_mul_i32 s28, s3, 672
        s_mul_i32 s29, s3, 168
        v_add_u32 v{t}, s28, v{ARM}
        v_cmp_gt_u32 vcc, 21, v{TOK}
        v_add_u32 v{t+1}, s29, v{ART}
        v_cndmask_b32 v{APM}, v{t+2}, v{t}, vcc
        v_cmp_gt_u32 vcc, 21, v{LN}
        v_lshlrev_b32 v{ARW}, 3, v{TID}
        v_cndmask_b32 v{APT}, v{t+2}, v{t+1}, vcc
        v_cmp_gt_u32 vcc, 210, v{TID}
        s_lshl_b32 s30, s6, 15
        s_add_u32 s30, s30, s63
        v_cndmask_b32 v{AG}, v{t+2}, v{ARW}, vcc
        s_lshl_b32 s31, s7, 11
        s_add_u32 s31, s31, s30
        s_and_b32 s32, s6, 1
        s_lshl_b32 s32, s32, 9
        v_cmp_gt_u32 vcc, 32, v{LN}
        v_add_u32 v{t}, s32, v{L16}
        s_mul_i32 s32, s16, 40960
        s_add_u32 s32, s32, s62
        v_cndmask_b32 v{AOT}, v{t+2}, v{t}, vcc
        s_lshr_b32 s33, s6, 1
        s_add_u32 s33, s33, 32
        s_lshl_b32 s33, s33, 10
        s_add_u32 s33, s33, s32
        s_lshl_b32 s34, s6, 11
        s_add_u32 s32, s32, s34
        """)
        for j in range(8): k(f"s_add_u32 s{40+j}, s30, {j*4096}")
    def rd(ks, tt): return f"ds_read_b128 v[{WF+4*tt}:{WF+4*tt+3}], v{L16} offset:{(ks%16)*4096 + tt*1024}"
    k(f"{L('main')}:")
    k(f"s_cmp_eq_u32 s{NL}, 0\ns_cbranch_scc1 {k.lab('psync')}")
    wait(k, T0+6, T0)
    k(f"{L('go')}:")
    k.stamp(1)
    for G in range(3):
        k(f"s_mov_b32 s21, {G*4096}")
        for i in range(4): k(xload(G, i))
    k("s_mov_b32 s22, 40960\ns_waitcnt vmcnt(8)\ns_barrier")
    k.stamp(2)
    wo = []
    for i in range(24, -1, -1):
        pre = []
        if i == 24 or i % 4 == 3: pre = ([] if i == 24 else ["s_sub_u32 s53, s53, 4096"]) + [f"s_add_u32 m0, s53, {WOL}"]
        wo.append((f"buffer_load_dwordx4 v{L16}, s[48:51], s53 offen offset:{(i%4)*1024} sc1 lds", pre))
    cnt = [12]; done = {0: 4, 1: 8, 2: 12}
    def ld(x): k(x); cnt[0] += 1
    for tt in range(4): k(rd(0, tt))
    for s in gsetup(3): k(s)
    ld(xload(3, 0)); ld(wload(3, 0))
    for ks in range(40):
        G = (ks + 13) // 4; i = (ks + 13) % 4
        x = XR + 4*(ks % 16)
        for tt in range(4):
            lg = 3 if ks < 39 else 3 - tt
            if tt == 0 and ks % 4 == 3 and ks < 39:
                g = (ks + 1) // 4
                k(f"s_waitcnt vmcnt({cnt[0] - done[g]}) lgkmcnt({lg})\ns_barrier")
            else:
                k(f"s_waitcnt lgkmcnt({lg})")
            a = f"v[{ACC+16*tt}:{ACC+16*tt+15}]"
            k(f"v_mfma_f32_32x32x16_bf16 {a}, v[{WF+4*tt}:{WF+4*tt+3}], v[{x}:{x+3}], {a if ks else 0}")
            if ks < 39: k(rd(ks+1, tt))
            if G == 10 and tt in (0, 3):
                j = 2*i + tt//3
                ld(f"buffer_load_dword v{SQ+j}, v{ASQ}, s[12:15], s22 offen offset:{128*j} sc1")
                done[10] = cnt[0]
            if G >= 10 and tt in (1, 2) and wo:
                x_, pre = wo.pop(0)
                for s in pre: k(s)
                ld(x_)
            if ks == 38 and tt == 0: k(f"s_waitcnt vmcnt({cnt[0] - done[10]})")
            if ks == 38 and tt < 4: k(f"v_add_f32 v{SQ+tt}, v{SQ+tt}, v{SQ+4+tt}")
            if ks == 39 and tt < 2: k(f"v_add_f32 v{SQ+tt}, v{SQ+tt}, v{SQ+2+tt}")
            if ks == 39 and tt == 2: k(f"v_add_f32 v{SS}, v{SQ}, v{SQ+1}\nv_add_f32 v{T0}, v{SQ}, v{SQ+1}")
            if G < 10:
                if tt == 0 and i == 0:
                    for s in gsetup(G): k(s)
                if tt == 1: ld(xload(G, i))
                if tt == 2: ld(wload(G, i)); done[G] = cnt[0]
    assert not wo
    k.stamp(3)
    RS = T0 + 8
    k(f"""
    v_permlane32_swap_b32 v{t}, v{SS}
    v_add_f32 v{SS}, v{t}, v{SS}
    v_mov_b32 v{t+1}, {hx(f2u(1e-5))}
    v_fmac_f32 v{t+1}, {hx(f2u(1/640))}, v{SS}
    v_mul_f32 v{t}, {hx(f2u(1/640))}, v{ACC+60}
    v_fma_f32 v{t+1}, -v{t}, v{t}, v{t+1}
    v_rsq_f32 v{RS}, v{t+1}
    """)
    P = WF
    def scale_pack(src, dst, n):
        for j in range(n):
            k(f"v_pk_mul_f32 v[{src+2*j}:{src+2*j+1}], v[{src+2*j}:{src+2*j+1}], v[{RS}:{RS+1}] op_sel_hi:[1,0]")
            if j: k(f"v_cvt_pk_bf16_f32 v{dst+j-1}, v{src+2*j-2}, v{src+2*j-1}")
        k(f"v_cvt_pk_bf16_f32 v{dst+n-1}, v{src+2*n-2}, v{src+2*n-1}")
    k(f"s_cmp_lg_u32 s63, 0\ns_cbranch_scc1 {L('epiA')}")
    if True:
        scale_pack(ACC+40, P+20, 10)
        for j in range(5): k(f"ds_write_b64 v{AVW}, v[{P+20+2*j}:{P+21+2*j}] offset:{8*j}")
        scale_pack(ACC+20, P+10, 10)
        k(f"""
        buffer_store_dwordx4 v[{P+10}:{P+13}], v{AK}, s[24:27], s30 offen sc1
        buffer_store_dwordx4 v[{P+14}:{P+17}], v{AK}, s[24:27], s30 offen offset:512 sc1
        buffer_store_dwordx2 v[{P+18}:{P+19}], v{AKT}, s[24:27], s31 offen offset:2048 sc1
        s_waitcnt lgkmcnt(0)
        """)
        for p in range(3):
            k(f"ds_read_b64_tr_b16 v[{P+32+4*p}:{P+33+4*p}], v{AVR+p}")
            k(f"ds_read_b64_tr_b16 v[{P+34+4*p}:{P+35+4*p}], v{AVR+p} offset:320")
        for p in range(3):
            k(f"s_waitcnt lgkmcnt({4-2*p})")
            k(f"buffer_store_dwordx4 v[{P+32+4*p}:{P+35+4*p}], v{AVS+p}, s[24:27], s32 offen offset:2560 sc1")
        scale_pack(ACC, P, 10)
        k(f"""
        ds_write_b128 v{AQ}, v[{P}:{P+3}] offset:{QL}
        ds_write_b128 v{AQ}, v[{P+4}:{P+7}] offset:{QL+512}
        ds_write_b64 v{AQT}, v[{P+8}:{P+9}] offset:{QL+1024}
        s_waitcnt lgkmcnt(0)
        """)
        k.stamp(6)
        publish(k, 6, 7)
        k(f"s_branch {k.lab('atop')}\n{L('epiA')}:")
    if True:
        EPS = RS + 4
        TE = 120
        k(f"v_mul_f32 v{RS+2}, {hx(f2u(LOG2E))}, v{RS}\nv_mov_b32 v{EPS}, {hx(f2u(1e-6))}")
        def phi_pack(src, dst, n):
            for j in range(n + 1):
                a = src + 2*j; e = TE + 2*(j % 2)
                if j < n:
                    k(f"""
                    v_pk_mul_f32 v[{e}:{e+1}], v[{a}:{a+1}], v[{RS+2}:{RS+3}] op_sel_hi:[1,0]
                    v_max_f32 v{a}, 0, v{a}
                    v_exp_f32 v{e}, v{e} clamp
                    v_exp_f32 v{e+1}, v{e+1} clamp
                    v_max_f32 v{a+1}, 0, v{a+1}
                    """)
                if j: k(f"v_cvt_pk_bf16_f32 v{dst+j-1}, v{a-2}, v{a-1}")
                if j < n:
                    k(f"""
                    v_pk_fma_f32 v[{a}:{a+1}], v[{a}:{a+1}], v[{RS}:{RS+1}], v[{EPS}:{EPS+1}] op_sel_hi:[1,0,0]
                    v_pk_add_f32 v[{a}:{a+1}], v[{a}:{a+1}], v[{e}:{e+1}]
                    """)
        PK = P + 12
        scale_pack(ACC+40, PK+10, 10)
        k(f"""
        v_mov_b32 v{PK+20}, 0x3f803f80
        v_mov_b32 v{PK+21}, 0x3f803f80
        ds_write_b128 v{AW}, v[{PK+12}:{PK+15}] offset:{KVS+48}
        ds_write_b128 v{AW}, v[{PK+16}:{PK+19}] offset:{KVS+64}
        ds_write_b64 v{AW}, v[{PK+20}:{PK+21}] offset:{KVS+80}
        """)
        phi_pack(ACC+20, PK, 10)
        for j in range(3): k(f"ds_write_b128 v{AW}, v[{PK+4*j}:{PK+4*j+3}] offset:{KVS+16*j}")
        k(f"""
        s_waitcnt lgkmcnt(0)
        s_barrier
        s_cmp_ge_u32 s3, 2
        s_cbranch_scc1 {L('nokv')}
        """)
        FA = 76
        D = 24
        for c in range(8):
            for h in range(2):
                k(f"ds_read_b64_tr_b16 v[{FA+8*c+2*h}:{FA+8*c+2*h+1}], v{ATA} offset:{KVS + c*1536 + h*384}")
                k(f"ds_read_b64_tr_b16 v[{FA+8*c+4+2*h}:{FA+8*c+5+2*h}], v{ATB} offset:{KVS + 40 + c*1536 + h*384}")
            if c >= 3:
                cc = c - 3
                k(f"s_waitcnt lgkmcnt(12)")
                k(f"v_mfma_f32_32x32x16_bf16 v[{D}:{D+15}], v[{FA+8*cc}:{FA+8*cc+3}], v[{FA+8*cc+4}:{FA+8*cc+7}], {f'v[{D}:{D+15}]' if cc else 0}")
        for cc in range(5, 8):
            k(f"s_waitcnt lgkmcnt({4*(7-cc)})")
            k(f"v_mfma_f32_32x32x16_bf16 v[{D}:{D+15}], v[{FA+8*cc}:{FA+8*cc+3}], v[{FA+8*cc+4}:{FA+8*cc+7}], v[{D}:{D+15}]")
        for j in range(6): k(f"v_cvt_pk_bf16_f32 v{44+j}, v{D+2*j}, v{D+2*j+1}")
        for j in range(6): k(f"v_min_u32 v{44+j}, -2, v{44+j}")
        k(f"""
        buffer_store_dwordx4 v[44:47], v{APM}, s[24:27], s31 offen sc1
        buffer_store_dwordx2 v[48:49], v{APT}, s[24:27], s31 offen offset:1344 sc1
        """)
        k(f"""
        {L('nokv')}:
        """)
        phi_pack(ACC, P, 10)
        k.stamp(4)
        GA = 80
        k(f"""
        s_mov_b32 s36, 0x40000
        s_mov_b32 s37, 0x3f80
        s_mov_b32 s38, 0x3f800000
        """)
        if HINT == 1:
            k(f"""
            s_lshl_b32 s35, s3, 13
            s_add_u32 s35, s35, s30
            v_lshlrev_b32 v{t}, 11, v{LN}
            s_mov_b64 exec, 15
            {L('hint')}:
            buffer_load_dwordx4 v[{GA}:{GA+3}], v{t}, s[24:27], s35 offen offset:1504 sc1
            s_sub_u32 s36, s36, 1
            s_cbranch_scc1 {L('hintx')}
            s_waitcnt vmcnt(0)
            v_max_u32 v{GA}, v{GA+1}, v{GA+2}
            v_cmp_eq_u32 vcc, -1, v{GA}
            s_and_b64 exec, vcc, vcc
            s_cbranch_scc1 {L('hint')}
            {L('hintx')}:
            s_mov_b64 exec, -1
            s_mov_b32 s36, 0x40000
            s_barrier
            """)
        k(f"{L('poll')}:")
        for j in range(16):
            k(f"buffer_load_dwordx2 v[{GA+2*j}:{GA+2*j+1}], v{AG}, s[24:27], s{40+j//2} offen offset:{(j%2)*2048} sc1")
        k(f"s_sub_u32 s36, s36, 1")
        for j in range(16):
            if j % 2 == 0: k(f"s_waitcnt vmcnt({14-j})")
            k(f"v_max3_u32 v{t}, v{GA+2*j}, v{GA+2*j+1}, {f'v{t}' if j else 0}")
        k(f"""
        v_cmp_eq_u32 vcc, -1, v{t}
        s_cmp_eq_u32 s36, 0
        s_cbranch_scc1 {L('got')}
        s_cbranch_vccnz {L('poll')}
        {L('got')}:
        """)
        k.stamp(5)
        for j in range(16):
            for q in range(4):
                c = 0 if j == 0 else f"v{t+q}"
                k(f"v_dot2_f32_bf16 v{t+q}, v{GA+2*j+q//2}, s{37+q%2}, {c}")
        for j in range(4): k(f"v_permlane32_swap_b32 v{P+j}, v{P+4+j}")
        k(f"""
        v_cvt_pk_bf16_f32 v{t+4}, v{t}, v{t+1}
        v_cvt_pk_bf16_f32 v{t+5}, v{t+2}, v{t+3}
        ds_write_b64 v{ARW}, v[{t+4}:{t+5}] offset:{RR}
        s_waitcnt lgkmcnt(0)
        s_barrier
        ds_read_b128 v[80:83], v{ARM} offset:{RR}
        ds_read_b128 v[84:87], v{ARM} offset:{RR+672}
        ds_read_b64 v[88:89], v{ART} offset:{RR+1344}
        s_waitcnt lgkmcnt(0)
        v_mfma_f32_32x32x4_2b_bf16 v[0:31], v[88:89], v[{P+8}:{P+9}], 0
        v_mfma_f32_32x32x16_bf16 v[0:15], v[80:83], v[{P}:{P+3}], v[0:15]
        v_mfma_f32_32x32x16_bf16 v[16:31], v[84:87], v[{P+4}:{P+7}], v[16:31]
        """)
        for H in range(2):
            d = 16*H
            k(f"v_add_f32 v{d+12}, v{EPS}, v{d+12}\nv_rcp_f32 v{RS}, v{d+12}")
            scale_pack(d, 40 + 6*H, 6)
            k(f"buffer_store_dwordx4 v[{40+6*H}:{43+6*H}], v{L16}, s[24:27], s32 offen offset:{1024*H} sc1")
        k(f"""
        v_mov_b32 v52, v44
        v_mov_b32 v53, v45
        v_mov_b32 v54, v50
        v_mov_b32 v55, v51
        buffer_store_dwordx4 v[52:55], v{AOT}, s[24:27], s33 offen sc1
        """)
    k.stamp(6)
    publish(k, 7, 6)
```

```python
import sys, os
sys.path.insert(0, os.path.dirname(os.path.abspath(__file__)))
from mcommon import *
from gen import emit, NAME
from mprep import m_prep, m_prep_flags, m_prep_sync
from mqkv import m_qkv
from mop import m_op
from matt2 import m_att, att_init, NB
def gen_mega(name):
    k = K(name, 256, 256, 163840, vgpr=256, sgpr=102, agpr=26*NB)
    k.lab = lambda n: "L_m_" + n
    k(f"s_cmp_ge_u32 s2, 256\ns_cbranch_scc1 {k.lab('end')}")
    L = m_prep(k)
    att_init(k, 1)
    k(f"v_mov_b32 v174, {hx(OOB)}")
    wpre_setup(k, False)
    m_prep_flags(k, L)
    m_qkv(k)
    m_op(k)
    k(f"{k.lab('end')}:\ns_endpgm")
    m_prep_sync(k, L)
    m_att(k)
    return k
def build(verbose=False):
    m = gen_mega(NAME + "_kernel")
    return emit([(m, m.name)], verbose)
if __name__ == "__main__":
    K.PROF = "-p" in sys.argv
    txt = build("-v" in sys.argv)
    dst = f"cdna_kernels/{NAME}.s"
    for a in sys.argv[1:]:
        if a.endswith(".s"): dst = a
    open(dst, "w").write(txt)
    print(dst, len(txt))
```

```python
import re

def vr(a, n=1):
    return f"v{a}" if n == 1 else f"v[{a}:{a+n-1}]"
def sr(a, n=1):
    return f"s{a}" if n == 1 else f"s[{a}:{a+n-1}]"

_reg = re.compile(r"^(-|\|)?([vsa])(?:(\d+)|\[(\d+):(\d+)\])\|?$")
def regs_of(op):
    op = op.strip()
    if op in ("vcc",): return {("s", 106), ("s", 107)}
    if op == "vcc_lo": return {("s", 106)}
    if op == "vcc_hi": return {("s", 107)}
    if op == "exec": return {("s", 126), ("s", 127)}
    if op == "exec_lo": return {("s", 126)}
    if op == "exec_hi": return {("s", 127)}
    if op == "m0": return {("s", 124)}
    m = _reg.match(op)
    if not m: return set()
    k = m.group(2)
    if m.group(3) is not None: return {(k, int(m.group(3)))}
    return {(k, i) for i in range(int(m.group(4)), int(m.group(5)) + 1)}

TRANS = ("v_exp_f32", "v_log_f32", "v_rcp_f32", "v_rsq_f32", "v_sqrt_f32")
PASSES = {"v_mfma_f32_32x32x16_bf16": 8, "v_mfma_f32_16x16x32_bf16": 4,
          "v_mfma_f32_32x32x4_2b_bf16": 16, "v_mfma_f32_32x32x8_bf16": 8,
          "v_mfma_f32_32x32x4_2b_bf16_1k": 16, "v_mfma_f32_32x32x8_bf16_1k": 8}

class Ins:
    def __init__(self, text):
        self.text = text
        t = text.split(";")[0].strip()
        self.label = t[:-1] if t.endswith(":") else None
        self.op = None; self.dst = set(); self.src = set(); self.states = 0
        self.kind = None; self.target = None
        if self.label or not t or t.startswith("."): return
        parts = t.split(None, 1)
        op = parts[0]; self.op = op
        rest = parts[1] if len(parts) > 1 else ""
        ops = [x.strip() for x in re.split(r",(?![^\[]*\])", rest)] if rest else []
        mods = ""
        if ops:
            sp = ops[-1].split(None, 1)
            ops[-1] = sp[0]
            if len(sp) > 1: mods = sp[1]
        self.ops = ops; self.mods = mods
        self.states = 1
        base = op.replace("_e32", "").replace("_e64", "")
        self.base = base
        R = [regs_of(o) for o in ops]
        allr = lambda xs: set().union(*xs) if xs else set()
        if op == "s_nop":
            self.kind = "nop"; self.states = int(ops[0]) + 1
        elif op.startswith("s_cbranch") or op == "s_branch":
            self.kind = "branch"; self.target = ops[0]
        elif op == "s_endpgm":
            self.kind = "end"
        elif op.startswith("v_mfma"):
            self.kind = "mfma"; self.dst = R[0]; self.ab = R[1] | R[2]; self.c = R[3]
            self.src = self.ab | self.c; self.passes = PASSES[op]
        elif op.startswith("v_"):
            self.kind = "valu"
            if base.startswith("v_permlane") and "swap" in base:
                self.dst = R[0] | R[1]; self.src = R[0] | R[1]
            elif base.startswith("v_cmp"):
                self.dst = R[0]; self.src = allr(R[1:])
            elif base in ("v_add_co_u32", "v_sub_co_u32"):
                self.dst = R[0] | R[1]; self.src = allr(R[2:])
            elif base in ("v_addc_co_u32",):
                self.dst = R[0] | R[1]; self.src = allr(R[2:])
            else:
                self.dst = R[0]; self.src = allr(R[1:])
                if base in ("v_fmac_f32", "v_dot2c_f32_bf16", "v_writelane_b32"): self.src |= R[0]
                if base == "v_cndmask_b32" and len(ops) == 3: self.src |= regs_of("vcc")
        elif op.startswith("buffer_") or op.startswith("global_"):
            self.kind = "vmem"
            self.lds = " lds" in (" " + mods)
            if "load" in op and not self.lds:
                self.dst = R[0]; self.src = allr(R[1:])
            else:
                self.src = allr(R)
            self.wide_store = ("store" in op) and (op.endswith("x4") or op.endswith("x3"))
            self.data = R[0] if "store" in op else set()
        elif op.startswith("ds_"):
            self.kind = "ds"
            if "read" in op or "permute" in op or "swizzle" in op or "rtn" in op:
                self.dst = R[0]; self.src = allr(R[1:])
            else:
                self.src = allr(R)
        elif op.startswith("s_"):
            self.kind = "salu"
            if op.startswith("s_cmp") or op in ("s_waitcnt", "s_barrier", "s_setprio", "s_sleep", "s_bitcmp1_b32", "s_bitcmp0_b32"):
                self.src = allr(R)
            else:
                self.dst = R[0] if R else set(); self.src = allr(R[1:])
                if "saveexec" in op: self.dst = self.dst | regs_of("exec")
        else:
            raise ValueError("unknown instruction: " + text)

def V(s): return {r for r in s if r[0] in "va"}
def S(s): return {r for r in s if r[0] == "s"}

def need(p, c):
    n = 0
    if p.kind == "valu":
        pd = V(p.dst); ps = S(p.dst)
        if c.kind == "mfma" and pd & c.src: n = max(n, 2)
        if c.kind == "valu":
            if p.base in TRANS and c.base not in TRANS and pd & c.src: n = max(n, 1)
            if ps & c.src: n = max(n, 4 if c.base in ("v_readlane_b32", "v_writelane_b32") else 2)
            if c.base in ("v_readfirstlane_b32", "v_readlane_b32") and pd & c.src: n = max(n, 1)
            if (c.base.startswith("v_permlane") or "dpp" in c.op or "row_" in c.mods or "quad_perm" in c.mods) and pd & c.src: n = max(n, 2)
            if ("sdwa" in p.op or ("op_sel" in p.mods and not p.base.startswith("v_pk_"))) and pd & (c.src | c.dst): n = max(n, 1)
        if p.base.startswith("v_dot"):
            if c.kind in ("valu", "vmem", "ds", "mfma") and pd & (c.src | c.dst):
                same = c.kind == "valu" and c.base == p.base and not (pd & (regs_of(c.ops[1]) | regs_of(c.ops[2])))
                if not same: n = max(n, 3)
        if c.kind == "vmem" and ps & c.src: n = max(n, 5)
    if p.kind == "mfma":
        if c.kind == "mfma":
            if p.dst & c.ab: n = max(n, p.passes + 4)
            if p.dst & c.c:
                if not (p.dst == c.c and p.op == c.op): n = max(n, p.passes + 2)
            elif p.dst & c.dst: n = max(n, p.passes + 2)
        elif c.kind in ("valu", "vmem", "ds"):
            if p.dst & (c.src | c.dst): n = max(n, p.passes + 4)
            if c.kind == "valu" and V(p.c) & c.dst: n = max(n, p.passes - 1)
    if p.kind == "salu" and ("s", 124) in p.dst and c.kind == "vmem" and c.lds: n = max(n, 1)
    if p.kind == "vmem" and p.wide_store and p.data & c.dst:
        n = max(n, 2 if c.kind == "valu" else 1)
    return n

def pad(lines, verbose=False):
    ins = [Ins(l) for l in lines]
    total = 0; start = 0
    while True:
        labels = {x.label: i for i, x in enumerate(ins) if x.label}
        br = {}
        for i, x in enumerate(ins):
            if x.kind == "branch": br.setdefault(x.target, []).append(i)
        fix = None
        for i in range(start, len(ins)):
            c = ins[i]
            if c.kind in (None, "nop", "branch", "end"): continue
            worst = 0
            stack = [(i - 1, 0)]; seen = set()
            while stack:
                j, d = stack.pop()
                while j >= 0 and d < 21:
                    if (j, d) in seen: break
                    seen.add((j, d))
                    p = ins[j]
                    if p.label:
                        for b in br.get(p.label, []): stack.append((b, d))
                        if j > 0 and (ins[j-1].kind == "end" or ins[j-1].op == "s_branch"): break
                    elif p.kind == "end": break
                    elif p.kind is not None:
                        k = need(p, c)
                        if k - d > worst: worst = k - d; why = p.text
                        d += p.states
                    j -= 1
            if worst > 0:
                fix = (i, worst, why); break
        if not fix: break
        i, w, why = fix
        if verbose: print(f"pad {w} before [{ins[i].text.strip()}] after [{why.strip()}]")
        total += w
        new = []
        while w > 0:
            k = min(w, 16); new.append(Ins(f"    s_nop {k-1}")); w -= k
        ins[i:i] = new; start = i
    return [x.text for x in ins], total

import subprocess, tempfile, os
def sizes(lines):
    src = '.amdgcn_target "amdgcn-amd-amdhsa--gfx950"\n.text\n' + "\n".join(lines) + "\n"
    r = subprocess.run(["llvm-mc", "-triple=amdgcn-amd-amdhsa", "-mcpu=gfx950", "-show-encoding"],
                       input=src, capture_output=True, text=True)
    assert r.returncode == 0, r.stderr[:500]
    enc = [l.split("encoding: [")[1].count(",") + 1 for l in r.stdout.split("\n") if "encoding: [" in l]
    out = []; j = 0
    for l in lines:
        if Ins(l).op is None: out.append(0)
        else: out.append(enc[j]); j += 1
    assert j == len(enc)
    return out
NO64 = ("v_readfirstlane", "v_dot2c", "v_permlane", "v_fmac", "v_cndmask", "v_cmp")
def align8(lines):
    sz = sizes(lines); off = 0; cand = None; miss = 0
    lines = list(lines)
    for i, l in enumerate(lines):
        x = Ins(l)
        if l.strip().startswith(".p2align"): off = 0; cand = None; continue
        if sz[i] == 4:
            if x.kind == "valu" and not x.op.startswith(NO64) and not x.op.endswith("_e32"): cand = i
            off += 4
        elif sz[i] >= 8:
            if off % 8:
                if cand is not None:
                    lines[cand] = lines[cand].replace(Ins(lines[cand]).op, Ins(lines[cand]).op + "_e64", 1); off += 4
                else: miss += 1
            off += sz[i]; cand = None
    return lines, miss

class K:
    def __init__(self, name, grid, block, lds, vgpr, sgpr=96, agpr=0):
        self.name = name; self.grid = grid; self.block = block; self.lds = lds
        self.vgpr = vgpr; self.sgpr = sgpr; self.agpr = agpr
        self.L = []; self.align = True
        self.entries = []
    def __call__(self, s):
        for l in s.strip("\n").split("\n"):
            l = l.strip()
            if not l: continue
            self.L.append(l if l.endswith(":") else "    " + l)
    PROF = False
    DBGT = False
    def stamp(self, j):
        if K.PROF: self(f"s_memrealtime s[{64+4*j}:{65+4*j}]\ns_memtime s[{66+4*j}:{67+4*j}]")
    def prof_end(self, wave, j, ph):
        if K.DBGT:
            self(f"""
            s_memrealtime s[64:65]
            s_mov_b32 m0, s{ph}
            s_waitcnt lgkmcnt(0)
            s_sub_u32 s64, s64, s94
            v_writelane_b32 v239, s64, m0
            """)
        if not K.PROF: return
        self.stamp(j)
        self(f"""
        s_mov_b64 exec, -1
        v_mov_b32 v238, 0
        s_waitcnt lgkmcnt(0)
        """)
        for i in range(2*(j+1)): self(f"v_writelane_b32 v238, s{64+2*i}, {i}")
        self(f"""
        s_lshl_b32 vcc_lo, s{ph}, 8
        s_add_u32 vcc_lo, vcc_lo, s2
        s_lshl_b32 vcc_lo, vcc_lo, 3
        s_add_u32 vcc_lo, vcc_lo, s{wave}
        s_lshl_b32 vcc_lo, vcc_lo, 6
        s_add_u32 vcc_lo, vcc_lo, 0x4000000
        v_mbcnt_lo_u32_b32 v239, -1, 0
        v_lshl_add_u32 v239, v239, 2, vcc_lo
        s_mov_b64 exec, 0xffff
        global_store_dword v239, v238, s[4:5]
        s_mov_b64 exec, -1
        """)
    def lab(self, n): return f"L_{self.name}_{n}"
    def text(self, verbose=False):
        body, n = pad(self.L, verbose)
        if self.align:
            body, miss = align8(body)
            if verbose: print(self.name, "misaligned left:", miss)
        hi = 0
        for l in body:
            x = Ins(l)
            for r in (x.dst | x.src):
                if r[0] == "v": hi = max(hi, r[1])
        assert hi < self.vgpr, (self.name, hi, self.vgpr)
        head = lambda n: f".globl {n}\n.p2align 8\n.type {n},@function\n{n}:\n"
        if not self.entries: return head(self.name) + "\n".join(body) + "\n"
        out = ""
        sets = lambda ps: "".join(f"    s_mov_b32 s{r}, 0x{v & 0xffffffff:x}\n" for r, v in ps)
        n, ps = self.entries[0]
        out += head(n) + sets(ps) + f".p2align 3\n{self.lab('body')}:\n" + "\n".join(body) + "\n"
        for n, ps in self.entries[1:]:
            out += head(n) + sets(ps) + f"    s_branch {self.lab('body')}\n"
        return out
    def entry(self, name, **ps):
        self.entries.append((name, [(self.params[a], b) for a, b in ps.items()]))
        assert set(ps) == set(self.params)
        return (self, name)
    def descs(self):
        return "".join(".p2align 6\n" + self.desc(n) for n in ([e[0] for e in self.entries] or [self.name]))
    def desc(self, name):
        acc = (self.vgpr + 3) // 4 * 4
        return f""".amdhsa_kernel {name}
  .amdhsa_next_free_vgpr {acc + self.agpr}
  .amdhsa_next_free_sgpr {self.sgpr}
  .amdhsa_accum_offset {acc}
  .amdhsa_group_segment_fixed_size 0
  .amdhsa_kernarg_size 72
  .amdhsa_user_sgpr_count 2
  .amdhsa_user_sgpr_kernarg_segment_ptr 1
  .amdhsa_system_sgpr_workgroup_id_x 1
.end_amdhsa_kernel
"""
```

```python
import sys, os
sys.path.insert(0, os.path.dirname(os.path.abspath(__file__)))
from mcommon import *
from gen import emit, NAME
from mprep import m_prep, m_prep_flags, m_prep_sync
from mqkv import m_qkv, NA
from mop import m_op
from matt2 import m_att, att_init, NB
def gen_mega(name):
    k = K(name, 256, 256, 163840, vgpr=256, sgpr=102, agpr=NA)
    k.lab = lambda n: "L_m_" + n
    k(f"s_cmp_ge_u32 s2, 256\ns_cbranch_scc1 {k.lab('end')}")
    if K.DBGT: k("s_memrealtime s[94:95]\ns_load_dwordx2 s[92:93], s[0:1], 56\nv_mov_b32 v239, 0")
    L = m_prep(k)
    att_init(k, 1)
    k(f"v_mov_b32 v174, {hx(OOB)}\nv_mov_b32 v154, v174")
    wpre_setup(k, False)
    m_prep_flags(k, L)
    m_qkv(k)
    m_op(k)
    if K.DBGT: k(f"s_mov_b64 exec, 0xffff\nv_lshlrev_b32 v0, 2, v{LN}\nglobal_atomic_umax v0, v239, s[92:93]")
    k(f"{k.lab('end')}:\ns_endpgm")
    m_prep_sync(k, L)
    m_att(k)
    k(f"{k.lab('last')}:")
    return k
def build(verbose=False):
    m = gen_mega(NAME + "_kernel")
    return emit([(m, m.name)], verbose)
if __name__ == "__main__":
    K.PROF = "-p" in sys.argv
    K.DBGT = "-t" in sys.argv
    txt = build("-v" in sys.argv)
    dst = f"cdna_kernels/{NAME}.s"
    for a in sys.argv[1:]:
        if a.endswith(".s"): dst = a
    open(dst, "w").write(txt)
    print(dst, len(txt))
```

```python
from mcommon import *
NB = int(os.environ.get('NB', 2))
QL, EX = 49152, 0
def att_init(k, t):
    k(f"v_and_b32 v{t}, 31, v{LN}\nv_cmp_eq_u32 vcc, 20, v{t}\nv_mov_b32 v{t}, 0x3f803f80\nv_cndmask_b32 v{t}, 0, v{t}, vcc")
    for b in range(NB):
        for r in range(16): k(f"v_accvgpr_write_b32 a{26*b+10+r}, v{t}")

WL = int(os.environ.get('WL', 1))
FP = int(os.environ.get('FP', 1))
def m_att(k, D=3, POS=(0, 5, 15, 24, 30, 36, 42)):
    L = lambda n: k.lab("a" + n)
    S, P, O, Q = (0, 32), (64, 80), (96, 112, 128, 144), 160
    L8, LV, AOT, AW, AR, t = 184, 185, 186, 187, 190, 194
    SM, SK = 204, 220
    k(f"{L('top')}:")
    k(f"""
    s_and_b32 s34, s3, 1
    s_lshr_b32 s35, s3, 1
    s_lshl_b32 s36, s6, 1
    s_add_u32 s36, s36, s34
    s_mul_i32 s17, s36, 163840
    s_mul_i32 s18, s35, 81920
    s_add_u32 s17, s17, s18
    s_add_u32 s17, s17, s62
    s_add_u32 s17, s17, {hx(QSZ)}
    s_mov_b32 s20, 0
    s_mov_b32 s44, 0xfffff
    s_mov_b32 s45, 0xfffff
    v_lshlrev_b32 v{L8}, 3, v{LN}
    v_and_b32 v{t}, 31, v{LN}
    v_lshrrev_b32 v{t+2}, 5, v{LN}
    v_mad_u32_u24 v{LV}, v{t+2}, 20, v{t}
    v_lshlrev_b32 v{LV}, 4, v{LV}
    v_add_u32 v{LV}, 2560, v{LV}
    """)
    srd(k, 8, 4, "s17", 81920)
    k(f"s_mul_i32 s38, s34, 5120\ns_add_u32 s38, s38, {QL}\nv_lshlrev_b32 v{t+1}, 3, v{t}")
    for i in range(4):
        k(f"""
        s_add_u32 s39, s3, {i+1}
        s_and_b32 s39, s39, 3
        s_mul_i32 s40, s39, 1280
        s_add_u32 s40, s40, s38
        v_add_u32 v{SM+2*i}, s40, v{L16}
        v_add_u32 v{SM+2*i+1}, s40, v{t+1}
        """)
        if i < 3:
            k(f"""
            s_lshl_b32 s39, s39, 2
            s_add_u32 s39, s39, s3
            s_mul_i32 s39, s39, 3072
            v_add_u32 v{AW+i}, s39, v{L16}
            s_xor_b32 s39, s3, {(2, 1, 3)[i]}
            s_lshl_b32 s40, s3, 2
            s_add_u32 s39, s39, s40
            s_mul_i32 s39, s39, 3072
            v_add_u32 v{AR+i}, s39, v{L16}
            """)
    fire(k, 6, t+3, k.nB)
    k.postB()
    k(f"""
    s_mul_i32 s28, s16, 40960
    s_mul_i32 s29, s{NL}, {OSZ}
    s_add_u32 s28, s28, s29
    s_add_u32 s28, s28, {hx(OS[0])}
    """)
    srd(k, 24, 4, "s28", 40960)
    k(f"""
    s_lshl_b32 s29, s36, 10
    s_xor_b32 s30, s29, 1024
    s_lshr_b32 s31, s6, 1
    s_add_u32 s31, s31, 32
    s_lshl_b32 s31, s31, 10
    s_and_b32 s32, s6, 1
    s_lshl_b32 s32, s32, 9
    s_add_u32 s31, s31, s32
    v_lshl_add_u32 v{AOT}, v{t+2}, 30, v{L16}
    """)
    for r in range(P[1], O[3]+16, 2): k(f"v_mov_b64 v[{r}:{r+1}], 0")
    NC = [j for j in range(16) if 2*j+1+D > 31]
    for j in NC: k(f"v_mov_b64 v[{S[1]+2*j}:{S[1]+2*j+1}], 0")
    k("s_waitcnt lgkmcnt(0)")
    wait(k, t+3, t+4)
    k.stamp(1)
    def kload(b):
        return [f"buffer_load_dwordx4 a[{26*b}:{26*b+3}], v{L16}, s[8:11], s20 offen sc1",
                f"buffer_load_dwordx4 a[{26*b+4}:{26*b+7}], v{L16}, s[8:11], s20 offen offset:1024 sc1",
                f"buffer_load_dwordx2 a[{26*b+8}:{26*b+9}], v{L8}, s[8:11], s20 offen offset:2048 sc1"]
    def vload(b):
        return (["s_mov_b64 exec, s[44:45]"]
                + [f"buffer_load_dwordx4 a[{26*b+10+4*m}:{26*b+13+4*m}], v{LV}, s[8:11], s20 offen offset:{640*m} sc1" for m in range(4)]
                + ["s_mov_b64 exec, -1"])
    for b in range(NB):
        for x in kload(b): k(x)
        if b < NB-1:
            for x in vload(b): k(x)
            k("s_add_u32 s20, s20, 5120")
    for i in range(4): k(f"ds_read_b128 v[{Q+6*i}:{Q+6*i+3}], v{SM+2*i}\nds_read_b64 v[{Q+6*i+4}:{Q+6*i+5}], v{SM+2*i+1} offset:1024")
    def qk(s, kk, q, C=None, f="a"):
        c = 0 if C is None else f"v[{C}:{C+15}]"
        return [f"v_mfma_f32_32x32x16_bf16 v[{s}:{s+15}], {f}[{kk}:{kk+3}], v[{q}:{q+3}], {c}",
                f"v_mfma_f32_32x32x16_bf16 v[{s+16}:{s+31}], {f}[{kk+4}:{kk+7}], v[{q}:{q+3}], {c}",
                f"v_mfma_f32_32x32x4_2b_bf16 v[{s}:{s+31}], {f}[{kk+8}:{kk+9}], v[{q+4}:{q+5}], v[{s}:{s+31}]"]
    def pv(o, vv, p, f="a"):
        return [f"v_mfma_f32_32x32x16_bf16 v[{o}:{o+15}], {f}[{vv+4*m}:{vv+4*m+3}], v[{p+4*m}:{p+4*m+3}], v[{o}:{o+15}]" for m in range(4)]
    POS = list(POS)
    cv = lambda s, p, j: f"v_cvt_pk_bf16_f32 v{p+j}, v{s+2*j}, v{s+2*j+1}"
    def phase(n, after={}, tail=False):
        s, p, s2, p2 = S[n % 2], P[n % 2], S[1 - n % 2], P[1 - n % 2]
        mfs = qk(s2, 26*((n+1)//4 % NB), Q + 6*((n+1) % 4)) + pv(O[(n-1) % 4], 26*((n-1)//4 % NB) + 10, p2)
        seq = []
        for i in range(32):
            seq.append(f"v_exp_f32 v{s+i}, v{s+i}")
            j2 = i - 1 - D
            if j2 % 2 == 0: seq.append(cv(s, p, j2//2) if j2 >= 0 else cv(s2, p2, 16 + j2//2))
        assert all(f"v{s2+31}" not in x for x in seq[POS[1]:])
        for i, x in enumerate(seq):
            if i in POS:
                j = POS.index(i)
                if not (tail and j < 3): k(mfs[j])
                for y in after.get(j, []): k(y)
            k(x)
    k(f"s_waitcnt vmcnt({7*(NB-1)}) lgkmcnt(0)")
    k.stamp(2)
    for x in qk(S[0], 0, Q): k(x)
    k("s_nop 15\ns_nop 3")
    k(f".p2align 6\n{L('loop')}:")
    wr = lambda i: [f"ds_write_b128 v{AW+i}, v[{O[i]+4*c}:{O[i]+4*c+3}] offset:{EX + 1024*c}" for c in range(3)]
    for n in range(4*NB):
        b = n // 4; aft = {}
        if n % 4 == 1:
            aft[0] = vload((b-1) % NB); aft[1] = [f"s_waitcnt vmcnt({7*(NB-1) + 3*WL*(n == 1)})"]; aft[3] = ["s_add_u32 s20, s20, 5120"]
            if n == 4*NB - 3: aft[4] = [f"s_cmp_eq_u32 s20, {(16+NB-1)*5120}"]
        if n % 4 == 2: aft[6] = [f"s_waitcnt vmcnt({7*(NB-1)-3 + 3*WL*(n == 2)})"]
        if n == 0 and WL:
            assert NB == 2
            aft[0] = ["s_sub_u32 s53, s53, 3072", f"s_add_u32 m0, s53, {WOL}"]
            for j in range(3): aft[(1, 3, 5)[j]] = [f"buffer_load_dwordx4 v{L16}, s[48:51], s53 offen offset:{j*1024} sc1 lds"]
        if n % 4 == 3:
            kl = kload(b); aft[0] = [kl[0]]; aft[1] = [kl[1]]; aft[3] = [kl[2]]
        phase(n, aft)
        if n == 4*NB - 3: k(f"s_cbranch_scc1 {L('tail')}")
    k(f"s_branch {L('loop')}\n.p2align 3\n{L('tail')}:")
    w = wr(0); phase(4*NB - 2, {2: [w[0]], 3: [w[1]], 4: [w[2]]})
    w = wr(1); phase(4*NB - 1, {2: [w[0]], 3: [w[1]], 4: [w[2]]}, tail=True)
    w = wr(2)
    for m, x in enumerate(pv(O[3], 26*(NB-1) + 10, P[1])):
        k(x)
        if m == 0:
            for j in NC: k(cv(S[1], P[1], j))
        else: k(w[m-1])
    k("s_waitcnt lgkmcnt(0)\ns_barrier")
    k.stamp(3)
    for i in range(3):
        for c in range(3): k(f"ds_read_b128 v[{O[i]+4*c}:{O[i]+4*c+3}], v{AR+i} offset:{EX + 1024*c}")
    k("s_mov_b32 s46, 0\ns_cmp_eq_u32 s34, 1\ns_cselect_b64 s[40:41], -1, 0")
    for a, b, w in ((O[3], O[0], 6), (O[1], O[2], 0)):
        k(f"s_waitcnt lgkmcnt({w})")
        for j in (4, 0, 1, 2, 3, 5): k(f"v_pk_add_f32 v[{a+2*j}:{a+2*j+1}], v[{a+2*j}:{a+2*j+1}], v[{b+2*j}:{b+2*j+1}]")
    k(f"{L('fin')}:")
    for h, (o, so) in enumerate(((O[3], 29), (O[1], 30))):
        u = t + 4*h; r = S[0] + 16*h; p = P[0] + 6*h
        k(f"""
        v_mov_b32 v{u}, v{o+8}
        v_mov_b32 v{u+1}, v{o+8}
        v_permlane32_swap_b32 v{u}, v{u+1}
        v_rcp_f32 v{u+2}, v{u+1}
        """)
        for j in range(6): k(f"v_pk_mul_f32 v[{r+2*j}:{r+2*j+1}], v[{o+2*j}:{o+2*j+1}], v[{u+2}:{u+3}] op_sel_hi:[1,0]")
        for j in range(6): k(f"v_cvt_pk_bf16_f32 v{p+j}, v{r+2*j}, v{r+2*j+1}")
        k(f"buffer_store_dwordx4 v[{p}:{p+3}], v{L16}, s[24:27], s{so} offen sc1")
    p = P[0]
    for j in range(2):
        k(f"v_cndmask_b32 v{p+12+j}, v{p+4+j}, v{p+10+j}, s[40:41]\nv_cndmask_b32 v{p+14+j}, v{p+10+j}, v{p+4+j}, s[40:41]")
    k(f"buffer_store_dwordx4 v[{p+12}:{p+15}], v{AOT}, s[24:27], s31 offen sc1")
    a, b = O[3], O[1]
    for j in range(6): k(f"v_pk_add_f32 v[{a+2*j}:{a+2*j+1}], v[{a+2*j}:{a+2*j+1}], v[{b+2*j}:{b+2*j+1}]")
    for j in range(3): k(f"v_pk_add_f32 v[{a+2*j}:{a+2*j+1}], v[{a+2*j}:{a+2*j+1}], v[{a+6+2*j}:{a+7+2*j}]")
    k(f"""
    v_min_f32 v{t}, v{t+1}, v{t+5}
    v_pk_add_f32 v[{a}:{a+1}], v[{a}:{a+1}], v[{a+2}:{a+3}]
    v_cmp_gt_f32 vcc, {hx(f2u(2.0**-90))}, v{t}
    v_pk_add_f32 v[{a}:{a+1}], v[{a}:{a+1}], v[{a+4}:{a+5}]
    v_mov_b32 v{t}, 0x207
    v_add_f32 v{a}, v{a}, v{a+1}
    v_cmp_class_f32 s[42:43], v{a}, v{t}
    s_cmp_lg_u32 s46, 0
    s_cbranch_scc1 {L('ok')}
    s_or_b64 vcc, vcc, s[42:43]
    s_cbranch_scc1 {L('slow')}
    {L('ok')}:
    """)
    k.stamp(4)
    publish(k, 7, 6)
    k(f"s_branch {k.lab('otop')}")
    VV = O[0]
    def gk():
        k(f"""
        buffer_load_dwordx4 v[{SK}:{SK+3}], v{L16}, s[12:15], s20 offen sc1
        buffer_load_dwordx4 v[{SK+4}:{SK+7}], v{L16}, s[12:15], s20 offen offset:1024 sc1
        buffer_load_dwordx2 v[{SK+8}:{SK+9}], v{L8}, s[12:15], s20 offen offset:2048 sc1
        """)
    k(f"{L('slow')}:\ns_waitcnt vmcnt(0)")
    for r in range(16): k(f"v_accvgpr_read_b32 v{VV+r}, a{10+r}")
    k(f"""
    {L('slow0')}:
    s_xor_b32 s36, s36, 1
    s_mul_i32 s17, s36, 163840
    s_add_u32 s17, s17, s62
    s_add_u32 s17, s17, {hx(QSZ)}
    """)
    srd(k, 12, 4, "s17", 163840)
    k(f"""
    s_and_b32 s39, s36, 1
    s_lshl_b32 s39, s39, 2
    s_add_u32 s39, s39, s3
    s_mul_i32 s39, s39, 1280
    s_add_u32 s39, s39, {QL}
    v_and_b32 v{t+1}, 255, v{L8}
    v_add_u32 v{t}, s39, v{L16}
    v_add_u32 v{t+1}, s39, v{t+1}
    ds_read_b128 v[{Q}:{Q+3}], v{t}
    ds_read_b64 v[{Q+4}:{Q+5}], v{t+1} offset:1024
    s_mov_b32 s20, 0
    s_waitcnt lgkmcnt(0)
    v_mov_b32 v{t}, 0xff800000
    {L('slow1')}:
    """)
    gk()
    k("s_waitcnt vmcnt(0)")
    for x in qk(S[0], SK, Q, None, "v"): k(x)
    for j in range(16): k(f"v_max3_f32 v{t}, v{S[0]+2*j}, v{S[0]+2*j+1}, v{t}")
    k(f"""
    s_add_u32 s20, s20, 5120
    s_cmp_lg_u32 s20, 163840
    s_cbranch_scc1 {L('slow1')}
    s_mov_b32 s20, 0
    v_mov_b32 v{t+1}, v{t}
    v_permlane32_swap_b32 v{t+1}, v{t}
    v_max_f32 v{t}, v{t}, v{t+1}
    """)
    for r in range(16): k(f"v_sub_f32 v{SM+r}, 0, v{t}\nv_mov_b32 v{O[1]+r}, v{O[3]+r}\nv_mov_b32 v{O[3]+r}, 0")
    k(f"{L('slow2')}:")
    gk()
    k("s_mov_b64 exec, s[44:45]")
    for m in range(4): k(f"buffer_load_dwordx4 v[{VV+4*m}:{VV+4*m+3}], v{LV}, s[12:15], s20 offen offset:{640*m} sc1")
    k("s_mov_b64 exec, -1\ns_waitcnt vmcnt(0)")
    for x in qk(S[0], SK, Q, SM, "v"): k(x)
    for i in range(32): k(f"v_exp_f32 v{S[0]+i}, v{S[0]+i}")
    for j in range(16): k(cv(S[0], P[0], j))
    for x in pv(O[3], VV, P[0], "v"): k(x)
    k(f"""
    s_add_u32 s20, s20, 5120
    s_cmp_lg_u32 s20, 163840
    s_nop 15
    s_cbranch_scc1 {L('slow2')}
    s_add_u32 s46, s46, 1
    s_cmp_eq_u32 s46, 1
    s_cbranch_scc1 {L('slow0')}
    s_branch {L('fin')}
    """)
```

```python
import os
from mcommon import *
QSCALE = 20 ** -0.5 * 1.4426950408889634
TOUCH = int(os.environ.get('TOUCH', 0))
XF = int(os.environ.get('XF', 1))
XW = int(os.environ.get('XW', 0))
ST = int(os.environ.get('ST', 0))
CP = int(os.environ.get('CP', 1))
XB = int(os.environ.get('XB', 0))
def m_prep(k, ATOM=False):
    L = lambda n: k.lab("p" + n)
    RED = 4*7168
    W, WO = 16, 40
    k.stamp(0)
    k(f"""
    s_load_dwordx16 s[36:51], s[0:1], 0
    s_load_dwordx2 s[4:5], s[0:1], 64
    """)
    if CP: k(f"""
    s_getpc_b64 s[52:53]
    {k.lab('pc')}:
    s_lshr_b32 s6, s2, 3
    s_mul_i32 s6, s6, {128*(8 if CP == 1 else 0)}
    v_and_b32 v1, {7 if CP == 1 else 255}, v0
    v_lshl_add_u32 v1, v1, 7, s6
    v_min_u32 v1, {k.lab('last')}-{k.lab('pc')}-4, v1
    v_mov_b32 v3, s53
    v_add_co_u32 v2, vcc, s52, v1
    v_addc_co_u32 v3, vcc, 0, v3, vcc
    global_load_dword v62, v[2:3], off
    """)
    k(f"""
    v_lshrrev_b32 v1, 6, v0
    v_and_b32 v{LN}, 63, v0
    v_readfirstlane_b32 s3, v1
    v_lshlrev_b32 v{L16}, 4, v{LN}
    s_mov_b32 s{PH}, 1
    s_mov_b32 s{NL}, 0
    s_lshr_b32 s18, s2, 5
    s_lshl_b32 s18, s18, 3
    s_and_b32 s19, s2, 7
    s_add_u32 s18, s18, s19
    s_lshl_b32 s18, s18, 2
    s_bfe_u32 s19, s2, 0x20003
    s_add_u32 s18, s18, s19
    s_mul_i32 s16, s3, 7168
    v_lshrrev_b32 v7, 1, v{LN}
    v_mul_u32_u24 v7, 3840, v7
    v_and_b32 v5, 1, v{LN}
    v_lshl_add_u32 v7, v5, 4, v7
    s_cmp_ge_u32 s18, 120
    s_cselect_b32 s31, 120, 0
    s_cselect_b32 s30, {hx(WB)}, 0
    s_cselect_b32 s33, {hx(f2u(QSCALE))}, 1.0
    s_sub_u32 s31, s18, s31
    s_lshl_b32 s34, s31, 5
    s_mul_i32 s17, s3, {160*3840}
    s_add_u32 s34, s34, s17
    s_cmp_ge_u32 s18, {120 if XB > 1 else 240}
    s_cselect_b32 s26, 0, {640*3840}
    s_mov_b32 s27, 0x20000
    s_mov_b32 m0, s16
    v_lshrrev_b32 v2, 5, v{LN}
    v_bfe_u32 v3, v{LN}, 4, 1
    v_bfe_u32 v4, v{LN}, 2, 2
    v_and_b32 v5, 3, v{LN}
    """)
    sdiv(k, 61, 2, 10, 256)
    k(f"""
    s_mul_i32 s63, s61, 10
    s_sub_u32 s63, s2, s63
    s_lshl_b32 s63, s63, 1
    s_lshr_b32 s62, s3, 1
    s_add_u32 s63, s63, s62
    s_cmp_ge_u32 s61, 10
    s_cselect_b32 s62, 10, 0
    s_sub_u32 s62, s61, s62
    s_lshl_b32 s62, s62, 1
    s_and_b32 s60, s3, 1
    s_add_u32 s62, s62, s60
    v_lshlrev_b32 v8, 3, v3
    v_lshl_add_u32 v8, v2, 2, v8
    v_mul_u32_u24 v9, 40, v2
    v_mad_u32_u24 v9, v3, 20, v9
    v_add_u32 v9, 16, v9
    s_mul_i32 s20, s63, {40*1280}
    s_mul_i32 s21, s63, {160*1280}
    s_sub_u32 s21, s21, {16*160*1280}
    s_cmp_lt_u32 s63, 16
    s_cselect_b32 s20, s20, s21
    s_cselect_b64 vcc, -1, 0
    s_cselect_b32 s21, 20, 80
    v_cndmask_b32 v8, v9, v8, vcc
    v_add_u32 v8, v8, v4
    v_mul_u32_u24 v8, 1280, v8
    v_lshl_add_u32 v8, v5, 4, v8
    s_lshl_b32 s22, s62, 6
    s_add_u32 s20, s20, s22
    s_mul_i32 s21, s21, 1280
    s_add_u32 s21, s21, s20
    s_cmp_ge_u32 s18, 120
    s_waitcnt lgkmcnt(0)
    s_cselect_b32 s24, s44, s38
    s_cselect_b32 s25, s45, s39
    """)
    if ST == 1: k(f"""
    s_lshr_b32 s52, s2, 3
    s_mul_i32 s53, s52, {640*3840//32}
    s_mul_i32 s55, s52, {640*1280//32}
    s_mul_i32 s52, s52, {2048*1280//32}
    s_load_dword s42, s[38:39], s53
    s_load_dword s42, s[44:45], s53
    s_load_dword s42, s[36:37], s52
    s_load_dword s42, s[40:41], s55
    s_load_dword s42, s[46:47], s55
    """)
    if ST == 2: k(f"""
    s_bfe_u32 s52, s2, 0x20003
    s_lshr_b32 s53, s2, 5
    s_cmp_eq_u32 s52, 1
    s_cselect_b64 s[8:9], s[44:45], s[38:39]
    s_cmp_eq_u32 s52, 2
    s_cselect_b64 s[8:9], s[36:37], s[8:9]
    s_mul_i32 s53, s53, {(640*3840-64)//7 & ~63}
    s_load_dword s42, s[8:9], s53
    """)
    k.stamp(1)
    k(f"s_add_u32 s52, s4, {hx(EPO)}\ns_addc_u32 s53, s5, 0\ns_load_dwordx2 s[{EP}:{EP+1}], s[52:53], 0")
    def wl(r):
        k("s_mov_b32 m0, s16")
        if XW:
            k(f"""
            v_lshrrev_b32 v7, 3, v{LN}
            v_mul_u32_u24 v7, 3840, v7
            v_and_b32 v10, 7, v{LN}
            v_lshl_add_u32 v7, v10, 4, v7
            s_lshr_b32 s{r}, s31, 2
            s_lshl_b32 s{r}, s{r}, 7
            s_and_b32 s55, s31, 3
            s_lshl_b32 s55, s55, 2
            s_add_u32 s55, s55, s3
            s_mul_i32 s55, s55, {40*3840}
            s_add_u32 s{r}, s{r}, s55
            """)
        for i in range(5):
            if i == 4: k(f"s_add_u32 m0, s16, 4096")
            k(f"buffer_load_dwordx4 v7, s[24:27], s{r} offen offset:{(i%4)*1024} lds")
            if i < 4: k(f"s_add_u32 s{r}, s{r}, {(8 if XW else 32)*3840 - (1024 if i < 3 else -3072)}")
    if XF: k("s_mov_b32 s54, s34")
    else: wl(34)
    k(f"""
    s_cmp_ge_u32 s61, 10
    s_cselect_b32 s12, s46, s40
    s_cselect_b32 s13, s47, s41
    s_cselect_b32 s28, {hx(WOSZ)}, 0
    s_cmp_ge_u32 s2, {100 if XB > 1 else 200}
    s_cselect_b32 s14, 0, {640*1280}
    s_mov_b32 s15, 0x20000
    s_add_u32 m0, s16, 5120
    s_sub_u32 s21, s21, 1024
    buffer_load_dwordx4 v8, s[12:15], s20 offen lds
    buffer_load_dwordx4 v8, s[12:15], s21 offen offset:1024 lds
    """)
    op_map(k, 6, 7, 17)
    srd(k, 8, 36, 0, 2048*1280)
    k(f"""
    s_and_b32 s34, s3, 1
    s_lshr_b32 s35, s3, 1
    s_lshl_b32 s17, s7, 1
    s_add_u32 s17, s17, s34
    s_mul_i32 s19, s17, 40960
    s_mul_i32 s20, s6, 160
    s_add_u32 s19, s19, s20
    s_lshl_b32 s20, s35, 6
    s_add_u32 s20, s20, s19
    v_and_b32 v1, 31, v{LN}
    v_mul_u32_u24 v9, 1280, v1
    v_lshl_add_u32 v9, v2, 4, v9
    buffer_load_dwordx4 v[{RES}:{RES+3}], v9, s[8:11], s20 offen
    buffer_load_dwordx4 v[{RES+4}:{RES+7}], v9, s[8:11], s20 offen offset:32
    buffer_load_dwordx4 v[{RES+8}:{RES+11}], v9, s[8:11], s19 offen offset:128
    """)
    if XF: wl(54)
    srd(k, 56, 4, 0, WSEND)
    k(f"""
    s_mov_b64 s[{DO}:{DO+1}], s[48:49]
    v_mov_b32 v56, -1
    v_mov_b32 v57, -1
    v_mov_b32 v58, -1
    v_mov_b32 v59, -1
    """)
    if WARM: k(f"""
    v_lshl_add_u32 v9, s2, 8, v0
    v_lshlrev_b32 v9, 4, v9
    v_cmp_gt_u32 vcc, {hx(10*(256 << FS))}, v9
    v_mov_b32 v10, {hx(OOB)}
    v_cndmask_b32 v9, v10, v9, vcc
    s_mov_b32 s19, {hx(FLG)}
    buffer_store_dwordx4 v[56:59], v9, s[56:59], s19 offen sc1
    """)
    if TOUCH: k(f"""
    v_mul_u32_u24 v9, {hx((WSEND//64) & ~127)}, v{LN}
    buffer_load_dword v62, v9, s[56:59], 0 offen
    """)
    k(f"""
    s_lshl_b32 s19, s62, 5
    v_add_u32 v8, s19, v1
    """)
    vdiv(k, 9, 8, 80, 640)
    k(f"""
    v_mul_u32_u24 v10, 80, v9
    v_sub_u32 v10, v8, v10
    v_mul_u32_u24 v14, {hx(102400)}, v9
    v_lshl_add_u32 v14, v2, 9, v14
    v_lshl_add_u32 v14, v5, 4, v14
    """)
    for b, s in ((3, 6), (2, 7), (4, 8), (5, 10), (6, 12)): k(f"v_bfe_u32 v13, v10, {b}, 1\nv_lshl_add_u32 v14, v13, {s}, v14")
    k(f"""
    v_mul_u32_u24 v13, {2048-256}, v13
    v_sub_u32 v13, 2048, v13
    v_add_u32 v15, v13, v14
    s_mul_i32 s29, s63, 5120
    s_add_u32 s28, s28, s29
    s_add_u32 s28, s28, {hx(WOA)}
    s_cmp_ge_u32 s2, {100 if XB else 200}
    s_cselect_b32 s29, {hx(OOB)}, 0
    v_add_u32 v14, s29, v14
    v_add_u32 v15, s29, v15
    v_lshlrev_b32 v6, 9, v2
    v_lshl_add_u32 v6, v4, 6, v6
    v_lshl_add_u32 v6, v3, 5, v6
    v_lshl_add_u32 v6, v5, 3, v6
    v_add_u32 v6, s16, v6
    s_mul_i32 s19, s17, {XT}
    s_add_u32 s19, s19, {hx(X0)}
    s_mul_i32 s20, s6, 5120
    s_add_u32 s20, s20, s19
    s_lshl_b32 s21, s35, 11
    s_add_u32 s21, s21, s20
    s_add_u32 s20, s20, 4096
    s_lshl_b32 s22, s6, 1
    s_add_u32 s22, s22, s35
    s_lshl_b32 s22, s22, 7
    s_add_u32 s22, s22, s19
    s_add_u32 s22, s22, 40960
    s_lshl_b32 s23, s35, 30
    v_add_u32 v60, s23, v{L16}
    v_lshlrev_b32 v61, 2, v1
    s_cmp_eq_u32 s35, 0
    s_cselect_b32 s23, 1.0, 0
    s_cmp_ge_u32 s18, 240
    s_cbranch_scc1 {L('pad')}
    """)
    sdiv(k, 35, 31, 40, 120)
    k(f"""
    s_cmp_eq_u32 s35, 0
    s_cselect_b32 s33, s33, 1.0
    s_mul_i32 s32, s35, 40
    s_sub_u32 s32, s31, s32
    s_lshl_b32 s32, s32, 4
    s_mul_i32 s35, s35, 5
    v_and_b32 v7, 15, v{LN}
    v_add_u32 v8, s32, v7
    """)
    vdiv(k, 9, 8, 20, 640)
    k(f"""
    v_mul_u32_u24 v10, 20, v9
    v_sub_u32 v10, v8, v10
    v_lshrrev_b32 v11, 2, v10
    v_add_u32 v11, s35, v11
    v_lshrrev_b32 v12, 1, v9
    v_mul_u32_u24 v12, {hx(163840)}, v12
    v_lshrrev_b32 v13, 2, v11
    v_lshl_add_u32 v12, v13, 10, v12
    v_and_b32 v13, 3, v11
    v_lshl_add_u32 v12, v13, 7, v12
    v_and_b32 v13, 1, v9
    v_lshl_add_u32 v12, v13, 6, v12
    v_lshl_add_u32 v12, v5, 4, v12
    v_lshl_add_u32 v12, v3, 9, v12
    v_lshl_add_u32 v12, v2, 12, v12
    s_cmp_ge_u32 s18, {120 if XB else 999}
    s_cselect_b32 s32, {hx(OOB)}, 0
    v_add_u32 v12, s32, v12
    s_mul_i32 s32, s3, 40960
    s_add_u32 s30, s30, s32
    v_lshrrev_b32 v8, 4, v{LN}
    v_lshlrev_b32 v8, 8, v8
    v_lshl_add_u32 v8, v7, 3, v8
    v_add_u32 v8, s16, v8
    v_lshlrev_b32 v9, 4, v7
    s_lshl_b32 s32, s3, 2
    v_add_u32 v10, s32, v9
    s_mov_b32 s32, 0x3f803f80
    s_waitcnt vmcnt({(0 if XF else 5)+WARM+TOUCH}) lgkmcnt(0)
    """)
    k.stamp(2)
    for i in range(5):
        k(f"ds_read_b64_tr_b16 v[{W+4*i}:{W+4*i+1}], v8 offset:{i*1024}")
        k(f"ds_read_b64_tr_b16 v[{W+4*i+2}:{W+4*i+3}], v8 offset:{i*1024+128}")
    for i in range(5):
        k(f"s_waitcnt lgkmcnt({8-2*i})")
        for j in range(4): k(f"v_dot2_f32_bf16 v{36+j}, v{W+4*i+j}, s32, {f'v{36+j}' if i else 0}")
    k(f"""
    v_add_f32 v36, v36, v37
    v_add_f32 v38, v38, v39
    v_add_f32 v36, v36, v38
    v_mov_b32 v37, v36
    v_permlane32_swap_b32 v36, v37
    v_add_f32 v36, v36, v37
    v_mov_b32 v37, v36
    v_permlane16_swap_b32 v36, v37
    v_add_f32 v36, v36, v37
    ds_write_b32 v10, v36 offset:{RED}
    s_waitcnt lgkmcnt(0)
    s_barrier
    ds_read_b128 v[36:39], v9 offset:{RED}
    v_mov_b32 v48, s33
    s_waitcnt lgkmcnt(0)
    v_add_f32 v36, v36, v37
    v_add_f32 v38, v38, v39
    v_add_f32 v36, v36, v38
    v_mul_f32 v36, {hx(f2u(-1.0/640))}, v36
    v_mul_f32 v36, s33, v36
    """)
    k.stamp(3)
    for i in range(5):
        for j in range(4):
            r = W+4*i+j; u = 64 + 2*j
            k(f"v_lshlrev_b32 v{u}, 16, v{r}\nv_and_b32 v{u+1}, 0xffff0000, v{r}")
        for j in range(4): u = 64 + 2*j; k(f"v_pk_fma_f32 v[{u}:{u+1}], v[{u}:{u+1}], v[48:49], v[36:37] op_sel_hi:[1,0,0]")
        for j in range(4): u = 64 + 2*j; k(f"v_cvt_pk_bf16_f32 v{W+4*i+j}, v{u}, v{u+1}")
        k(f"buffer_store_dwordx4 v[{W+4*i}:{W+4*i+3}], v12, s[56:59], s30 offen sc1")
        if i < 4: k("s_add_u32 s30, s30, 8192")
    k(f"""
    s_branch {L('rest')}
    {L('pad')}:
    s_sub_u32 s30, s18, 240
    s_lshl_b32 s30, s30, 2
    s_add_u32 s30, s30, s3
    s_lshl_b32 s31, s30, 14
    s_add_u32 s31, s31, {hx(KVP0)}
    s_mul_i32 s30, s30, {5*16384}
    v_lshrrev_b32 v8, 4, v{LN}
    v_lshlrev_b32 v8, 12, v8
    v_bfe_u32 v9, v{LN}, 3, 1
    v_lshl_add_u32 v8, v9, 9, v8
    v_and_b32 v9, 7, v{LN}
    v_lshl_add_u32 v8, v9, 4, v8
    """)
    for j in range(4): k(f"v_mov_b32 v{W+j}, 0x3f803f80")
    for i in range(16):
        k(f"buffer_store_dwordx4 v[56:59], v{L16}, s[56:59], s31 offen offset:{(i%4)*1024} sc1")
        if i % 4 == 3: k("s_add_u32 s31, s31, 4096")
    for i in range(5):
        k(f"buffer_store_dwordx4 v[{W}:{W+3}], v8, s[56:59], s30 offen offset:{3*1024+24*16} sc1")
        if i < 4: k("s_add_u32 s30, s30, 16384")
    k(f"{L('rest')}:")
    k.stamp(4)
    k(f"s_waitcnt vmcnt({5+WARM+TOUCH})")
    k.stamp(5)
    for i in range(2):
        k(f"ds_read_b64_tr_b16 v[{WO+4*i}:{WO+4*i+1}], v6 offset:{5120+i*1024}")
        k(f"ds_read_b64_tr_b16 v[{WO+4*i+2}:{WO+4*i+3}], v6 offset:{5120+i*1024+256}")
    k(f"""
    buffer_store_dwordx4 v[{RES}:{RES+3}], v{L16}, s[56:59], s21 offen sc1
    buffer_store_dwordx4 v[{RES+4}:{RES+7}], v{L16}, s[56:59], s21 offen offset:1024 sc1
    buffer_store_dwordx4 v[{RES+8}:{RES+11}], v60, s[56:59], s20 offen sc1
    s_waitcnt lgkmcnt(0)
    buffer_store_dwordx4 v[{WO}:{WO+3}], v14, s[56:59], s28 offen sc1
    buffer_store_dwordx4 v[{WO+4}:{WO+7}], v15, s[56:59], s28 offen sc1
    """)
    t = 64
    for i in range(4):
        for f in range(3): k(f"v_dot2_f32_bf16 v{t+f}, v{RES+4*f+i}, v{RES+4*f+i}, {f'v{t+f}' if i else 0}")
    k(f"""
    v_add_f32 v{t}, v{t}, v{t+1}
    v_fma_f32 v{t}, v{t+2}, s23, v{t}
    v_mov_b32 v{t+1}, v{t}
    v_permlane32_swap_b32 v{t+1}, v{t}
    v_add_f32 v{t}, v{t}, v{t+1}
    buffer_store_dword v{t}, v61, s[56:59], s22 offen sc1
    """)
    return L
def m_prep_flags(k, L):
    qkv_map(k, 48, 49, 50)
    k(f"""
    s_lshl_b32 s7, s7, 3
    s_add_u32 s7, s7, s6
    s_add_u32 s18, s18, 256
    s_min_u32 s19, s2, 200
    s_add_u32 s19, s19, 512
    v_mov_b32 v2, s7
    v_writelane_b32 v2, s18, 1
    v_writelane_b32 v2, s19, 2
    v_lshlrev_b32 v2, 7, v2
    s_add_u32 s{EP}, s{EP}, 1
    s_add_u32 s{EP+1}, s{EP+1}, 1
    v_mov_b32 v{EPV}, s{EP}
    v_mov_b32 v{EPV+1}, s{EP+1}
    s_lshl_b32 s49, s49, 4
    v_and_b32 v3, 15, v{LN}
    v_add_u32 v3, s49, v3
    s_mul_i32 s6, s6, 5
    s_lshr_b32 s6, s6, 2
    s_mul_i32 s6, s6, 10
    s_add_u32 s6, s6, {512-44}
    v_add_u32 v6, s6, v{LN}
    v_cmp_le_u32 vcc, 44, v{LN}
    v_cndmask_b32 v3, v3, v6, vcc
    s_mul_i32 s6, s48, 5
    s_lshr_b32 s6, s6, 1
    """)
    for j in range(9): k(f"s_add_u32 s7, s6, {256 + 40*(j//3) + j%3}\nv_writelane_b32 v3, s7, {16+j}")
    k(f"""
    s_lshr_b32 s7, s48, 1
    s_add_u32 s7, s7, {256+240}
    v_writelane_b32 v3, s7, 25
    v_lshlrev_b32 v3, 7, v3
    """)
def m_prep_sync(k, L):
    k(f"""
    {L('sync')}:
    s_mov_b32 s22, {hx(PFL)}
    s_mov_b32 s23, 0x40000
    s_waitcnt vmcnt(0)
    s_barrier
    """)
    k.stamp(6)
    k(f"""
    s_cmp_lg_u32 s3, 0
    s_cbranch_scc1 {L('pol0')}
    s_cmp_ge_u32 s2, 200
    s_cselect_b64 exec, 3, 7
    buffer_store_dwordx2 v[{EPV}:{EPV+1}], v2, s[56:59], s22 offen sc1
    {L('pol0')}:
    s_lshl_b32 exec_lo, 0x01111111, s3
    s_and_b32 exec_lo, exec_lo, 0x03ffffff
    s_lshl_b32 exec_hi, 0x11111000, s3
    {PB}
    {L('poll')}:
    buffer_load_dwordx2 v[6:7], v3, s[56:59], s22 offen sc1
    s_sub_u32 s23, s23, 1
    s_cbranch_scc1 {L('got')}
    s_waitcnt vmcnt(0)
    v_cmp_ne_u64 vcc, s[{EP}:{EP+1}], v[6:7]
    s_and_b64 exec, vcc, vcc
    s_cbranch_scc1 {L('poll')}
    {L('got')}:
    s_mov_b64 exec, -1
    s_barrier
    """)
    k.prof_end(3, 7, NL)
    k.stamp(0)
    for x, pre in wpre_loads(19, 20):
        for s in pre: k(s)
        k(x)
    k(f"s_branch {k.lab('qgo')}")
```

```python
from mcommon import *
from matt2 import QL, NB, WL
LOG2E = 1.4426950408889634
OOB = 0x40000000
PJ, PN, WS, WA2 = map(int, os.environ.get('PJ', '34,2,1,25').split(','))
Q0 = 12
XA = 26*NB
NA = XA + 4*(40 - Q0)
WA1 = int(os.environ.get('WA1', 6)); WB1 = int(os.environ.get('WB1', 0)); QB1 = int(os.environ.get('QB1', 20))

def m_qkv(k):
    SQ, ASQ = 180, 163
    L = lambda n: k.lab("q" + n)
    ACC, WF, XR = 0, 64, 80
    LW, SS, T0 = 146, 147, 148
    TID, HH, TOK = 160, 161, 162
    E0 = 164
    k(f"{L('top')}:")
    qkv_map(k, 6, 7, 16)
    k(f"""
    s_lshl_b32 s16, s7, 2
    s_add_u32 s16, s16, s3
    s_mul_i32 s18, s16, {XT}
    s_mul_i32 s19, s{NL}, {XSZ}
    s_add_u32 s18, s18, s19
    s_add_u32 s18, s18, {hx(X0)}
    """)
    srd(k, 12, 4, "s18", XT)
    def xr(ks): return f"v[{XR+4*ks}:{XR+4*ks+3}]" if ks < Q0 else f"a[{XA+4*(ks-Q0)}:{XA+4*(ks-Q0)+3}]"
    def xload(G, i):
        ks = 4*G + i
        return f"buffer_load_dwordx4 {xr(ks)}, v{L16}, s[12:15], s21 offen offset:{i*1024} sc1"
    def wload(G, i):
        return f"buffer_load_dwordx4 v{LW}, s[8:11], s20 offen offset:{i*1024} sc1 lds"
    def gsetup(G):
        r = [f"s_add_u32 m0, s19, {(G%4)*16384}"]
        if G: r += [f"s_mov_b32 s20, {G*16384}", f"s_mov_b32 s21, {G*4096}"]
        return r
    srd(k, 24, 4, 0, WSEND)
    op_map(k, 52, 53, 54)
    k(f"""
    s_lshl_b32 s19, s3, 12
    s_lshl_b32 s55, s3, 10
    v_add_u32 v{LW}, s19, v{L16}
    s_lshl_b32 s53, s3, 9
    v_and_b32 v{TID}, 0x1ff, v{L16}
    v_add_u32 v{TID}, s53, v{TID}
    s_lshr_b32 s53, s{NL}, 1
    s_mul_i32 s62, s{NL}, {OSZ}
    s_add_u32 s62, s62, {hx(OS[0])}
    s_mul_i32 s61, s53, {QSZ+KVSZ}
    s_add_u32 s61, s61, {hx(QS[0])}
    s_mul_i32 s63, s53, {KVPSZ}
    s_add_u32 s63, s63, {hx(KVP0)}
    s_mul_i32 s52, s52, 102400
    s_bitcmp1_b32 s{NL}, 0
    s_cselect_b32 s62, s61, s62
    s_cselect_b32 s63, 0, s63
    s_cselect_b32 s53, {WOSZ}, 0
    s_add_u32 s52, s52, s53
    s_add_u32 s52, s52, {hx(WOA)}
    s_mul_i32 s53, s3, 25600
    s_add_u32 s53, s53, {6*4096}
    """)
    srd(k, 48, 4, "s52", 102400)
    k(f"""
    v_lshrrev_b32 v{HH}, 5, v{LN}
    v_and_b32 v{TOK}, 31, v{LN}
    v_lshlrev_b32 v{ASQ}, 10, v{HH}
    v_lshl_add_u32 v{ASQ}, v{TOK}, 2, v{ASQ}
    s_cmp_eq_u32 s{NL}, 0
    s_cbranch_scc1 {L('proA')}
    """)
    fire(k, 7, T0+6)
    k(f"s_cmp_lg_u32 s63, 0\ns_cbranch_scc1 {L('proA')}")
    t = T0
    if True:
        AQ, AQT, AK, AKT, AVW, AVR, AVS = E0, E0+1, E0+2, E0+3, E0+4, E0+5, E0+8
        k(f"""
        s_mul_i32 s28, s3, 1280
        v_mul_u32_u24 v{t}, 5120, v{HH}
        v_add_u32 v{t}, s28, v{t}
        v_lshl_add_u32 v{AQ}, v{TOK}, 4, v{t}
        v_lshl_add_u32 v{AQT}, v{TOK}, 3, v{t}
        v_mul_u32_u24 v{t}, {hx(163840)}, v{HH}
        v_lshl_add_u32 v{AK}, v{TOK}, 4, v{t}
        v_lshl_add_u32 v{AKT}, v{TOK}, 3, v{t}
        s_mul_i32 s29, s6, {2*163840}
        s_lshr_b32 s30, s16, 1
        s_mul_i32 s30, s30, 5120
        s_add_u32 s29, s29, s30
        s_add_u32 s29, s29, s62
        s_add_u32 s29, s29, {hx(QSZ)}
        s_and_b32 s33, s16, 1
        s_lshl_b32 s30, s33, 10
        s_add_u32 s30, s30, s29
        s_lshl_b32 s31, s33, 8
        s_add_u32 s31, s31, s29
        s_mul_i32 s32, s33, 1280
        s_add_u32 s32, s32, s29
        v_mul_u32_u24 v{AVW}, 40, v{LN}
        v_add_u32 v{AVW}, s19, v{AVW}
        v_lshrrev_b32 v{t}, 4, v{LN}
        v_and_b32 v{t+1}, 3, v{LN}
        v_lshl_add_u32 v{t}, v{t}, 2, v{t+1}
        v_bfe_u32 v{t+1}, v{LN}, 2, 2
        """)
        for p in range(3):
            k(f"v_add_u32 v{t+2}, {16*p}, v{t}")
            vdiv(k, t+3, t+2, 5, 48)
            k(f"""
            v_mul_u32_u24 v{t+4}, 5, v{t+3}
            v_sub_u32 v{t+4}, v{t+2}, v{t+4}
            v_lshrrev_b32 v{t+5}, 1, v{t+3}
            v_lshl_add_u32 v{t+5}, v{t+5}, 4, v{t+1}
            v_and_b32 v{t+3}, 1, v{t+3}
            v_lshl_add_u32 v{t+5}, v{t+3}, 2, v{t+5}
            v_mul_u32_u24 v{t+5}, 40, v{t+5}
            v_lshl_add_u32 v{t+5}, v{t+4}, 3, v{t+5}
            v_add_u32 v{AVR+p}, s19, v{t+5}
            """)
        k(f"""
        v_mov_b32 v{AVS}, v{L16}
        v_cmp_gt_u32 vcc, 16, v{LN}
        v_add_u32 v{t}, 1024, v{L16}
        v_add_u32 v{t+1}, {hx(163840 - 256)}, v{L16}
        v_cndmask_b32 v{AVS+1}, v{t+1}, v{t}, vcc
        v_cmp_gt_u32 vcc, 32, v{LN}
        v_add_u32 v{t}, {hx(163840 + 768)}, v{L16}
        v_mov_b32 v{t+1}, {hx(OOB)}
        v_cndmask_b32 v{AVS+2}, v{t+1}, v{t}, vcc
        s_branch {L('main')}
        {L('proA')}:
        """)
    if True:
        KVS, RR = 0, 24576
        AW, ATA, ATB, APM, APT, AG, ARW, ARM, ART, AOT = range(E0, E0+10)
        k(f"""
        s_lshl_b32 s28, s3, 5
        v_lshl_add_u32 v{t}, v{HH}, 7, v{TOK}
        v_add_u32 v{t}, s28, v{t}
        v_mul_u32_u24 v{AW}, 96, v{t}
        v_bfe_u32 v{t}, v{LN}, 2, 2
        v_lshl_add_u32 v{t}, v{HH}, 3, v{t}
        s_lshl_b32 s28, s3, 7
        v_add_u32 v{t}, s28, v{t}
        v_mul_u32_u24 v{t}, 96, v{t}
        v_bfe_u32 v{t+1}, v{LN}, 4, 1
        v_and_b32 v{t+2}, 1, v{LN}
        v_bfe_u32 v{t+3}, v{LN}, 1, 1
        v_lshl_add_u32 v{t+2}, v{t+2}, 1, v{t+3}
        v_lshl_add_u32 v{t+2}, v{t+1}, 2, v{t+2}
        v_min_u32 v{t+2}, 4, v{t+2}
        v_lshl_add_u32 v{ATA}, v{t+2}, 3, v{t}
        v_and_b32 v{t+2}, 3, v{LN}
        v_lshl_add_u32 v{t+2}, v{t+1}, 2, v{t+2}
        v_min_u32 v{t+2}, 5, v{t+2}
        v_lshl_add_u32 v{ATB}, v{t+2}, 3, v{t}
        v_min_u32 v{t}, 20, v{TOK}
        v_mad_u32_u24 v{t+1}, v{HH}, 21, v{t}
        v_lshlrev_b32 v{ARM}, 4, v{t+1}
        v_lshlrev_b32 v{ART}, 3, v{t+1}
        v_mov_b32 v{t+2}, {hx(OOB)}
        s_mul_i32 s28, s3, 672
        s_mul_i32 s29, s3, 168
        v_add_u32 v{t}, s28, v{ARM}
        v_cmp_gt_u32 vcc, 21, v{TOK}
        v_add_u32 v{t+1}, s29, v{ART}
        v_cndmask_b32 v{APM}, v{t+2}, v{t}, vcc
        v_cmp_gt_u32 vcc, 21, v{LN}
        v_lshl_add_u32 v{ARW}, v{HH}, 3, v{TID}
        v_lshl_add_u32 v{t}, v{HH}, 14, v{TID}
        v_cndmask_b32 v{APT}, v{t+2}, v{t+1}, vcc
        v_cmp_gt_u32 vcc, {105*16}, v{TID}
        s_lshl_b32 s30, s6, 15
        s_add_u32 s30, s30, s63
        v_cndmask_b32 v{AG}, v{t+2}, v{t}, vcc
        s_lshl_b32 s31, s7, 11
        s_add_u32 s31, s31, s30
        s_and_b32 s32, s6, 1
        s_lshl_b32 s32, s32, 9
        v_cmp_gt_u32 vcc, 32, v{LN}
        v_add_u32 v{t}, s32, v{L16}
        s_mul_i32 s32, s16, 40960
        s_add_u32 s32, s32, s62
        v_cndmask_b32 v{AOT}, v{t+2}, v{t}, vcc
        s_lshr_b32 s33, s6, 1
        s_add_u32 s33, s33, 32
        s_lshl_b32 s33, s33, 10
        s_add_u32 s33, s33, s32
        s_lshl_b32 s34, s6, 11
        s_add_u32 s32, s32, s34
        """)
        for j in range(4): k(f"s_add_u32 s{40+j}, s30, {j*4096}")
    def rd(ks, tt): return f"ds_read_b128 v[{WF+4*tt}:{WF+4*tt+3}], v{L16} offset:{(ks%16)*4096 + tt*1024}"
    k(f"{L('main')}:")
    k(f"s_cmp_eq_u32 s{NL}, 0\ns_cbranch_scc1 {k.lab('psync')}")
    wait(k, T0+6, T0)
    k(f"{L('go')}:")
    k.stamp(1)
    for G in range(3):
        k(f"s_mov_b32 s21, {G*4096}")
        for i in range(4): k(xload(G, i))
    k("s_mov_b32 s22, 40960\ns_waitcnt vmcnt(8)\ns_barrier")
    k.stamp(2)
    wo = []
    for i in range(24, -1, -1):
        pre = []
        if i == 24 or i % 4 == 3: pre = ([] if i == 24 else ["s_sub_u32 s53, s53, 4096"]) + [f"s_add_u32 m0, s53, {WOL}"]
        wo.append((f"buffer_load_dwordx4 v{L16}, s[48:51], s53 offen offset:{(i%4)*1024} sc1 lds", pre))
    cnt = [12]; done = {0: 4, 1: 8, 2: 12}
    def ld(x): k(x); cnt[0] += 1
    tl = lambda ks: range(4) if ks < Q0 else range(1, 4) if ks < 40 else ()
    pend = []
    def read(ks, tt): k(rd(ks, tt)); pend.append((ks, tt))
    qpos = lambda j: 49152 + 1024*j if j < 12 else 32768 + 1024*(j - 12)
    for tt in range(4): read(0, tt)
    for s in gsetup(3): k(s)
    ld(xload(3, 0)); ld(wload(3, 1))
    for ks in range(40):
        G = (ks + 13) // 4; i = (ks + 13) % 4
        for n, tt in enumerate(tl(ks)):
            assert pend.pop(0) == (ks, tt)
            lg = len(pend)
            if n == 0 and ks % 4 == 3 and ks < 39:
                g = (ks + 1) // 4
                k(f"s_waitcnt vmcnt({cnt[0] - done[g]}) lgkmcnt({lg})\ns_barrier")
            else:
                k(f"s_waitcnt lgkmcnt({lg})")
            a = f"v[{ACC+16*tt}:{ACC+16*tt+15}]"
            k(f"v_mfma_f32_32x32x16_bf16 {a}, v[{WF+4*tt}:{WF+4*tt+3}], {xr(ks)}, {a if ks else 0}")
            if tt in tl(ks+1): read(ks+1, tt)
            if G == 10 and n in (0, 2):
                j = 2*i + n//2
                ld(f"buffer_load_dword v{SQ+j}, v{ASQ}, s[12:15], s22 offen offset:{128*j} sc1")
                done[10] = cnt[0]
            if 28 <= ks < 35:
                m = (ks - 25) % 7
                if n == 0: k(f"s_add_u32 m0, s55, {qpos(4*m)}\ns_mov_b32 s20, {(3+m)*16384}")
                if n == 1: ld(wload(0, 0))
            if ks == 37 and n == 0: k(f"s_waitcnt vmcnt({cnt[0] - done[10]})")
            if ks >= 37:
                j = 3*(ks - 37) + n
                if j < 4: k(f"v_add_f32 v{SQ+j}, v{SQ+j}, v{SQ+4+j}")
                elif j < 6: k(f"v_add_f32 v{SQ+j-4}, v{SQ+j-4}, v{SQ+j-2}")
                elif j == 6: k(f"v_add_f32 v{SS}, v{SQ}, v{SQ+1}\nv_add_f32 v{T0}, v{SQ}, v{SQ+1}")
            if G < 10:
                if n == 0 and i == 0:
                    for s in gsetup(G): k(s)
                if n == 1: ld(xload(G, i)); done[G] = cnt[0]
                if n == 2 and i < 3: ld(wload(G, i+1))
    def wo_feed():
        l = list(wo)
        def f(n):
            if l and 25 - len(l) < n:
                x_, pre = l.pop(0)
                for s in pre: k(s)
                k(x_)
            return 25 - len(l)
        return f
    def qgemm(j0, j1, hook):
        r = lambda j: f"ds_read_b128 v[{WF+4*(j%4)}:{WF+4*(j%4)+3}], v{L16} offset:{qpos(j)}"
        n = 40 - Q0
        if j0 == 0:
            for j in range(4): k(r(j))
        for j in range(j0, j1):
            k(f"s_waitcnt lgkmcnt({min(3, n-1-j)})")
            k(f"v_mfma_f32_32x32x16_bf16 v[{ACC}:{ACC+15}], v[{WF+4*(j%4)}:{WF+4*(j%4)+3}], {xr(Q0+j)}, v[{ACC}:{ACC+15}]")
            if j + 4 < n: k(r(j+4))
            hook()
    k.stamp(3)
    RS = T0 + 8
    k(f"""
    v_permlane32_swap_b32 v{t}, v{SS}
    v_add_f32 v{SS}, v{t}, v{SS}
    v_mov_b32 v{t+1}, {hx(f2u(1e-5))}
    v_fmac_f32 v{t+1}, {hx(f2u(1/640))}, v{SS}
    v_mul_f32 v{t}, {hx(f2u(1/640))}, v{ACC+60}
    v_fma_f32 v{t+1}, -v{t}, v{t}, v{t+1}
    v_rsq_f32 v{RS}, v{t+1}
    """)
    P = WF
    def scale_pack(src, dst, n, hook=None):
        for j in range(n):
            if hook: hook()
            k(f"v_pk_mul_f32 v[{src+2*j}:{src+2*j+1}], v[{src+2*j}:{src+2*j+1}], v[{RS}:{RS+1}] op_sel_hi:[1,0]")
            if j: k(f"v_cvt_pk_bf16_f32 v{dst+j-1}, v{src+2*j-2}, v{src+2*j-1}")
        k(f"v_cvt_pk_bf16_f32 v{dst+n-1}, v{src+2*n-2}, v{src+2*n-1}")
    k(f"s_cmp_lg_u32 s63, 0\ns_cbranch_scc1 {L('epiA')}")
    if True:
        scale_pack(ACC+40, P+8+20, 10)
        for j in range(5): k(f"ds_write_b64 v{AVW}, v[{P+8+20+2*j}:{P+8+21+2*j}] offset:{8*j}")
        scale_pack(ACC+20, P+8+10, 10)
        k(f"""
        buffer_store_dwordx4 v[{P+8+10}:{P+8+13}], v{AK}, s[24:27], s30 offen sc1
        buffer_store_dwordx4 v[{P+8+14}:{P+8+17}], v{AK}, s[24:27], s30 offen offset:512 sc1
        buffer_store_dwordx2 v[{P+8+18}:{P+8+19}], v{AKT}, s[24:27], s31 offen offset:2048 sc1
        s_waitcnt lgkmcnt(0)
        """)
        for p in range(3):
            k(f"ds_read_b64_tr_b16 v[{P+8+32+4*p}:{P+8+33+4*p}], v{AVR+p}")
            k(f"ds_read_b64_tr_b16 v[{P+8+34+4*p}:{P+8+35+4*p}], v{AVR+p} offset:320")
        for p in range(3):
            k(f"s_waitcnt lgkmcnt({4-2*p})")
            k(f"buffer_store_dwordx4 v[{P+8+32+4*p}:{P+8+35+4*p}], v{AVS+p}, s[24:27], s32 offen offset:2560 sc1")
        feed = wo_feed()
        k("s_waitcnt vmcnt(6)\ns_barrier")
        qgemm(0, QB1, lambda: feed(WB1))
        k.nB = feed(0)
        def post():
            qgemm(QB1, 40 - Q0, lambda: feed(1 if WL else 25))
            scale_pack(ACC, P, 10, lambda: feed(1 if WL else 25))
            assert feed(0) == (1 if WL else 25)
            k(f"""
            ds_write_b128 v{AQ}, v[{P}:{P+3}] offset:{QL}
            ds_write_b128 v{AQ}, v[{P+4}:{P+7}] offset:{QL+512}
            ds_write_b64 v{AQT}, v[{P+8}:{P+9}] offset:{QL+1024}
            """)
        k.postB = post
        k.stamp(6)
        publish(k, 6, 7)
        k(f"s_branch {k.lab('atop')}\n{L('epiA')}:")
    if True:
        EPS = RS + 4
        TE = 120
        k(f"v_mul_f32 v{RS+2}, {hx(f2u(LOG2E))}, v{RS}\nv_mov_b32 v{EPS}, {hx(f2u(1e-6))}")
        def phi_pack(src, dst, n, hook=None):
            for j in range(n + 1):
                a = src + 2*j; e = TE + 2*(j % 2)
                if hook: hook()
                if j < n:
                    k(f"""
                    v_pk_mul_f32 v[{e}:{e+1}], v[{a}:{a+1}], v[{RS+2}:{RS+3}] op_sel_hi:[1,0]
                    v_max_f32 v{a}, 0, v{a}
                    v_exp_f32 v{e}, v{e} clamp
                    v_exp_f32 v{e+1}, v{e+1} clamp
                    v_max_f32 v{a+1}, 0, v{a+1}
                    """)
                if j: k(f"v_cvt_pk_bf16_f32 v{dst+j-1}, v{a-2}, v{a-1}")
                if j < n:
                    k(f"""
                    v_pk_fma_f32 v[{a}:{a+1}], v[{a}:{a+1}], v[{RS}:{RS+1}], v[{EPS}:{EPS+1}] op_sel_hi:[1,0,0]
                    v_pk_add_f32 v[{a}:{a+1}], v[{a}:{a+1}], v[{e}:{e+1}]
                    """)
        PK = P + 12
        feed2 = wo_feed()
        scale_pack(ACC+40, PK+10, 10, lambda: feed2(max(0, WA1 - 11)))
        k(f"""
        s_waitcnt vmcnt({feed2(0)})
        s_barrier
        v_mov_b32 v{PK+20}, 0x3f803f80
        v_mov_b32 v{PK+21}, 0x3f803f80
        ds_write_b128 v{AW}, v[{PK+12}:{PK+15}] offset:{KVS+48}
        ds_write_b128 v{AW}, v[{PK+16}:{PK+19}] offset:{KVS+64}
        ds_write_b64 v{AW}, v[{PK+20}:{PK+21}] offset:{KVS+80}
        """)
        c2 = [0]
        def hk():
            c2[0] += 1
            if WA1 > 6 or c2[0] % 2: feed2(WA1)
        phi_pack(ACC+20, PK, 10, hk)
        for j in range(3): k(f"ds_write_b128 v{AW}, v[{PK+4*j}:{PK+4*j+3}] offset:{KVS+16*j}")
        k(f"""
        s_waitcnt lgkmcnt(0)
        s_barrier
        s_cmp_ge_u32 s3, 2
        s_cbranch_scc1 {L('nokv')}
        """)
        FA = 76
        D = 24
        for c in range(8):
            for h in range(2):
                k(f"ds_read_b64_tr_b16 v[{FA+8*c+2*h}:{FA+8*c+2*h+1}], v{ATA} offset:{KVS + c*1536 + h*384}")
                k(f"ds_read_b64_tr_b16 v[{FA+8*c+4+2*h}:{FA+8*c+5+2*h}], v{ATB} offset:{KVS + 40 + c*1536 + h*384}")
            if c >= 3:
                cc = c - 3
                k(f"s_waitcnt lgkmcnt(12)")
                k(f"v_mfma_f32_32x32x16_bf16 v[{D}:{D+15}], v[{FA+8*cc}:{FA+8*cc+3}], v[{FA+8*cc+4}:{FA+8*cc+7}], {f'v[{D}:{D+15}]' if cc else 0}")
        for cc in range(5, 8):
            k(f"s_waitcnt lgkmcnt({4*(7-cc)})")
            k(f"v_mfma_f32_32x32x16_bf16 v[{D}:{D+15}], v[{FA+8*cc}:{FA+8*cc+3}], v[{FA+8*cc+4}:{FA+8*cc+7}], v[{D}:{D+15}]")
        for j in range(6): k(f"v_cvt_pk_bf16_f32 v{44+j}, v{D+2*j}, v{D+2*j+1}")
        for j in range(6): k(f"v_min_u32 v{44+j}, -2, v{44+j}")
        k(f"""
        buffer_store_dwordx4 v[44:47], v{APM}, s[24:27], s31 offen sc1
        buffer_store_dwordx2 v[48:49], v{APT}, s[24:27], s31 offen offset:1344 sc1
        """)
        k(f"""
        {L('nokv')}:
        """)
        GA = 80
        gl = [f"buffer_load_dwordx4 v[{GA+4*j}:{GA+4*j+3}], v{AG}, s[24:27], s{40+j//2} offen offset:{(j%2)*2048} sc1" for j in range(8)]
        def check(later):
            for j in range(16):
                if j % 2 == 0: k(f"s_waitcnt vmcnt({7-j//2+later})")
                k(f"v_max3_u32 v{GA+32}, v{GA+2*j}, v{GA+2*j+1}, {f'v{GA+32}' if j else 0}")
                if j == 15: k(f"v_cmp_eq_u32 vcc, -1, v{GA+32}")
                for q in range(4*(j%2), 4*(j%2) + 4):
                    c = 0 if j < 2 else f"v{t+q}"
                    k(f"v_dot2_f32_bf16 v{t+q}, v{GA+4*(j//2)+q//2}, s{37+q%2}, {c}")
        st = [0, list(gl), 0]
        def hook():
            st[0] += 1
            if st[0] <= PJ:
                if st[0] % WS == 0: st[2] = feed2(WA2)
            elif st[1]:
                for x in st[1][:PN]: k(x)
                del st[1][:PN]
            else: feed2(25)
        st[2] = feed2(0)
        qgemm(0, 40 - Q0, hook)
        phi_pack(ACC, P, 10, hook)
        while st[1] or feed2(0) < 25: hook()
        for j in range(4): k(f"v_permlane32_swap_b32 v{P+j}, v{P+4+j}")
        k.stamp(4)
        k(f"""
        s_mov_b32 s36, 0x40000
        s_mov_b32 s37, 0x3f80
        s_mov_b32 s38, 0x3f800000
        """)
        check(25 - st[2])
        k(f"s_cbranch_vccz {L('got')}\n{L('poll')}:")
        for x in gl: k(x)
        k(f"s_sub_u32 s36, s36, 1")
        check(0)
        k(f"""
        s_cmp_eq_u32 s36, 0
        s_cbranch_scc1 {L('got')}
        s_cbranch_vccnz {L('poll')}
        {L('got')}:
        """)
        k.stamp(5)
        k("s_nop 3")
        for j in range(4): k(f"v_permlane32_swap_b32 v{t+j}, v{t+4+j}")
        for j in range(2): k(f"v_pk_add_f32 v[{t+2*j}:{t+2*j+1}], v[{t+2*j}:{t+2*j+1}], v[{t+4+2*j}:{t+5+2*j}]")
        k(f"""
        v_cvt_pk_bf16_f32 v{t+4}, v{t}, v{t+1}
        v_cvt_pk_bf16_f32 v{t+5}, v{t+2}, v{t+3}
        ds_write_b64 v{ARW}, v[{t+4}:{t+5}] offset:{RR}
        s_waitcnt lgkmcnt(0)
        s_barrier
        ds_read_b64 v[88:89], v{ART} offset:{RR+1344}
        ds_read_b128 v[80:83], v{ARM} offset:{RR}
        ds_read_b128 v[84:87], v{ARM} offset:{RR+672}
        s_waitcnt lgkmcnt(2)
        v_mfma_f32_32x32x4_2b_bf16 v[0:31], v[88:89], v[{P+8}:{P+9}], 0
        s_waitcnt lgkmcnt(0)
        v_mfma_f32_32x32x16_bf16 v[0:15], v[80:83], v[{P}:{P+3}], v[0:15]
        v_mfma_f32_32x32x16_bf16 v[16:31], v[84:87], v[{P+4}:{P+7}], v[16:31]
        """)
        for H in range(2):
            d = 16*H
            k(f"v_add_f32 v{d+12}, v{EPS}, v{d+12}\nv_rcp_f32 v{RS}, v{d+12}")
            scale_pack(d, 40 + 6*H, 6)
            k(f"buffer_store_dwordx4 v[{40+6*H}:{43+6*H}], v{L16}, s[24:27], s32 offen offset:{1024*H} sc1")
        k(f"""
        v_mov_b32 v52, v44
        v_mov_b32 v53, v45
        v_mov_b32 v54, v50
        v_mov_b32 v55, v51
        buffer_store_dwordx4 v[52:55], v{AOT}, s[24:27], s33 offen sc1
        """)
    k.stamp(6)
    publish(k, 7, 6)
```

```python
from common import *
OOB = 0x40000000
LN, L16, RES = 252, 253, 240
EP = 100
PH, NL, DO = 96, 97, 98
WOL = 61440
import os
FS = int(os.environ.get('FS', 5))
WARM = int(os.environ.get('WARM', 1))
EPV, FA = 254, 60
def publish(k, grp, prod):
    k(f"""
    s_lshl_b32 s{FA}, s{PH}, 4
    s_add_u32 s{FA}, s{FA}, s{grp}
    s_lshl_b32 s{FA}, s{FA}, 4
    s_add_u32 s{FA}, s{FA}, s{prod}
    s_lshl_b32 s{FA}, s{FA}, {FS}
    s_add_u32 s{FA}, s{FA}, {hx(FLG - (256 << FS))}
    """)
ND = int(os.environ.get('ND', 0))
def fire(k, grp, t, later=0):
    n = f"pub{len(k.L)}"
    k(f"""
    s_lshl_b32 s22, s{PH}, 4
    s_add_u32 s22, s22, s{grp}
    s_lshl_b32 s22, s22, 2
    s_add_u32 s22, s22, s3
    s_lshl_b32 s22, s22, {FS+2}
    s_add_u32 s22, s22, {hx(FLG - (256 << FS))}
    v_lshlrev_b32 v{t}, {FS}, v{LN}
    s_cmp_lg_u32 s3, 0
    s_waitcnt {'lgkmcnt(0)' if ND else f'vmcnt({later})'}
    s_barrier
    s_cbranch_scc1 {k.lab(n)}
    s_mov_b64 exec, 1
    buffer_store_dwordx2 v[{EPV}:{EPV+1}], off, s[56:59], s{FA} sc1
    s_mov_b64 exec, -1
    {k.lab(n)}:
    """)
    k.prof_end(3, 7, PH)
    k(f"s_add_u32 s{PH}, s{PH}, 1")
    k.stamp(0)
PA = os.environ.get('PA', '.p2align 5')
PB = os.environ.get('PB', '.p2align 5')
def wait(k, t, u, d=22, mask=15, pre=''):
    n = f"poll{len(k.L)}"
    assert u % 2 == 0
    k(f"""
    s_mov_b32 s23, 0x40000
    s_mov_b64 exec, {mask}
    {PA}
    {k.lab(n)}:
    buffer_load_dwordx2 v[{u}:{u+1}], v{t}, s[56:59], s{d} offen sc1
    s_sub_u32 s23, s23, 1
    s_cbranch_scc1 {k.lab(n+'x')}
    s_waitcnt vmcnt(0)
    v_cmp_ne_u64 vcc, s[{EP}:{EP+1}], v[{u}:{u+1}]
    s_and_b64 exec, vcc, vcc
    s_cbranch_scc1 {k.lab(n)}
    {k.lab(n+'x')}:
    s_mov_b64 exec, -1
    {pre}
    s_barrier
    """)
def qkv_map(k, cg, rb, t):
    k(f"""
    s_and_b32 s{cg}, s2, 3
    s_lshl_b32 s{cg}, s{cg}, 2
    s_bfe_u32 s{rb}, s2, 0x20003
    s_add_u32 s{cg}, s{cg}, s{rb}
    s_bfe_u32 s{rb}, s2, 0x10002
    s_lshl_b32 s{rb}, s{rb}, 3
    s_lshr_b32 s{t}, s2, 5
    s_add_u32 s{rb}, s{rb}, s{t}
    """)
OMAP = int(os.environ.get('OMAP', 1))
def op_map(k, cg, rb, t):
    if OMAP: return k(f"""
    s_bfe_u32 s{cg}, s2, 0x30003
    s_and_b32 s{rb}, s2, 7
    s_lshl_b32 s{rb}, s{rb}, 2
    s_lshr_b32 s{t}, s2, 6
    s_add_u32 s{rb}, s{rb}, s{t}
    """)
    k(f"""
    s_and_b32 s{cg}, s2, 1
    s_lshl_b32 s{cg}, s{cg}, 2
    s_bfe_u32 s{rb}, s2, 0x20003
    s_add_u32 s{cg}, s{cg}, s{rb}
    s_bfe_u32 s{rb}, s2, 0x20001
    s_lshl_b32 s{rb}, s{rb}, 3
    s_lshr_b32 s{t}, s2, 5
    s_add_u32 s{rb}, s{rb}, s{t}
    """)
def wpre_setup(k, odd):
    k(f"s_cselect_b32 s17, {hx(WB)}, {hx(WA)}" if odd is None else f"s_mov_b32 s17, {hx(WB if odd else WA)}")
    qkv_map(k, 48, 49, 50)
    k("s_mul_i32 s48, s48, 163840\ns_add_u32 s17, s17, s48\ns_lshl_b32 s49, s3, 12")
    srd(k, 8, 4, "s17", 163840)
def wpre_loads(w=49, t=50):
    r = []
    for G in range(3):
        for i in range(4):
            pre = [f"s_add_u32 s{t}, s{w}, {G*16384}", f"s_mov_b32 m0, s{t}"] if i == 0 else []
            r.append((f"buffer_load_dwordx4 v{L16}, s[8:11], s{t} offen offset:{i*1024} sc1 lds", pre))
    return r
```

```python
from mcommon import *
OOB = 0x40000000

OI = int(os.environ.get('OI', 12))
WE = int(os.environ.get('WE', 8))
Z = int(os.environ.get('Z', 7))
ZB = int(os.environ.get('ZB', 4))
OJ = int(os.environ.get('OJ', 0))
H1 = int(os.environ.get('H1', 0))
PW = int(os.environ.get('PW', 1))
def m_op(k):
    L = lambda n: k.lab("o" + n)
    X, Y, HA, HB, OF, WF, RF = 0, 16, 32, 48, 64, 144, RES
    AX, AY, AH, AS, AR, AO, AOH, ASQ, t = range(178, 187)
    k(f"{L('top')}:")
    k(f"s_bitcmp0_b32 s{NL}, 0")
    wpre_setup(k, None)
    wl = wpre_loads()
    op_map(k, 6, 7, 16)
    k(f"""
    s_and_b32 s34, s3, 1
    s_lshr_b32 s35, s3, 1
    s_lshl_b32 s16, s7, 1
    s_add_u32 s16, s16, s34
    s_mul_i32 s36, s16, 40960
    s_mul_i32 s18, s{NL}, {OSZ}
    s_add_u32 s18, s18, s36
    s_add_u32 s18, s18, {hx(OS[0])}
    s_mul_i32 s21, s35, 20480
    s_lshr_b32 s46, s7, 1
    s_and_b32 s47, s7, 1
    s_lshl_b32 s47, s47, 3
    s_add_u32 s47, s47, s6
    """)
    srd(k, 12, 4, "s18", 40960)
    fire(k, 46, t+1)
    k(f"s_cmp_eq_u32 s{NL}, 3\ns_cselect_b32 s10, 0, s10\ns_cbranch_scc1 {L('nopre')}")
    for x, pre in wl[:WE]:
        for s in pre: k(s)
        k(x)
    k(f"{L('nopre')}:")
    k(f"""
    s_mul_i32 s23, s35, 51200
    s_add_u32 s23, s23, {WOL}
    v_add_u32 v{AH}, s23, v{L16}
    s_lshl_b32 s23, s35, 10
    v_add_u32 v{AY}, s23, v{AH}
    s_xor_b32 s23, s23, 1024
    v_add_u32 v{AX}, s23, v{AH}
    v_lshrrev_b32 v{t}, 1, v{L16}
    v_xor_b32 v{t}, v{t}, v{L16}
    v_and_b32 v{t}, 64, v{t}
    v_mul_u32_u24 v{t}, 3, v{t}
    v_xor_b32 v{AH}, v{t}, v{AH}
    """)
    loads = [(f"buffer_load_dwordx4 v[{OF+4*i}:{OF+4*i+3}], v{L16}, s[12:15], s21 offen offset:{i%4*1024} sc1",
              ["s_add_u32 s21, s21, 4096"] if i and i % 4 == 0 else []) for i in range(20)] + wl[WE:]
    if PW:
        k(f"""
        s_lshr_b32 s23, s2, 5
        s_lshl_b32 s23, s23, 2
        s_add_u32 s23, s23, s3
        s_lshl_b32 s23, s23, 12
        s_add_u32 s23, s23, 49152
        v_lshl_add_u32 v{t+4}, v{L16}, 2, s23
        """)
        x = (f"buffer_load_dword v{t+4}, v{t+4}, s[8:11], 0 offen sc1", [])
        if PW == 1: loads.append(x)
        elif PW == 2: loads.insert(20, x)
        else: k(x[0])
    n = [0]
    def issue():
        if loads:
            x, pre = loads.pop(0)
            for s in pre: k(s)
            k(x); n[0] += 1
    k(f"""
    s_mul_i32 s37, s6, 5
    s_lshl_b32 s38, s35, 1
    s_add_u32 s38, s38, s37
    s_add_u32 s37, s37, 4
    s_mul_i32 s23, s3, 6144
    s_add_u32 s23, s23, {WOL}
    v_add_u32 v{AS}, s23, v{L16}
    s_xor_b32 s23, s3, 2
    s_mul_i32 s23, s23, 6144
    s_add_u32 s23, s23, {WOL}
    v_add_u32 v{AR}, s23, v{L16}
    s_mov_b32 s42, 0x3f80
    s_mov_b32 s43, 0x3f800000
    s_lshl_b32 s41, s35, 30
    s_cmp_eq_u32 s35, 0
    s_cselect_b32 s45, s43, 0
    s_cselect_b64 s[24:25], -1, 1
    s_cselect_b64 s[26:27], 1, -1
    v_and_b32 v{t}, 31, v{LN}
    s_mov_b32 s31, 0x20000
    s_cmp_eq_u32 s{NL}, 3
    s_cbranch_scc1 {L('fin')}
    s_mul_i32 s33, s16, {XT}
    s_mul_i32 s20, s{NL}, {XSZ}
    s_add_u32 s20, s20, s33
    s_add_u32 s20, s20, {hx(XS[1])}
    s_add_u32 s28, s4, s20
    s_addc_u32 s29, s5, 0
    s_mov_b32 s30, {XT}
    v_mov_b32 v{AO}, v{L16}
    v_lshlrev_b32 v{ASQ}, 2, v{t}
    s_lshl_b32 s39, s38, 10
    s_add_u32 s44, s39, 1024
    s_lshl_b32 s40, s37, 10
    s_lshl_b32 s32, s6, 1
    s_add_u32 s32, s32, s35
    s_lshl_b32 s32, s32, 7
    s_add_u32 s32, s32, 40960
    s_branch {L('go')}
    {L('fin')}:
    s_mov_b64 s[28:29], s[{DO}:{DO+1}]
    s_mov_b32 s30, {2048*1280}
    v_mul_u32_u24 v{AO}, 1280, v{t}
    v_lshrrev_b32 v{t}, 5, v{LN}
    v_lshl_add_u32 v{AO}, v{t}, 4, v{AO}
    v_mov_b32 v{ASQ}, {hx(OOB)}
    s_lshl_b32 s39, s38, 5
    s_add_u32 s39, s39, s36
    s_add_u32 s44, s39, 32
    s_lshl_b32 s40, s37, 5
    s_add_u32 s40, s40, s36
    s_mov_b32 s32, 0
    {L('go')}:
    v_add_u32 v{AOH}, s41, v{AO}
    """)
    def wr(p, j): return f"v[{WF+4*j}:{WF+4*j+3}]" if p == 5 else f"a[{52+20*(p%6)+4*j}:{55+20*(p%6)+4*j}]"
    def rd(p, j):
        a, o = [(AH, 4096), (AX, 0), (AY, 0), (AX, 2048), (AY, 2048)][j]
        return f"ds_read_b128 {wr(p, j)}, v{a} offset:{p*5120 + o}"
    def mf(d, p, j, ks, first):
        a = f"v[{d}:{d+(15 if j else 3)}]"
        return f"v_mfma_f32_{'32x32x16' if j else '16x16x32'}_bf16 {a}, {wr(p, j)}, v[{OF+4*ks}:{OF+4*ks+3}], {0 if first else a}"
    for p in range(6):
        for j in range(5): k(rd(p, j))
    for i in range(8): k(f"v_lshlrev_b32 v{Y+2*i}, 16, v{RF+i}\nv_and_b32 v{Y+2*i+1}, 0xffff0000, v{RF+i}")
    wait(k, t+1, t+2, pre="s_waitcnt lgkmcnt(0)")
    k.stamp(1)
    for i in range(OI): issue()
    swap = lambda r: "\n".join(f"v_permlane16_swap_b32 v{r+i}, v{r+4+i}" for i in range(4))
    for p in range(10):
        k(f"s_waitcnt vmcnt({n[0] - 2*p - 1})" + (" lgkmcnt(0)" if p == 6 else ""))
        if p == 0: k.stamp(2)
        for j in range(1, 5):
            if j == 3: k(f"s_waitcnt vmcnt({n[0] - 2*p - 2})")
            if j % 2 or p < Z: k(mf(X if j % 2 else Y, p, j, 2*p + (j-1)//2, p == 0 and j == 1))
            if p < 4: k(rd(p+6, j))
            if j == 1 and p > Z: k(swap(OF+8*p-8))
            if j in (1, 3) and (n[0] < 20 or p >= OJ): issue()
        k(swap(OF+8*p))
        k(mf(HA, p, 0, 2*p, p == 0))
        k(mf(HA+4, p, 0, 2*p+1, p == 0))
        if p < 4: k(rd(p+6, 0))
    assert not loads and Z >= 4
    k.stamp(3)
    def out(f, m):
        own = Y + 8*f if f < 2 else HB
        r = [f"v_pk_add_f32 v[{own+2*i}:{own+2*i+1}], v[{own+2*i}:{own+2*i+1}], v[{OF+8*f+2*i}:{OF+8*f+2*i+1}]" for i in range(4)]
        r += [f"v_cvt_pk_bf16_f32 v{RF+4*f+i}, v{own+2*i}, v{own+2*i+1}" for i in range(4)]
        return r + [f"buffer_store_dwordx4 v[{RF+4*f}:{RF+4*f+3}], v{AOH if f == 2 else AO}, s[28:31], s{(39, 44, 40)[f]} offen{m}"]
    sq = lambda f, i: f"v_dot2_f32_bf16 v{t+f}, v{RF+4*f+i}, v{RF+4*f+i}, {f'v{t+f}' if i else 0}"
    side = [[f"ds_write_b128 v{AS}, v[{X+4*i}:{X+4*i+3}] offset:{i*1024}" for i in range(4)],
            [swap(HA)] + H1*["s_mov_b64 exec, s[26:27]"] + [f"ds_write_b128 v{AS}, v[{HA+4*i}:{HA+4*i+3}] offset:{4096 + i*1024}" for i in range(2)] + H1*["s_mov_b64 exec, -1"],
            [swap(OF+72)] + [f"v_dot2_f32_bf16 v{HB+i}, v{RF+8+i//2}, s{42+i%2}, v{HA+i}" for i in range(2)],
            [f"v_dot2_f32_bf16 v{HB+i}, v{RF+8+i//2}, s{42+i%2}, v{HA+i}" for i in range(2, 8)]]
    side += [[]] * (ZB - 4)
    xr = [f"ds_read_b128 v[{OF+4*i}:{OF+4*i+3}], v{AR} offset:{i*1024}" for i in (4, 5, 0, 1, 2, 3)]
    side += [H1*["s_mov_b64 exec, s[24:25]"] + ["s_waitcnt lgkmcnt(0)", "s_barrier"] + xr[:2] + H1*["s_mov_b64 exec, -1"] + xr[2:]]
    ys = [(p, j) for p in range(Z, 10) for j in (2, 4)]
    assert len(ys) >= len(side)
    for i, (p, j) in enumerate(ys):
        k(mf(Y, p, j, 2*p + (j-1)//2, False))
        if i < len(side): k("\n".join(side[i]))
    def outs(m):
        k("s_waitcnt lgkmcnt(4)")
        for x in out(2, m) + [sq(2, i) for i in range(4)]: k(x)
        for f in range(2):
            k(f"s_waitcnt lgkmcnt({2-2*f})")
            for x in out(f, m): k(x)
    k(f"s_cmp_eq_u32 s{NL}, 3\ns_cbranch_scc1 {L('last')}")
    outs(' sc1')
    for i in range(4):
        for f in range(2): k(sq(f, i))
    k(f"""
    v_add_f32 v{t}, v{t}, v{t+1}
    v_and_b32 v{t+2}, s25, v{t+2}
    v_add_f32 v{t}, v{t+2}, v{t}
    v_mov_b32 v{t+1}, v{t}
    v_permlane32_swap_b32 v{t+1}, v{t}
    v_add_f32 v{t}, v{t}, v{t+1}
    buffer_store_dword v{t}, v{ASQ}, s[28:31], s32 offen sc1
    """)
    k.stamp(4)
    publish(k, 46, 47)
    k(f"s_add_u32 s{NL}, s{NL}, 1\ns_branch {k.lab('qtop')}\n{L('last')}:")
    outs('')
    k(f"""
    s_or_b32 s6, s2, s3
    s_cbranch_scc1 {L('done')}
    v_mov_b32 v0, s{EP}
    v_mov_b32 v1, s{EP+1}
    v_mov_b32 v2, {hx(EPO)}
    s_mov_b64 exec, 1
    buffer_store_dwordx2 v[0:1], v2, s[56:59], 0 offen
    {L('done')}:
    """)
    k.stamp(4)
    if K.PROF or int(os.environ.get('EW', 1)): k("s_waitcnt vmcnt(0)")
    k.prof_end(3, 7, PH)
```
